```python
import torch

def _softmax(x, axis=-1):
    return torch.softmax(x, dim=axis)
def _gelu(x):
    return torch.nn.functional.gelu(x, approximate="tanh")
def _silu(x):
    return torch.nn.functional.silu(x)
def _sigmoid(x):
    return torch.sigmoid(x)
def _layernorm(x, axis=-1, eps=1e-5):
    m = x.mean(dim=axis, keepdim=True)
    v = x.var(dim=axis, keepdim=True, unbiased=False)
    return (x - m) / torch.sqrt(v + eps)
def _scatter_add(tgt, idx, src, axis=0):
    return tgt.clone().index_add_(axis, idx, src)
def _segment_sum(src, seg, n):
    out = torch.zeros((n,) + src.shape[1:], dtype=src.dtype)
    return out.index_add_(0, seg, src)
def _pad(x, pw):
    flat = tuple(v for pair in reversed(pw) for v in pair)
    return torch.nn.functional.pad(x, flat)

kernel_name = 'recurrent_scan__compressed_kv_cla__geglu_ffn__prompt'

def setup_inputs():

    _w = (lambda a: (lambda t: t.to(torch.bfloat16) if t.is_floating_point() else t)(torch.as_tensor(a)))
    def _A_setup():
        B, H, Sq, Sk, D, M = 1, 32, 2048, 2048, 128, 640
        Dc = 4 * D
        return {
            "x": _w((lambda *s: torch.randn(*s, dtype=torch.bfloat16) * 0.05)(B, Sq, M)),
            "c_kv": _w((lambda *s: torch.randn(*s, dtype=torch.bfloat16) * 0.2)(B, Sk, Dc)),
            "w_q": _w((lambda *s: torch.randn(*s, dtype=torch.bfloat16) * 3.2)(M, H, D) * (M ** -0.5)),
            "w_uk": _w((lambda *s: torch.randn(*s, dtype=torch.bfloat16) * 3.2)(Dc, H, D) * (Dc ** -0.5)),
            "w_uv": _w((lambda *s: torch.randn(*s, dtype=torch.bfloat16) * 0.2)(Dc, H, D) * (Dc ** -0.5)),
            "w_o": _w((lambda *s: torch.randn(*s, dtype=torch.bfloat16) * 0.2)(H, D, M) * ((H * D) ** -0.5)),
        }
    _A_in = _A_setup()

    def _B_setup():
        B, S, D, F = 1, 2048, 640, 1728
        return {
            "x": _w((lambda *s: torch.randn(*s, dtype=torch.bfloat16) * 0.05)(B, S, D)),
            "w_gate": _w((lambda *s: torch.randn(*s, dtype=torch.bfloat16) * 0.1)(D, F)),
            "w_up": _w((lambda *s: torch.randn(*s, dtype=torch.bfloat16) * 0.1)(D, F)),
            "w_down": _w((lambda *s: torch.randn(*s, dtype=torch.bfloat16) * 0.1)(F, D)),
        }
    _B_in = _B_setup()

    return {
        "A_x": _A_in["x"],
        "A_c_kv": _A_in["c_kv"],
        "A_w_q": _A_in["w_q"],
        "A_w_uk": _A_in["w_uk"],
        "A_w_uv": _A_in["w_uv"],
        "A_w_o": _A_in["w_o"],
        "B_x": _B_in["x"],
        "B_w_gate": _B_in["w_gate"],
        "B_w_up": _B_in["w_up"],
        "B_w_down": _B_in["w_down"],
    }

def reference(A_x, A_c_kv, A_w_q, A_w_uk, A_w_uv, A_w_o, B_x, B_w_gate, B_w_up, B_w_down):
    def _A_ref(x, c_kv, w_q, w_uk, w_uv, w_o):
        B, Sq, M = x.shape[0], x.shape[1], x.shape[2]
        Sk = c_kv.shape[1]
        H, D = w_q.shape[1], w_q.shape[2]
        q = torch.einsum("bqm,mhd->bhqd", x, w_q)
        k = torch.einsum("bkc,chd->bhkd", c_kv, w_uk)
        v = torch.einsum("bkc,chd->bhkd", c_kv, w_uv)
        scores = torch.einsum("bhqd,bhkd->bhqk", q, k) * (D ** -0.5)
        off = Sk - Sq
        qi = torch.arange(Sq)[:, None]
        kj = torch.arange(Sk)[None, :]
        cmask = kj <= (qi + off)
        scores = torch.where(cmask[None, None], scores, -1e9)
        p = _softmax(scores, axis=-1)
        ctx = torch.einsum("bhqk,bhkd->bhqd", p, v)
        return torch.einsum("bhqd,hdm->bqm", ctx, w_o)

    def _B_ref(x, w_gate, w_up, w_down):
        return (_gelu(x @ w_gate) * (x @ w_up)) @ w_down

    x = A_x
    xn = _layernorm(x, axis=-1)
    s = _A_ref(xn, A_c_kv, A_w_q, A_w_uk, A_w_uv, A_w_o)
    g = _silu(_B_ref(xn, B_w_gate, B_w_up, B_w_down))
    return x + s * g
```

```python
import re

REG_RE = re.compile(r'\b([vas])(?:(\d+)|\[(\d+):(\d+)\])')

def regs_of(tok):
    out = []
    for m in REG_RE.finditer(tok):
        k = m.group(1)
        if m.group(2) is not None:
            out.append((k, int(m.group(2))))
        else:
            out += [(k, i) for i in range(int(m.group(3)), int(m.group(4)) + 1)]
    if re.search(r'\bvcc\b', tok):
        out.append(('s', 'vcc'))
    if re.search(r'\bm0\b', tok):
        out.append(('s', 'm0'))
    if re.search(r'\bexec\b', tok):
        out.append(('s', 'exec'))
    return out

TRANS = ('v_exp_f32', 'v_log_f32', 'v_rcp_f32', 'v_rsq_f32', 'v_sqrt_f32', 'v_sin_f32', 'v_cos_f32')

class Ins:
    __slots__ = ('text', 'op', 'kind', 'dst', 'src', 'srcC', 'srcAB', 'passes', 'tag', 'lds')
    def __init__(self, text, tag=None):
        self.text = text
        self.tag = tag
        t = text.split(';')[0].strip()
        self.dst, self.src, self.srcC, self.srcAB = [], [], [], []
        self.passes = 0
        self.lds = False
        if not t or t.endswith(':') or t.startswith('.'):
            self.op = t
            self.kind = 'label' if t.endswith(':') else 'none'
            return
        parts = t.split(None, 1)
        self.op = op = parts[0]
        ops = [o.strip() for o in parts[1].split(',')] if len(parts) > 1 else []
        if op.startswith('v_mfma'):
            self.kind = 'mfma'
            self.passes = 8 if '32x32' in op else 4
            self.dst = regs_of(ops[0])
            self.srcAB = regs_of(ops[1]) + regs_of(ops[2])
            self.srcC = regs_of(ops[3])
            self.src = self.srcAB + self.srcC
        elif op.startswith('ds_read') or op.startswith('ds_bpermute') or op.startswith('ds_swizzle'):
            self.kind = 'dsr'
            self.dst = regs_of(ops[0])
            self.src = sum((regs_of(o) for o in ops[1:]), [])
        elif op.startswith('ds_write'):
            self.kind = 'dsw'
            self.src = sum((regs_of(o) for o in ops), [])
        elif op.startswith('buffer_load') or op.startswith('global_load'):
            if re.search(r'\blds\b', t):
                self.kind = 'dma'
                self.lds = True
                self.src = sum((regs_of(o) for o in ops), []) + [('s', 'm0')]
            else:
                self.kind = 'vld'
                self.dst = regs_of(ops[0])
                self.src = sum((regs_of(o) for o in ops[1:]), [])
        elif op.startswith('buffer_store') or op.startswith('global_store') or op.startswith('buffer_atomic') or op.startswith('global_atomic'):
            self.kind = 'vst'
            self.src = sum((regs_of(o) for o in ops), [])
        elif op.startswith('buffer_') :
            self.kind = 'vmisc'
        elif op.startswith('s_load') or op.startswith('s_buffer_load') or op.startswith('s_memtime') or op.startswith('s_memrealtime'):
            self.kind = 'smem'
            self.dst = regs_of(ops[0])
            self.src = sum((regs_of(o) for o in ops[1:]), [])
        elif op.startswith('v_'):
            self.kind = 'valu'
            if op.startswith('v_cmp'):
                self.dst = regs_of(ops[0])
                self.src = sum((regs_of(o) for o in ops[1:]), [])
            elif op.startswith('v_permlane') and 'swap' in op:
                self.dst = regs_of(ops[0]) + regs_of(ops[1])
                self.src = regs_of(ops[0]) + regs_of(ops[1])
            elif op in ('v_add_co_u32', 'v_addc_co_u32', 'v_sub_co_u32'):
                self.dst = regs_of(ops[0]) + regs_of(ops[1])
                self.src = sum((regs_of(o) for o in ops[2:]), [])
            elif op == 'v_nop':
                pass
            else:
                self.dst = regs_of(ops[0])
                self.src = sum((regs_of(o) for o in ops[1:]), [])
                if op.startswith('v_fmac') or op.startswith('v_dot2c') or op.startswith('v_writelane') or 'dpp' in op or 'row_' in t or 'quad_perm' in t:
                    self.src += self.dst
        elif op.startswith('s_'):
            self.kind = 'salu'
            if op in ('s_waitcnt', 's_barrier', 's_nop', 's_endpgm', 's_setprio', 's_sleep') or op.startswith('s_cbranch') or op == 's_branch':
                self.kind = 'ctl'
                if op.startswith('s_cbranch_vcc'):
                    self.src = [('s', 'vcc')]
            elif op.startswith('s_cmp') or op.startswith('s_bitcmp'):
                self.src = sum((regs_of(o) for o in ops), [])
            else:
                self.dst = regs_of(ops[0])
                self.src = sum((regs_of(o) for o in ops[1:]), [])
                if 'saveexec' in op:
                    self.dst.append(('s', 'exec'))
        else:
            raise ValueError('unknown instruction ' + text)

    def is_dpp(self):
        return self.kind == 'valu' and ('dpp' in self.op or 'row_' in self.text or 'quad_perm' in self.text)
    def states(self):
        if self.kind in ('label', 'none'):
            return 0
        if self.op == 's_nop':
            return int(self.text.split(';')[0].split()[1], 0) + 1
        return 1


def parse_wait(text):
    vm = re.search(r'vmcnt\((\d+)\)', text)
    lg = re.search(r'lgkmcnt\((\d+)\)', text)
    return (int(vm.group(1)) if vm else None, int(lg.group(1)) if lg else None)


class State:
    def __init__(self):
        self.lg = []
        self.vm = []
        self.hist = []
        self.smem = False
        self.age = []
        self.cnt = 0
    def copy(self):
        s = State()
        s.lg = list(self.lg); s.vm = list(self.vm); s.hist = list(self.hist); s.smem = self.smem
        s.age = list(self.age); s.cnt = self.cnt
        return s
    def sig(self):
        return (tuple(tuple(sorted(map(str, x))) for x in self.lg),
                tuple((t, tuple(sorted(map(str, x)))) for t, x in self.vm))


def need_states(p, c):
    n = 0
    pd = set(p.dst)
    cs, cd = set(c.src), set(c.dst)
    if p.kind == 'mfma':
        big = 12 if p.passes == 8 else 8
        if c.kind == 'mfma':
            if pd & set(c.srcAB):
                n = max(n, big)
            if pd & set(c.srcC):
                if not (c.srcC == p.dst and c.passes == p.passes):
                    n = max(n, 10 if p.passes == 8 else 6)
            if pd & cd and not (c.srcC == p.dst and c.dst == p.dst):
                n = max(n, 10 if p.passes == 8 else 6)
        elif c.kind in ('valu', 'dsr', 'dsw', 'vld', 'vst', 'dma'):
            if pd & (cs | cd):
                n = max(n, big)
        if c.kind == 'valu' and set(p.srcC) & cd:
            n = max(n, 7 if p.passes == 8 else 3)
        if c.kind in ('dsr', 'vld') and set(p.srcC) & cd:
            n = max(n, 7 if p.passes == 8 else 3)
    elif p.kind == 'valu':
        vd = {r for r in pd if r[0] in 'va'}
        sd = {r for r in pd if r[0] == 's'}
        if c.kind == 'mfma' and vd & cs:
            n = max(n, 2)
        if c.kind == 'valu':
            if p.op in TRANS and c.op not in TRANS and vd & cs:
                n = max(n, 1)
            if p.op in TRANS and vd & cs:
                n = max(n, 1)
            if (c.op.startswith('v_permlane') or c.is_dpp()) and vd & cs:
                n = max(n, 2)
            if c.op in ('v_readfirstlane_b32', 'v_readlane_b32') and vd & cs:
                n = max(n, 1)
            if sd & cs:
                n = max(n, 4 if c.op in ('v_readlane_b32', 'v_writelane_b32') else 2)
            if p.op.startswith('v_dot2') and vd & (cs | cd) and not (c.op == p.op):
                n = max(n, 3)
            if ('s', 'exec') in sd:
                n = max(n, 5)
        if c.kind in ('vld', 'vst', 'dma') and sd & cs:
            n = max(n, 5)
        if c.kind == 'mfma' and ('s', 'exec') in sd:
            n = max(n, 4)
        if c.kind == 'ctl' and c.op.startswith('s_cbranch_vcc') and ('s', 'vcc') in sd:
            n = max(n, 0)
        if c.kind == 'salu' and sd & cs:
            n = max(n, 0)
    elif p.kind == 'salu':
        if ('s', 'm0') in pd and c.kind == 'dma':
            n = max(n, 1)
    elif p.kind == 'vst':
        if ('x4' in p.op or 'x3' in p.op) and c.kind in ('valu', 'dsr', 'vld', 'mfma'):
            data = set(regs_of(p.text.split(None, 1)[1].split(',')[0]))
            if data & cd:
                n = max(n, 2)
    elif p.kind == 'dsw':
        if ('b128' in p.op or 'b96' in p.op) and c.kind in ('valu',):
            data = set(regs_of(p.text.split(None, 1)[1].split(',')[1]))
            if data & cd:
                n = max(n, 2)
    return n


def process(lines, st=None, pad=True, stats=None, lazy=0):
    st = st.copy() if st is not None else State()
    out = []
    def push(ins):
        out.append(ins.text)
        if ins.states():
            st.hist.append(ins)
            if len(st.hist) > 24:
                st.hist.pop(0)
    def do_wait(vm, lg):
        if vm is not None:
            vm = min(vm, 63)
            if len(st.vm) > vm:
                st.vm = st.vm[len(st.vm) - vm:] if vm else []
        if lg is not None:
            lg = min(lg, 15)
            if len(st.lg) > lg:
                st.lg = st.lg[len(st.lg) - lg:] if lg else []
                st.age = st.age[len(st.age) - lg:] if lg else []
            if lg == 0:
                st.smem = False
    def emit_wait(vm, lg):
        s = 's_waitcnt'
        if vm is not None: s += ' vmcnt(%d)' % min(vm, 63)
        if lg is not None: s += ' lgkmcnt(%d)' % min(lg, 15)
        do_wait(vm, lg)
        push(Ins(s))
    for l in lines:
        tag = None
        if isinstance(l, tuple):
            l, tag = l
        if l == '@vmwait':
            idx = [i for i, (t, _) in enumerate(st.vm) if t == tag]
            if idx:
                emit_wait(len(st.vm) - 1 - idx[-1], None)
            continue
        if l == '@reset':
            st.hist = []
            continue
        ins = Ins(l, tag)
        if ins.kind in ('label', 'none'):
            push(ins)
            continue
        if ins.op == 's_waitcnt':
            vm, lg = parse_wait(ins.text)
            do_wait(vm, lg)
            push(ins)
            continue
        touched = set(ins.src) | set(ins.dst)
        lgw = vmw = None
        for i, d in enumerate(st.lg):
            if d & touched:
                lgw = len(st.lg) - 1 - i
        for i, (t, d) in enumerate(st.vm):
            if d & touched:
                vmw = len(st.vm) - 1 - i
        if lgw is not None and lazy:
            for i, a in enumerate(st.age):
                if st.cnt - a >= lazy:
                    lgw = min(lgw, len(st.lg) - 1 - i)
        if lgw is not None and st.smem:
            lgw = 0
        if lgw is not None or vmw is not None:
            emit_wait(vmw, lgw)
        dist = 0
        need = 0
        for p in reversed(st.hist):
            n = need_states(p, ins)
            if n > dist:
                need = max(need, n - dist)
            dist += p.states()
            if dist > 20:
                break
        if need:
            if not pad:
                raise RuntimeError('hazard before: ' + ins.text)
            if stats is not None:
                stats.append((need, ins.text))
            while need > 0:
                k = min(need, 16)
                push(Ins('s_nop %d' % (k - 1)))
                need -= k
        push(ins)
        if ins.kind == 'mfma':
            st.cnt += 1
        if ins.kind in ('dsr',):
            st.lg.append(set(ins.dst)); st.age.append(st.cnt)
        elif ins.kind == 'dsw':
            st.lg.append(set()); st.age.append(st.cnt)
        elif ins.kind == 'smem':
            st.lg.append(set(ins.dst)); st.age.append(st.cnt); st.smem = True
        elif ins.kind == 'vld':
            st.vm.append((tag, set(ins.dst)))
        elif ins.kind in ('vst', 'dma', 'vmisc'):
            st.vm.append((tag, set()))
    return out, st


def interleave(mfmas, fillers):
    out = list(fillers.get(-1, []))
    for i, m in enumerate(mfmas):
        out.append(m)
        out += fillers.get(i, [])
    return out


def spread(items, start, end, fillers):
    n = len(items)
    L = end - start
    for k, it in enumerate(items):
        g = start + (k * L) // n
        fillers.setdefault(g, []).extend(it if isinstance(it, list) else [it])


def vr(b, n=1, k='v'):
    return '%s%d' % (k, b) if n == 1 else '%s[%d:%d]' % (k, b, b + n - 1)
def ar(b, n=1): return vr(b, n, 'a')
def sr(b, n=1): return vr(b, n, 's')


def kernel_text(name, body, vgprs, accum, sgprs=96):
    t = ['.text', '.globl %s' % name, '.p2align 12', '.p2align 8', '.type %s,@function' % name, '%s:' % name]
    t += ['    ' + l if not l.endswith(':') else l for l in body]
    return t

def descriptor(name, vgprs, accum, sgprs=96):
    return ['.p2align 6', '.amdhsa_kernel %s' % name,
            '  .amdhsa_next_free_vgpr %d' % vgprs,
            '  .amdhsa_next_free_sgpr %d' % sgprs,
            '  .amdhsa_accum_offset %d' % accum,
            '  .amdhsa_group_segment_fixed_size 0',
            '  .amdhsa_kernarg_size 104',
            '  .amdhsa_user_sgpr_count 2',
            '  .amdhsa_user_sgpr_kernarg_segment_ptr 1',
            '  .amdhsa_system_sgpr_workgroup_id_x 1',
            '.end_amdhsa_kernel']


def cost(l):
    if isinstance(l, tuple):
        l = l[0]
    if l.startswith('@') or l.endswith(':'):
        return 0
    op = l.split()[0]
    if op in TRANS: return 8
    return 4

class Stream:
    def __init__(self):
        self.mf = []
        self.fill = {}
        self.load = {}
    def n(self): return len(self.mf)
    def add(self, l): self.mf.append(l)
    def at(self, g, lines, front=False):
        if not isinstance(lines, list): lines = [lines]
        cur = self.fill.setdefault(g, [])
        if front: self.fill[g] = lines + cur
        else: cur.extend(lines)
        self.load[g] = self.load.get(g, 0) + sum(cost(l) for l in lines)
    def flow(self, items, g0, cap=8, step=1, gmax=None):
        g = g0
        for it in items:
            if isinstance(it, tuple) and isinstance(it[0], int):
                e, it = it
                g = max(g, e)
            if not isinstance(it, list): it = [it]
            c = sum(cost(l) for l in it)
            while self.load.get(g, 0) + c > max(cap, c) and (gmax is None or g < gmax):
                g += step
            self.at(g, it)
        return g
    def lines(self):
        assert all(g < len(self.mf) for g in self.fill), ('filler past the end', max(self.fill), len(self.mf))
        return interleave(self.mf, self.fill)
```

```python
from asmlib import *
from fused import *

sK, sM, sN, sTI, sX, sXe, sCL, sEv, sRedo, sStage = range(64, 74)
sTri = [84, 86, 92, 94]
sCtL, sCtH, sRho = 91, 96, 97
vK, vV, vD1, vD2, vD3, vBig = 4, 5, 6, 7, 24, 25
CP = 8
QL = 32
SB = [64, 96]
PB = 128
CG = [144, 160]
O0, L0 = 176, 240
KF, QH, O1, L1, ONES, VF, QP = 0, 32, 64, 128, 136, 192, 224

class KA(K):
    def qreg(self, mode, q, ds):
        if q >= 2: return ar(QH + ((q - 2) * 4 + ds) * 4, 4)
        return vr(QL + (q * 4 + ds) * 4, 4) if mode == 'D' else ar(QP + (q * 4 + ds) * 4, 4)
    def creg(self, mode, q, kb):
        b = CG[1] if q >= 2 else CG[0] if mode == 'D' else CP
        return b + ((q & 1) * 2 + kb) * 4
    def oreg(self, q, db):
        off = ((db >> 1) * 2 + (q & 1)) * 8 + (db & 1) * 4
        return vr(O0 + off, 4) if q < 2 else ar(O1 + off, 4)
    def lreg(self, q):
        return vr(L0 + 4 * q, 4) if q < 2 else ar(L1 + 4 * (q - 2), 4)
    def qk(self, mode, u):
        out = []
        for m in range(32):
            ds, kb = m >> 3, (m >> 2) & 1
            q = (m & 3) if kb == 0 else 3 - (m & 3)
            d = vr(SB[u] + (q * 2 + kb) * 4, 4)
            out.append('%s %s, %s, %s, %s' % (MF, d, ar(KF + (kb * 4 + ds) * 4, 4), self.qreg(mode, q, ds), vr(self.creg(mode, q, kb), 4) if ds == 0 else d))
        return out
    def pv(self, zero=False, qs=(0, 1, 2, 3)):
        out = []
        for db in range(-1, 8):
            for q in (qs if db & 1 else reversed(qs)):
                d = self.lreg(q) if db < 0 else self.oreg(q, db)
                out.append('%s %s, %s, %s, %s' % (MF, d, ar(ONES if db < 0 else VF + db * 4, 4), vr(PB + 4 * q, 4), '0' if zero else d))
        return out
    def kread(self, u, kb, ds): return 'ds_read_b128 %s, v%d offset:%d' % (ar(KF + (kb * 4 + ds) * 4, 4), vK, ((2 * u + kb) * 4 + ds) * 1024)
    def vread(self, u, db): return 'ds_read_b128 %s, v%d offset:%d' % (ar(VF + db * 4, 4), vV, 16384 + (u * 8 + db) * 1024)
    def cvts(self, u): return ['v_cvt_pk_bf16_f32 v%d, v%d, v%d' % (PB + e, SB[u] + 2 * e, SB[u] + 2 * e + 1) for e in range(16)]
    def exps(self, u):
        o = []
        for kb, q in [(0, 0), (0, 1), (0, 2), (0, 3), (1, 3), (1, 2), (1, 1), (1, 0)]:
            r = SB[u] + (q * 2 + kb) * 4
            o += ['v_exp_f32 v%d, v%d' % (r + e, r + e) for e in range(4)]
        return o
    def tri(self, c):
        return ['v_cndmask_b32 v%d, v%d, v%d, s[%d:%d]' % (c + b + r, vBig, c + b + r, sTri[r], sTri[r] + 1) for b in (0, 12) for r in range(4)] + \
               ['v_mov_b32 v%d, v%d' % (c + 4 + r, vBig) for r in range(4)]
    def allm(self, c): return ['v_mov_b32 v%d, v%d' % (c + r, vBig) for r in range(16)]
    def hookD(self, tag):
        a, b, c = self.lab('hd' + tag), self.lab('hdr' + tag), self.lab('hda' + tag)
        self.ool.append([a + ':', 's_cmp_eq_u32 s%d, 0' % sStage, 's_cbranch_scc0 %s' % c] + self.tri(CG[0]) +
                        ['s_mov_b32 s%d, 1' % sStage, 's_mov_b32 s%d, 0' % sCL, 's_branch %s' % b,
                         c + ':'] + self.allm(CG[0]) + ['s_movk_i32 s%d, 1000' % sCL, 's_nop 0', 's_branch %s' % b])
        return ['s_sub_u32 s%d, s%d, 1' % (sCL, sCL), 's_cbranch_scc1 %s' % a, b + ':']
    def kv_dma(self, mode):
        def four(v): return ['buffer_load_dwordx4 v%d, %s, s%d offen offset:%d sc1 lds' % (v, s4(S_A), sK, k * 1024) for k in range(4)]
        it = ['s_add_u32 m0, s%d, 0x4000' % sM] + four(vD1)
        if mode == 'S': it += ['s_add_u32 m0, s%d, 0xc000' % sM] + four(vD3)
        it += ['s_xor_b32 s%d, s%d, 0x10000' % (sM, sM), 's_add_u32 s%d, s%d, %s' % (sK, sK, 's%d' % sTI if mode == 'D' else '0x10000'),
               's_mov_b32 m0, s%d' % sM] + four(vA[0])
        if mode == 'S': it += ['s_add_u32 m0, s%d, 0x8000' % sM] + four(vD2)
        return it

    def finalize(self, sC, bit):
        L = []
        if bit:
            L += ['v_max_f32 v%d, v%d, v%d' % (L0 + 1, L0, L0 + 4), 'v_add_f32 v%d, v%d, v%d' % (L0 + 2, L0, L0 + 4),
                  'v_cmp_gt_f32 vcc, 0x5f800000, v%d' % (L0 + 2), 's_cmp_eq_u64 vcc, -1', 's_cselect_b32 s3, 0, %d' % bit, 's_or_b32 s%d, s%d, s3' % (sRedo, sRedo)]
            L.pop(0)
        L += ['v_rcp_f32 v%d, v%d' % (L0, L0), 'v_rcp_f32 v%d, v%d' % (L0 + 4, L0 + 4), 's_mov_b32 s3, s%d' % sC]
        for ds in range(4):
            if ds == 2: L.append('s_add_u32 s3, s3, 0x2000')
            for q in range(2):
                b = O0 + (ds * 2 + q) * 8
                L += ['v_pk_mul_f32 v[%d:%d], v[%d:%d], v[%d:%d] op_sel_hi:[1,0]' % (b + 2 * e, b + 2 * e + 1, b + 2 * e, b + 2 * e + 1, L0 + 4 * q, L0 + 4 * q + 1) for e in range(4)]
                L += ['v_cvt_pk_bf16_f32 v%d, v%d, v%d' % (b + e, b + 2 * e, b + 2 * e + 1) for e in range(4)]
                L += [('buffer_store_dwordx4 v[%d:%d], v%d, %s, s3 offen offset:%d sc1' % (b, b + 3, vA[ds & 1], s4(S_ST), q * 1024), 'ctx')]
        return L
    def zero0(self): return ['v_mov_b64 v[%d:%d], 0' % (r, r + 1) for r in range(O0, L0 + 8, 2)]

    def body(self, mode, first=False):
        o = self.opt
        S = Stream()
        for l in self.qk(mode, 0): S.add(l)
        if not first:
            for l in self.pv(): S.add(l)
        b1 = S.n()
        for l in self.qk(mode, 1) + self.pv(zero=first): S.add(l)
        tag = ('f' if first else '') + mode
        for base, u in ((0, 1), (b1, 0)):
            for m in range(8):
                S.at(base + 4 * m + 3, self.kread(u, m & 1, m >> 1))
        BAR = 31 if first else o.get('abar', 39)
        tog = ['v_mov_b32 v%d, v%d' % (vV, vK), 'v_xor_b32 v%d, %s, v%d' % (vK, 's%d' % sX if mode == 'D' else '0x10000', vK)]
        e0 = self.exps(0)
        if first:
            S.flow(e0[:3], 28)
            S.at(31, e0[3:27] + tog + self.hookD(tag + '1') + ['s_waitcnt vmcnt(0) lgkmcnt(0)', 's_barrier'] + self.flag(3))
            e0 = e0[27:]
        else:
            S.at(BAR, ['s_waitcnt vmcnt(0) lgkmcnt(0)', 's_barrier'])
            S.at(b1 - 2, tog)
            if mode == 'D':
                S.at(-1, self.hookD(tag + '0'))
                S.at(b1 - 1, self.hookD(tag + '1'))
            else:
                S.at(b1 - 1, ['s_cmp_lg_u32 s%d, 0' % sEv, 's_cbranch_scc1 %s' % self.lab('hmid'), self.lab('hmidr') + ':'])
            c = self.cvts(1)
            vr_ = [self.vread(1, db) for db in range(8)]
            S.flow([x for k in range(8) for x in (vr_[k], c[2 * k], c[2 * k + 1])], 0)
        if not first:
            S.at(S.n() - 1, ['s_sub_u32 s%d, s%d, 1' % (sN, sN), 's_cbranch_scc0 %s' % self.lab('top' + mode)])
        g = S.flow(self.exps(1), b1 + 28)
        assert g < S.n(), g
        dm = self.kv_dma(mode)
        n0 = 0 if first else o.get('dma0', 6)
        g = BAR + 1
        for k in range(0, n0, 2):
            S.at(g, dm[k:k + 2]); g += o.get('dma0s', 3)
        ge = S.flow(e0, 32 if first else 28)
        vr_ = [self.vread(0, db) for db in range(8)]
        rest = dm[n0:]
        it = []
        while vr_ or rest:
            if rest: it.append(rest.pop(0))
            if rest: it.append(rest.pop(0))
            if vr_: it.append(vr_.pop(0))
        c = self.cvts(0)
        g = b1 + 30
        for l in reversed(c):
            while S.load.get(g, 0) + 4 > 8: g -= 1
            S.at(g, l, front=True)
        assert g > ge or first, (g, ge)
        gl = S.flow(it, b1, gmax=b1 + 30)
        if o.get('verbose'): print(tag, 'exp0 end', ge - b1, 'cvt start', g - b1, 'dma end', gl - b1, 'over', [(k, v) for k, v in sorted(S.load.items()) if v > 8])
        return S.lines()

    def attn_pro(self):
        L = ['v_add_u32 v%d, 0x4000, v%d' % (vD1, vA[0]), 'v_add_u32 v%d, 0x8000, v%d' % (vD2, vA[0]), 'v_add_u32 v%d, 0xc000, v%d' % (vD3, vA[0]),
             'v_mov_b32 v%d, v%d' % (vK, vA[0]), 'v_mov_b32 v%d, 0xf149f2ca' % vBig,
             'v_lshrrev_b32 v8, 4, v1', 'v_and_b32 v9, 15, v1', 'v_lshlrev_b32 v10, 8, v8', 'v_lshlrev_b32 v8, 2, v8', 'v_sub_u32 v8, v8, v9',
             'v_mov_b32 v9, 0x3f803f80']
        L += ['v_cmp_ge_i32 s[%d:%d], %d, v8' % (sTri[r], sTri[r] + 1, -r) for r in range(4)]
        L += ['v_accvgpr_write_b32 a%d, v9' % (ONES + e) for e in range(4)]
        L += ['s_lshl_b32 s3, s%d, 12' % sW, 's_add_u32 s%d, s3, 0x8000' % sK, 's_add_u32 s%d, s3, 0x10000' % sM,
              's_mov_b32 s%d, 0x8000' % sTI, 's_mov_b32 s%d, 0x10000' % sX,
              's_and_b32 s%d, s%d, 1' % (sXe, sW), 's_lshl_b32 s%d, s%d, 15' % (sXe, sXe), 's_add_u32 s%d, s%d, 0x10000' % (sXe, sXe),
              's_lshl_b32 s%d, s%d, 2' % (sCL, sI), 's_add_u32 s%d, s%d, s%d' % (sCL, sCL, sW),
              's_lshl_b32 s%d, s%d, 1' % (sN, sI), 's_mov_b32 s%d, 0' % sRedo, 's_mov_b32 s%d, 0' % sStage,
              's_sub_u32 s3, 16, s%d' % sI, 's_lshl_b32 s%d, s3, 16' % (S_A + 2)]
        L += ['s_lshr_b32 s3, s%d, 1' % sW, 's_lshl_b32 s3, s3, 5', 's_add_u32 s3, s3, s%d' % sH, 's_lshl_b32 s3, s3, 14',
              's_lshl_b32 s%d, s%d, 20' % (sCtL, sI), 's_sub_u32 s%d, 0x%x, s%d' % (sCtH, 15 << 20, sCtL),
              's_add_u32 s%d, s%d, s3' % (sCtL, sCtL), 's_add_u32 s%d, s%d, s3' % (sCtH, sCtH),
              's_and_b32 s3, s%d, 1' % sW, 's_lshl_b32 s3, s3, 11', 's_add_u32 s%d, s%d, s3' % (sCtL, sCtL),
              's_xor_b32 s3, s3, 0x800', 's_add_u32 s%d, s%d, s3' % (sCtH, sCtH)]
        L += srd_off(S_ST, pWS, WS_CTX, 16 << 20)
        L += [('@vmwait', 'dma19'), 's_waitcnt lgkmcnt(0)', 's_barrier']
        L += ['ds_read_b128 v[%d:%d], v10 offset:%d' % (96 + 4 * ds, 99 + 4 * ds, ds * 1024) for ds in range(4)]
        L += ['ds_read_b128 %s, v%d offset:%d' % (ar(QH + 4 * f, 4), vT0, f * 1024) for f in range(8)]
        L += ['v_xor_b32 v%d, 0x80008000, v%d' % (96 + e, 96 + e) for e in range(16)]
        L += ['ds_read_b128 %s, v%d offset:%d' % (ar(QP + 4 * f, 4), vT1, f * 1024) for f in range(8)]
        S = Stream()
        grp = [('D', 0), ('D', 1), ('D', 2), ('D', 3), ('S', 0), ('S', 1)]
        for half in (grp[:2], grp[2:4], grp[4:]):
            for ds in range(4):
                for mode, q in half:
                    d = vr(self.creg(mode, q, 0), 4)
                    S.add('%s %s, %s, %s, %s' % (MF, d, vr(96 + 4 * ds, 4), self.qreg(mode, q, ds), '0' if ds == 0 else d))
        for m in range(8): S.at(m, self.kread(0, m & 1, m >> 1))
        for n, (mode, q) in enumerate(grp):
            c = self.creg(mode, q, 0)
            S.at(min(23, (n >> 1) * 8 + 12 + 2 * (n & 1)), ['v_mov_b64 v[%d:%d], v[%d:%d]' % (c + 4 + e, c + 5 + e, c + e, c + 1 + e) for e in (0, 2)])
        L += S.lines()
        L += self.hookD('p')
        return L

    def attention(self, st, stats, lazy):
        out = []
        def run(lines, st):
            o, st = process(lines, st, stats=stats, lazy=lazy)
            return o, st
        def loop(lines, st):
            o1, st1 = process(lines, st, lazy=lazy); o2, st2 = run(lines, st1)
            assert st1.sig() == st2.sig()
            assert process(o2, st, pad=False)[0] == o2 and process(o2, st2, pad=False)[0] == o2
            return o2, st2
        o, st = run(self.attn_pro() + self.stamp(16) + self.body('D', True), st); out += o
        ent = ['s_sub_u32 s%d, s%d, 1' % (sN, sN), 's_cbranch_scc1 %s' % self.lab('postD')]
        o, st = run(ent, st); out += o
        bd = [self.lab('topD') + ':'] + self.body('D')
        o2, st = loop(bd, st); out += o2
        post = [self.lab('postD') + ':', 's_cmp_eq_u32 s%d, 0x8000' % sTI, 's_mov_b32 s%d, 0x10000' % sTI, 's_mov_b32 s%d, s%d' % (sX, sXe), 's_mov_b32 s%d, 0' % sN,
                's_cbranch_scc1 %s' % self.lab('topD')]
        post += self.stamp(17)
        post += ['s_mov_b32 s%d, 1' % sEv, 's_mov_b32 s%d, 0' % sStage, 's_lshl_b32 s3, s%d, 1' % sI, 's_sub_u32 s%d, 13, s3' % sN, 's_cbranch_scc1 %s' % self.lab('postS')]
        o, st = run(post, st); out += o
        bs = [self.lab('topS') + ':'] + self.body('S')
        o2, st = loop(bs, st); out += o2
        post = [self.lab('postS') + ':', 's_cmp_eq_u32 s%d, 0' % sStage, 's_cbranch_scc1 %s' % self.lab('hs0')]
        o, st = run(post, st); out += o
        lb = self.lab
        self.ool.append([lb('hs0') + ':', 's_mov_b32 s%d, 1' % sStage, 's_mov_b32 s%d, 0' % sN, 's_or_b32 s%d, s%d, 2' % (sEv, sEv),
                         's_cmp_eq_u32 s%d, 2' % sW, 's_cbranch_scc1 %s' % lb('topS'),
                         's_cmp_eq_u32 s%d, 1' % sW, 's_cbranch_scc1 %s' % lb('hs0a'),
                         's_cmp_eq_u32 s%d, 3' % sW, 's_cbranch_scc1 %s' % lb('hs0b')] + self.tri(CG[1]) + ['s_nop 0', 's_branch %s' % lb('topS'),
                         lb('hs0a') + ':'] + self.allm(CG[1]) + self.allm(CP) + ['s_nop 0', 's_branch %s' % lb('topS'),
                         lb('hs0b') + ':'] + self.tri(CP) + ['s_nop 0', 's_branch %s' % lb('topS')])
        self.ool.append([lb('hmid') + ':', 's_bitcmp1_b32 s%d, 0' % sEv, 's_cbranch_scc0 %s' % lb('hm1'), 's_nop 7'] + self.finalize(sCtL, 1) + self.zero0() +
                        [lb('hm1') + ':', 's_bitcmp1_b32 s%d, 1' % sEv, 's_mov_b32 s%d, 0' % sEv, 's_cbranch_scc0 %s' % lb('hmidr'),
                         's_cmp_eq_u32 s%d, 0' % sW, 's_cbranch_scc1 %s' % lb('hm2'),
                         's_cmp_eq_u32 s%d, 3' % sW, 's_cbranch_scc0 %s' % lb('hmidr')] + self.tri(CG[1]) + self.allm(CP) + ['s_nop 0', 's_branch %s' % lb('hmidr'),
                         lb('hm2') + ':'] + self.allm(CG[1]) + self.tri(CP) + ['s_nop 0', 's_branch %s' % lb('hmidr')])
        o, st = run(self.stamp(18) + self.attn_tail(), st); out += o
        return out, st

    def attn_tail(self):
        L = [self.vread(1, db) for db in range(8)]
        c = self.cvts(1)
        L += c[8:]
        S = Stream()
        for l in self.pv(qs=(2, 3)) + self.pv(qs=(0, 1)): S.add(l)
        ad = ['s_lshl_b32 s%d, s%d, 15' % (sT0, sW), 's_add_u32 s%d, s%d, 0x10000' % (sT0, sT0), 's_lshl_b32 s%d, s%d, 14' % (sT1, sW), 's_add_u32 s%d, s%d, 0x18000' % (sT1, sT1),
              ['s_cmp_lt_u32 s%d, 2' % sW, 's_cselect_b32 s%d, s%d, s%d' % (sT0, sT0, sT1), 's_cselect_b32 s%d, 1, 0' % sT1], 's_lshl_b32 s%d, 0x4000, s%d' % (sT1, sT1),
              'v_add_u32 v%d, s%d, v%d' % (vT0, sT0, vA[0]), 'v_xor_b32 v%d, s%d, v%d' % (vT1, sT1, vT0),
              's_lshl_b32 s%d, s%d, 12' % (sT0, sW), 's_add_u32 s%d, s%d, 0x14000' % (sT0, sT0), 'v_add_u32 v%d, s%d, v%d' % (vK, sT0, vA[0]), 'v_xor_b32 v%d, 0x1000, v%d' % (vV, vK),
              's_lshl_b32 s%d, s%d, 13' % (sT0, sW), 'v_lshlrev_b32 v%d, 7, v1' % vPA, 'v_add_u32 v%d, s%d, v%d' % (vPA, sT0, vPA)] + self.poll_issue()
        S.flow(c[:8] + ad, 0)
        wr = ['ds_write_b128 v%d, %s offset:%d' % (vT0, ar(O1 + 4 * t, 4), t * 1024) for t in range(16)]
        S.flow(wr, 21, cap=4, gmax=35)
        L += S.lines()
        L += ['s_waitcnt vmcnt(0)'] + ['ds_write_b128 v%d, %s offset:%d' % (vK, ar(L1 + 4 * q, 4), q * 1024) for q in range(2)]
        L += self.poll_check(3) + ['s_waitcnt lgkmcnt(0)', 's_barrier']
        L += ['ds_read_b32 v%d, v%d offset:%d' % (PB + q, vV, q * 1024) for q in range(2)]
        L += ['ds_read_b128 v[%d:%d], v%d offset:%d' % (64 + 4 * t, 67 + 4 * t, vT1, t * 1024) for t in range(16)]
        L += ['v_add_f32 v%d, v%d, v%d' % (L0 + 4 * q, L0 + 4 * q, PB + q) for q in range(2)]
        L += ['v_pk_add_f32 v[%d:%d], v[%d:%d], v[%d:%d]' % (O0 + e, O0 + e + 1, O0 + e, O0 + e + 1, 64 + e, 65 + e) for e in range(0, 64, 2)]
        L += self.finalize(sCtH, 2)
        L += ['s_cmp_lg_u32 s%d, 0' % sRedo, 's_cbranch_scc1 %s' % self.lab('redo'), self.lab('redor') + ':']
        self.slow()
        return L

    def slow(self):
        lb = self.lab
        C = CG[0]
        sO, sC, sJ = sK, sM, sN
        B = [lb('redo') + ':', 's_waitcnt vmcnt(0)', 's_bitcmp1_b32 s%d, 0' % sRedo, 's_cbranch_scc0 %s' % lb('rd2'),
             's_andn2_b32 s%d, s%d, 1' % (sRedo, sRedo), 's_lshl_b32 s%d, s%d, 2' % (sRho, sI), 's_add_u32 s%d, s%d, s%d' % (sRho, sRho, sW),
             's_mov_b32 s%d, s%d' % (sC, sCtL), 's_branch %s' % lb('sl0'),
             lb('rd2') + ':', 's_bitcmp1_b32 s%d, 1' % sRedo, 's_cbranch_scc0 %s' % lb('redor'),
             's_mov_b32 s%d, 0' % sRedo, 's_lshl_b32 s%d, s%d, 2' % (sRho, sI), 's_sub_u32 s%d, 60, s%d' % (sRho, sRho), 's_xor_b32 s3, s%d, 1' % sW,
             's_add_u32 s%d, s%d, s3' % (sRho, sRho), 's_mov_b32 s%d, s%d' % (sC, sCtH)]
        B += ['v_accvgpr_read_b32 v%d, a%d' % (QL + e, QP + e) for e in range(32)]
        B += [lb('sl0') + ':']
        def head(name):
            return ['s_mov_b32 s%d, 0' % sJ, lb(name) + ':', 's_lshr_b32 s%d, s%d, 1' % (sO, sJ), 's_lshl_b32 s%d, s%d, 15' % (sO, sO), 's_and_b32 s3, s%d, 1' % sJ,
                    's_lshl_b32 s3, s3, 13', 's_add_u32 s%d, s%d, s3' % (sO, sO)] + \
                   ['buffer_load_dwordx4 %s, v%d, %s, s%d offen offset:%d sc1' % (ar(KF + 4 * f, 4), vA[f >> 2], s4(S_A), sO, (f & 3) * 1024) for f in range(8)]
        def mask(name):
            return ['s_cmp_eq_u32 s%d, s%d' % (sJ, sRho), 's_cbranch_scc0 %s' % lb(name)] + self.tri(C) + [lb(name) + ':', 's_nop 1']
        qk = [l for l in self.qk('D', 0) if l.split(',')[2].strip().startswith('v')]
        assert len(qk) == 16
        def tail(name):
            return ['s_add_u32 s%d, s%d, 1' % (sJ, sJ), 's_cmp_le_u32 s%d, s%d' % (sJ, sRho), 's_nop 7', 's_cbranch_scc1 %s' % lb(name)]
        M = PB
        B += ['v_mov_b32 v%d, 0' % (C + e) for e in range(16)] + ['v_mov_b32 v%d, v%d' % (M + q, vBig) for q in range(2)]
        B += head('sl1') + mask('sl1m') + qk
        for q in range(2):
            B += ['v_max3_f32 v%d, v%d, v%d, v%d' % (M + q, M + q, SB[0] + 8 * q + 2 * e, SB[0] + 8 * q + 2 * e + 1) for e in range(4)]
        B += tail('sl1')
        for q in range(2):
            for sw in ('16', '32'):
                B += ['v_mov_b32 v%d, v%d' % (M + 2, M + q), 'v_permlane%s_swap_b32 v%d, v%d' % (sw, M + q, M + 2), 'v_max_f32 v%d, v%d, v%d' % (M + q, M + q, M + 2)]
            B += ['v_sub_f32 v%d, 0, v%d' % (C + 8 * q + e, M + q) for e in range(8)]
        B += self.zero0()
        B += head('sl2') + ['s_add_u32 s%d, s%d, 0x4000' % (sO, sO)]
        B += ['buffer_load_dwordx4 %s, v%d, %s, s%d offen offset:%d sc1' % (ar(VF + 4 * f, 4), vA[f >> 2], s4(S_A), sO, (f & 3) * 1024) for f in range(8)]
        B += mask('sl2m') + qk
        B += ['v_exp_f32 v%d, v%d' % (SB[0] + e, SB[0] + e) for e in range(16)] + self.cvts(0)[:8] + self.pv(qs=(0, 1))
        B += tail('sl2')
        B += self.finalize(sC, 0) + ['s_branch %s' % lb('redo')]
        self.ool.append(B)

    def phase4(self):
        o = self.opt
        R = o.get('ring', 6)
        sRB, sCB, sB, sWo = sK, sM, sN, sTI
        S_H, S_C, S_WD, S_WO = S_B0, S_B1, S_B2, S_W
        accF, accS = 32, 112
        XR = 192
        L = ['s_and_b32 s%d, s2, 6' % sRB, 's_lshl_b32 s%d, s%d, 2' % (sRB, sRB), 's_bfe_u32 s3, s2, 0x30003', 's_add_u32 s%d, s%d, s3' % (sRB, sRB),
             's_and_b32 s%d, s2, 1' % sCB, 's_lshl_b32 s%d, s%d, 2' % (sCB, sCB), 's_lshr_b32 s3, s2, 6', 's_add_u32 s%d, s%d, s3' % (sCB, sCB),
             's_mul_i32 s%d, s%d, %d' % (sT0, sRB, 54 * 4096), 's_add_u32 s%d, s%d, 0x%x' % (sT0, sT0, WS_H),
             's_lshl_b32 s%d, s%d, 19' % (sT1, sRB), 's_add_u32 s%d, s%d, 0x%x' % (sT1, sT1, WS_CTX)]
        L += srd_off(S_H, pWS, 's%d' % sT0, 54 * 4096) + srd_off(S_WD, pWS, WS_W + (5 << 20), 54 * 40960)
        L += ['s_lshl_b32 s%d, s%d, 12' % (sB, sW), 's_mul_i32 s%d, s%d, 8' % (sWo, sW), 's_add_u32 s%d, s%d, s%d' % (sWo, sWo, sCB), 's_mul_i32 s%d, s%d, 5120' % (sWo, sWo)]
        NK = 46
        def loads(k):
            base = (k % R) * 36
            sb, sw = (S_H, S_WD) if k < 14 else (S_C, S_WO)
            it = []
            if k == 14: it += ['s_sub_u32 s%d, s%d, %d' % (sB, sB, 14 * 16384), 's_sub_u32 s%d, s%d, %d' % (sWo, sWo, 14 * 163840)]
            it += ['buffer_load_dwordx4 %s, v%d, %s, s%d offen offset:%d sc1' % (ar(base + 16 + 4 * n, 4), vA[n >> 2], s4(sw), sWo, (n & 3) * 1024) for n in range(5)]
            if k == 14: it.append(self.stamp(20) + self.poll_check(5) + self.stamp(21))
            it += ['buffer_load_dwordx4 %s, v%d, %s, s%d offen offset:%d sc1' % (ar(base + 4 * j, 4), vA[0], s4(sb), sB, j * 1024) for j in range(4)]
            it += ['s_add_u32 s%d, s%d, 16384' % (sB, sB), 's_add_u32 s%d, s%d, 163840' % (sWo, sWo)]
            return it
        for k in range(R - 1): L += flat(loads(k))
        L += srd_off(S_C, pWS, 's%d' % sT1, 128 * 4096) + srd_off(S_WO, pWS, WS_W, 128 * 40960)
        L += ['s_lshr_b32 s%d, s%d, 1' % (sT0, sRB), 's_sub_u32 s%d, 15, s%d' % (sT1, sT0), 's_min_u32 s%d, s%d, s%d' % (sT0, sT0, sT1), 's_lshl_b32 s%d, s%d, 12' % (sT0, sT0),
              'v_and_b32 v%d, 31, v1' % vPA, 'v_lshlrev_b32 v%d, 7, v%d' % (vPA, vPA), 'v_add_u32 v%d, s%d, v%d' % (vPA, sT0, vPA)]
        L += [('@vmwait', 'ctx'), 's_barrier'] + self.flag(5) + self.stamp(19)
        S = Stream()
        for k in range(NK):
            base = (k % R) * 36
            acc = accF if k < 14 else accS
            for n in range(5):
                for j in (range(4) if n % 2 == 0 else reversed(range(4))):
                    d = vr(acc + (j * 5 + n) * 4, 4)
                    S.add('%s %s, %s, %s, %s' % (MF, d, ar(base + 16 + 4 * n, 4), ar(base + 4 * j, 4), '0' if k in (0, 14) else d))
        for k in range(NK):
            if k + R - 1 < NK:
                g = k * 20
                for x in loads(k + R - 1):
                    S.at(g, x); g += 1 if isinstance(x, str) and x.startswith('s_') else 2
                    g = min(g, k * 20 + 19)
        S.at((14 - R) * 20 + 1, self.poll_issue())
        vO = 4
        xa = ['s_lshl_b32 s%d, s%d, 2' % (sT0, sRB), 's_add_u32 s%d, s%d, s%d' % (sT0, sT0, sW), 's_mul_i32 s%d, s%d, %d' % (sT0, sT0, 16 * 1280),
              's_mul_i32 s%d, s%d, 160' % (sT1, sCB), 's_add_u32 s%d, s%d, s%d' % (sT0, sT0, sT1),
              'v_and_b32 v%d, 15, v1' % vO, 'v_mul_u32_u24 v%d, 1280, v%d' % (vO, vO), 'v_lshrrev_b32 v5, 4, v1', 'v_lshl_add_u32 v%d, v5, 3, v%d' % (vO, vO),
              'v_add_u32 v%d, s%d, v%d' % (vO, sT0, vO)] + self.keep_scc(srd(S_X, pX, pX + 1, 2048 * 1280) + srd(S_ST, pOUT, pOUT + 1, 2048 * 1280))
        xa += ['buffer_load_dwordx2 v[%d:%d], v%d, %s, 0 offen offset:%d' % (XR + 2 * n, XR + 2 * n + 1, vO, s4(S_X), n * 32) for n in range(5)]
        xa += ['s_mul_i32 s%d, s%d, 10240' % (sT0, sW), 'v_add_u32 v5, s%d, v%d' % (sT0, vA[0]), 'v_add_u32 v6, 0x%x, v5' % 81920,
               's_lshl_b32 s%d, s%d, 2' % (sT0, sT0), 'v_add_u32 v7, s%d, v%d' % (sT0, vA[0])]
        g = S.flow(xa, (NK - R + 1) * 20)
        wr = lambda acc, sel: ['ds_write_b128 v%d, v[%d:%d] offset:%d' % (5 + (j >> 1), acc + (j * 5 + n) * 4, acc + (j * 5 + n) * 4 + 3, (j & 1) * 40960 + (sel * 5 + n) * 1024)
                               for j in range(4) for n in range(5)]
        S.flow(wr(accF, 0), g + 1, cap=4)
        L += S.lines() + self.stamp(22)
        L += wr(accS, 1) + ['s_waitcnt lgkmcnt(0)', 's_barrier']
        for t in range(10):
            L += ['ds_read_b128 v[%d:%d], v7 offset:%d' % (32 + (t * 4 + ww) * 4, 35 + (t * 4 + ww) * 4, ww * 10240 + t * 1024) for ww in range(4)]
        L += ['s_mov_b32 s3, 0xbfb8aa3b']
        for t in range(10):
            b = 32 + t * 16
            for x, y in ((0, 4), (8, 12), (0, 8)):
                L += ['v_pk_add_f32 v[%d:%d], v[%d:%d], v[%d:%d]' % (b + x + e, b + x + e + 1, b + x + e, b + x + e + 1, b + y + e, b + y + e + 1) for e in (0, 2)]
        for n in range(5):
            f, s, x = 32 + n * 16, 112 + n * 16, XR + 2 * n
            L += ['v_mul_f32 v%d, s3, v%d' % (f + 4 + e, f + e) for e in range(4)]
            L += ['v_exp_f32 v%d, v%d' % (f + 4 + e, f + 4 + e) for e in range(4)]
            L += ['v_lshlrev_b32 v%d, 16, v%d' % (f + 8 + 2 * e, x + e) for e in range(2)] + ['v_and_b32 v%d, s%d, v%d' % (f + 9 + 2 * e, sMask, x + e) for e in range(2)]
            L += ['v_add_f32 v%d, 1.0, v%d' % (f + 4 + e, f + 4 + e) for e in range(4)]
            L += ['v_rcp_f32 v%d, v%d' % (f + 4 + e, f + 4 + e) for e in range(4)]
            L += ['v_mul_f32 v%d, v%d, v%d' % (f + e, f + e, s + e) for e in range(4)]
            L += ['v_fma_f32 v%d, v%d, v%d, v%d' % (f + e, f + e, f + 4 + e, f + 8 + e) for e in range(4)]
            L += ['v_cvt_pk_bf16_f32 v%d, v%d, v%d' % (f + e, f + 2 * e, f + 2 * e + 1) for e in range(2)]
            L += ['buffer_store_dwordx2 v[%d:%d], v%d, %s, 0 offen offset:%d' % (f, f + 1, vO, s4(S_ST), n * 32)]
        return L

    def build(self, stats=None):
        o = self.opt
        lazy = o.get('lazy', 8)
        L = self.prologue()
        pre, S = self.gemms()
        L += [('@vmwait', 'dma0'), 's_barrier'] + self.stamp(1) + pre
        L += S.lines()
        L += self.stamp(3)
        L += self.p2_epilogue()
        L += self.stamp(4)
        out, st = process(L, stats=stats, lazy=lazy)
        oa, st = self.attention(st, stats, lazy)
        out += oa
        L = self.phase4() + self.epoch_out()
        if self.SO: L += ['s_waitcnt vmcnt(0)'] + self.stamp(13) + self.stamp(15, True) + self.stamps_out()
        L += ['s_endpgm']
        out += process(L, st, stats=stats, lazy=lazy)[0]
        for blk in self.ool:
            out += process(blk, stats=stats)[0]
        out += [self.lab('end') + ':']
        return out
```

```python
import sys, importlib
from asmlib import *

HEADER = open('recurrent_scan__compressed_kv_cla__geglu_ffn__prompt.s.ref').read().split('; Override')[0]

def make(kernels, path):
    t = HEADER.rstrip('\n').split('\n')
    for (name, lines, vg, ac, grid, block, lds) in kernels:
        t.append('; @launch kernel=%s grid=(%d,1,1) block=(%d,1,1) lds=%d' % (name, grid, block, lds))
    t.append('.amdgcn_target "amdgcn-amd-amdhsa--gfx950"')
    seen = set()
    for (name, lines, vg, ac, grid, block, lds) in kernels:
        if name in seen: continue
        seen.add(name)
        t += kernel_text(name, lines, vg, ac)
    t.append('.section .rodata,"a"')
    seen = set()
    for (name, lines, vg, ac, grid, block, lds) in kernels:
        if name in seen: continue
        seen.add(name)
        t += descriptor(name, vg, ac, 102)
    open(path, 'w').write('\n'.join(t) + '\n')
```

```python
from asmlib import *
from k1 import srd, half_reduce, layernorm

MF = 'v_mfma_f32_16x16x32_bf16'
MF32 = 'v_mfma_f32_32x32x16_bf16'
WS_KV, WS_XN, WS_H, WS_CTX, WS_W, WS_Q, WS_DBG = 0, 32 << 20, 36 << 20, 44 << 20, 60 << 20, 72 << 20, 128 << 20
WS_FL = 35 << 20

S_A, S_B0, S_B1, S_B2, S_ST, S_FL, S_X = 4, 8, 12, 16, 20, 24, 28
pX, pC, pWQ, pUK, pUV, pWO, pBX, pWG, pWU, pWD, pOUT, pDBG, pWS = [32 + 2 * i for i in range(13)]
sW, sH, sI, sMask, sMB, sMA = 58, 59, 60, 61, 62, 63
sAo = [64, 65, 66, 67]
sBo = [68, 69, 70, 71]
sGo = [72, 73]
sFB, sT0, sT1, sT2, sSO = 74, 75, 76, 77, 78
sSpin = 79
S_W = 80
sStamp = 98
sRot, sInc, sIncB, sIncG, sRot2 = 84, 85, 86, 87, 88
sEp, sBase = 89, 90
vA = [2, 3]; vB = [4, 5]; vG = [6, 7]
vRA1 = [8, 9]; vRA2 = [10, 11]
vRB = list(range(12, 20)); vRG = list(range(20, 24))
vSTK, vSTV, vFL, vPA, vPR, vT0, vT1, vSTAMP = 24, 25, 26, 27, 28, 29, 30, 31
vBASE = 0

def s4(b): return 's[%d:%d]' % (b, b + 3)

def srd_off(d, p, off, nrec):
    o = ['s_add_u32 s%d, s%d, %s' % (d, p, off if isinstance(off, str) else '0x%x' % off), 's_addc_u32 s%d, s%d, 0' % (d + 1, p + 1)]
    o += ['s_mov_b32 s%d, %s' % (d + 2, nrec if isinstance(nrec, str) else '0x%x' % nrec), 's_mov_b32 s%d, 0x00020000' % (d + 3)]
    return o

def flat(x):
    o = []
    for y in x:
        if isinstance(y, list): o += flat(y)
        else: o.append(y)
    return o

class K:
    def __init__(self, name, opt):
        self.name = name
        self.opt = opt
        self.SO = opt.get('stamps', False)
        self.nlab = 0
        self.ool = []
    def lab(self, s): return '%s_%s' % (self.name, s)
    def stamp(self, i, real=False):
        if not self.SO: return []
        return ['%s s[%d:%d]' % ('s_memrealtime' if real else 's_memtime', sStamp, sStamp + 1), 's_waitcnt lgkmcnt(0)',
                'v_writelane_b32 v%d, s%d, %d' % (vSTAMP, sStamp, i)]
    def stamps_out(self):
        if not self.SO: return []
        return srd_off(S_X, pWS, WS_DBG, 0x40000) + [
            's_lshl_b32 s3, s2, 2', 's_add_u32 s3, s3, s%d' % sW, 's_lshl_b32 s3, s3, 8',
            'v_lshlrev_b32 v2, 2, v1', 'v_add_u32 v2, s3, v2',
            'buffer_store_dword v%d, v2, %s, 0 offen' % (vSTAMP, s4(S_X))]
    def flag(self, val):
        return ['v_add_u32 v%d, %d, v%d' % (vT0, val, vBASE), 'buffer_store_dword v%d, v%d, %s, 0 offen sc1' % (vT0, vFL, s4(S_FL))]
    def poll_issue(self):
        return ['buffer_load_dword v%d, v%d, %s, 0 offen sc1' % (vPR, vPA, s4(S_FL))]
    def poll_check(self, need):
        self.nlab += 1
        a, b = self.lab('pl%d' % self.nlab), self.lab('pd%d' % self.nlab)
        chk = ['v_sub_u32 v%d, v%d, v%d' % (vPR, vPR, vBASE), 'v_subrev_u32 v%d, %d, v%d' % (vPR, need, vPR), 'v_cmp_ge_u32 vcc, %d, v%d' % (5 - need, vPR)]
        self.ool.append([a + ':', 's_sleep 2'] + self.poll_issue() + ['s_waitcnt vmcnt(0)'] + chk +
                ['s_add_u32 s%d, s%d, 1' % (sSpin, sSpin), 's_cmp_eq_u64 vcc, -1', 's_cbranch_scc1 %s' % b,
                's_cmp_lt_u32 s%d, 0x8000' % sSpin, 's_cbranch_scc1 %s' % a, 's_branch %s' % b])
        return chk + ['s_mov_b32 s%d, 0' % sSpin, 's_cmp_eq_u64 vcc, -1', 's_cbranch_scc0 %s' % a, b + ':']
    def epoch_out(self):
        return ['s_add_u32 s%d, s%d, 1' % (sEp, sEp), 'v_mov_b32 v%d, s%d' % (vT0, sEp), 'v_add_u32 v%d, 0x8000, v%d' % (vT1, vFL),
                'buffer_store_dword v%d, v%d, %s, 0 offen sc1' % (vT0, vT1, s4(S_FL))]

    def prologue(self):
        L = ['s_cmp_lt_u32 s2, 256', 's_cbranch_scc1 %s' % self.lab('go'), 's_endpgm', self.lab('go') + ':']
        L += ['s_load_dwordx16 s[32:47], s[0:1], 0', 's_load_dwordx8 s[48:55], s[0:1], 64', 's_load_dwordx2 s[56:57], s[0:1], 96']
        L += ['v_and_b32 v1, 63, v0', 'v_lshrrev_b32 v%d, 6, v0' % vT0, 'v_mov_b32 v%d, 0' % vSTAMP,
              'v_readfirstlane_b32 s%d, v%d' % (sW, vT0)]
        L += ['s_and_b32 s%d, s2, 7' % sT0, 's_bfe_u32 s%d, s2, 0x20003' % sT1, 's_lshr_b32 s%d, s2, 5' % sI,
              's_lshl_b32 s%d, s%d, 2' % (sH, sT0), 's_add_u32 s%d, s%d, s%d' % (sH, sH, sT1)]
        L += ['s_mul_i32 s%d, s%d, 3' % (sFB, sT0), 's_add_u32 s%d, s%d, s%d' % (sFB, sFB, sT1),
              's_mul_i32 s%d, s%d, 3' % (sT2, sI), 's_sub_u32 s%d, s%d, s%d' % (sT2, sT0, sT2), 's_and_b32 s%d, s%d, 7' % (sT2, sT2),
              's_add_u32 s%d, s%d, 24' % (sT2, sT2), 's_cmp_eq_u32 s%d, 3' % sT1, 's_cselect_b32 s%d, s%d, s%d' % (sFB, sT2, sFB)]
        L += ['s_lshl_b32 s%d, s%d, 1' % (sRot2, sT1), 's_add_u32 s%d, s%d, s%d' % (sRot2, sRot2, sI)]
        if self.opt.get('norot'): L += ['s_mov_b32 s%d, 0' % sRot2]
        L += ['s_and_b32 s%d, s%d, 7' % (sRot, sRot2), 's_sub_u32 s%d, s%d, 10' % (sInc, sRot2), 's_cselect_b32 s%d, s%d, s%d' % (sRot2, sRot2, sInc)]
        if self.opt.get('rot2') == 0: L += ['s_mov_b32 s%d, 0' % sRot2]
        if self.opt.get('rot2') == 'i': L += ['s_mov_b32 s%d, s%d' % (sRot2, sI)]
        if self.opt.get('rot2') == 'x': L += ['s_mov_b32 s%d, s%d' % (sRot2, sT0)]
        L += ['s_mov_b32 s%d, 0xffff0000' % sMask,
              's_lshl_b32 s%d, s%d, 12' % (sMB, sW), 's_lshl_b32 s%d, s%d, 13' % (sMA, sW), 's_add_u32 s%d, s%d, 0x10000' % (sMA, sMA)]
        L += ['s_lshl_b32 s%d, s%d, 2' % (sT0, sI), 's_add_u32 s%d, s%d, s%d' % (sT0, sT0, sW), 's_lshl_b32 s%d, s%d, 16' % (sAo[0], sT0)]
        for j in range(1, 4):
            L.append('s_add_u32 s%d, s%d, %d' % (sAo[j], sAo[0], j * 16384 - (j & 1) * 2048))
        L += ['s_lshl_b32 s%d, s%d, 17' % (sBo[0], sW), 's_lshl_b32 s%d, s%d, 8' % (sT1, sH), 's_add_u32 s%d, s%d, s%d' % (sBo[0], sBo[0], sT1)]
        for j in range(1, 4):
            L.append('s_add_u32 s%d, s%d, %d' % (sBo[j], sBo[0], j * 32768 - j * 1024))
        L += self.a_dma_addr(1024, sRot)
        t0, t1 = vT0, vT1
        L += ['v_lshrrev_b32 v%d, 4, v1' % t0, 'v_and_b32 v%d, 15, v1' % t1,
              'v_lshlrev_b32 v%d, 1, v%d' % (vB[1], t0), 'v_xor_b32 v%d, v%d, v%d' % (t1, t1, vB[1]),
              'v_lshl_add_u32 v%d, s%d, 6, v%d' % (t0, sRot, t0),
              'v_lshlrev_b32 v%d, 13, v%d' % (t0, t0), 'v_lshl_add_u32 v%d, v%d, 4, v%d' % (vB[0], t1, t0),
              'v_xor_b32 v%d, 0x80, v%d' % (vB[1], vB[0])]
        vLN = 40
        L += ['s_lshl_b32 s%d, s2, 2' % sT2, 's_add_u32 s%d, s%d, s%d' % (sT2, sT2, sW),
              's_lshl_b32 s%d, s%d, 1' % (sT1, sT2),
              'v_lshrrev_b32 v%d, 5, v1' % t0, 'v_add_u32 v%d, s%d, v%d' % (t0, sT1, t0),
              's_movk_i32 s%d, 1280' % sT1, 'v_mul_lo_u32 v%d, v%d, s%d' % (t0, t0, sT1), 'v_and_b32 v%d, 31, v1' % t1,
              'v_lshl_add_u32 v%d, v%d, 4, v%d' % (vLN, t1, t0), 'v_lshl_add_u32 v%d, v%d, 3, v%d' % (vLN + 1, t1, t0)]
        L += ['s_waitcnt lgkmcnt(0)']
        L += srd(S_B0, pUK, pUK + 1, 512 * 8192) + srd(S_B1, pUV, pUV + 1, 512 * 8192) + srd(S_A, pC, pC + 1, 2048 * 1024)
        L += srd(S_X, pX, pX + 1, 2048 * 1280)
        LNL, LNX, LNT = 44, 56, 80
        d0 = self.dma1(0)
        L += flat(d0)
        L += srd_off(S_FL, pWS, WS_FL, 32768 + 4) + ['s_buffer_load_dword s%d, %s, 0x8000' % (sEp, s4(S_FL))]
        L += ['buffer_load_dwordx4 v[%d:%d], v%d, %s, 0 offen' % (LNL, LNL + 3, vLN, s4(S_X)),
              'buffer_load_dwordx4 v[%d:%d], v%d, %s, 0 offen offset:512' % (LNL + 4, LNL + 7, vLN, s4(S_X)),
              'buffer_load_dwordx2 v[%d:%d], v%d, %s, 0 offen offset:1024' % (LNL + 8, LNL + 9, vLN + 1, s4(S_X))]
        L += flat(self.dma1(1))
        L += self.stamp(0) + self.stamp(14, True)
        if self.opt.get('codepf', True):
            L += ['s_getpc_b64 s[%d:%d]' % (S_W, S_W + 1), self.lab('pc') + ':', 'v_lshlrev_b32 v34, 7, v0']
            for i in range(self.opt.get('codepf_n', 2)):
                L += ['v_min_u32 v32, %s-%s-4, v34' % (self.lab('end'), self.lab('pc')), 'v_mov_b32 v33, s%d' % (S_W + 1),
                      'v_add_co_u32 v32, vcc, s%d, v32' % S_W, 'v_addc_co_u32 v33, vcc, 0, v33, vcc',
                      'global_load_dword a%d, v[32:33], off' % (112 + i), 'v_add_u32 v34, 0x8000, v34']
        L += ['s_cmp_lt_u32 s%d, 640' % sT2,
              's_cselect_b32 s%d, s%d, s%d' % (S_W, pWO, pWD), 's_cselect_b32 s%d, s%d, s%d' % (S_W + 1, pWO + 1, pWD + 1),
              's_mov_b32 s%d, 0x%x' % (S_W + 2, 1728 * 1280), 's_cmov_b32 s%d, 0x%x' % (S_W + 2, 4096 * 1280),
              's_cselect_b32 s%d, 0, 640' % sT0, 's_mov_b32 s%d, 0x00020000' % (S_W + 3)]
        L += ['s_sub_u32 s%d, s%d, s%d' % (sT0, sT2, sT0),
              's_mul_i32 s%d, s%d, 52429' % (sT1, sT0), 's_lshr_b32 s%d, s%d, 18' % (sT1, sT1),
              's_mul_i32 s3, s%d, 5' % sT1, 's_sub_u32 s%d, s%d, s3' % (sT0, sT0),
              's_mul_i32 s%d, s%d, %d' % (sT1, sT1, 32 * 1280), 's_lshl_b32 s%d, s%d, 8' % (sT0, sT0),
              's_add_u32 s%d, s%d, s%d' % (sT0, sT0, sT1),
              'v_lshrrev_b32 v36, 4, v1', 's_movk_i32 s3, 1280', 'v_mul_lo_u32 v36, v36, s3', 'v_and_b32 v37, 15, v1',
              'v_lshl_add_u32 v36, v37, 4, v36', 'v_add_u32 v36, s%d, v36' % sT0]
        for j in range(8 if not self.opt.get('now') else 0):
            if j % 4 == 0:
                L.append('s_add_u32 m0, s%d, %d' % (sMA, 0x10000 + j * 1024))
            L += ['s_mov_b32 s3, %d' % (j * 4 * 1280 - (j % 4) * 1024),
                  ('buffer_load_dwordx4 v36, %s, s3 offen offset:%d lds' % (s4(S_W), (j % 4) * 1024), 'wt')]
        L += ['s_lshl_b32 s%d, s%d, 13' % (sT0, sT2), 's_add_u32 s%d, s%d, 0x%x' % (sT0, sT0, WS_W),
              's_cmp_lt_u32 s%d, 910' % sT2, 's_cselect_b32 s%d, 8192, 0' % sT1]
        self.w_srd = srd_off(S_W, pWS, 's%d' % sT0, 's%d' % sT1)
        L += self.w_srd
        L += self.read_addrs()
        L += srd_off(S_ST, pWS, WS_XN, 2048 * 1280)
        L += ['s_mul_i32 s%d, s%d, 0x9e3779b1' % (sBase, sEp), 'v_mov_b32 v%d, s%d' % (vBASE, sBase)]
        L += layernorm(LNL, LNX, LNT, sMask)
        L += ['buffer_store_dwordx4 v[%d:%d], v%d, %s, 0 offen sc1' % (LNL, LNL + 3, vLN, s4(S_ST)),
              'buffer_store_dwordx4 v[%d:%d], v%d, %s, 0 offen offset:512 sc1' % (LNL + 4, LNL + 7, vLN, s4(S_ST)),
              ('buffer_store_dwordx2 v[%d:%d], v%d, %s, 0 offen offset:1024 sc1' % (LNL + 8, LNL + 9, vLN + 1, s4(S_ST)), 'xn')]
        return L

    def a_dma_addr(self, stride, rot):
        t0, t1 = vT0, vT1
        return ['v_lshrrev_b32 v%d, 3, v1' % t0, 's_movk_i32 s3, %d' % stride, 'v_mul_lo_u32 v%d, v%d, s3' % (t0, t0),
                'v_lshl_add_u32 v%d, s%d, 7, v%d' % (t0, rot, t0),
                'v_lshrrev_b32 v%d, 4, v1' % t1, 'v_and_b32 v%d, 7, v1' % vA[1], 'v_xor_b32 v%d, v%d, v%d' % (t1, t1, vA[1]),
                'v_lshl_add_u32 v%d, v%d, 4, v%d' % (vA[0], t1, t0), 'v_xor_b32 v%d, 4, v%d' % (t1, t1),
                'v_lshl_add_u32 v%d, v%d, 4, v%d' % (vA[1], t1, t0), 'v_add_u32 v%d, %d, v%d' % (vA[1], 8 * stride - 1024, vA[1])]

    def read_addrs(self):
        t0, t1 = vT0, vT1
        L = []
        L += ['v_and_b32 v%d, 15, v1' % t0, 'v_lshrrev_b32 v%d, 1, v%d' % (t1, t0), 'v_lshrrev_b32 v%d, 4, v1' % vRA1[0],
              'v_xor_b32 v%d, v%d, v%d' % (t1, t1, vRA1[0]), 'v_lshlrev_b32 v%d, 7, v%d' % (t0, t0),
              'v_lshl_add_u32 v%d, v%d, 4, v%d' % (t0, t1, t0),
              'v_add_u32 v%d, s%d, v%d' % (vRA2[0], sMA, t0), 'v_xor_b32 v%d, 64, v%d' % (vRA2[1], vRA2[0]),
              's_and_b32 s3, s%d, 1' % sW, 's_lshl_b32 s3, s3, 14', 's_add_u32 s3, s3, 0x10000',
              'v_add_u32 v%d, s3, v%d' % (vRA1[0], t0), 'v_xor_b32 v%d, 64, v%d' % (vRA1[1], vRA1[0])]
        L += ['v_lshrrev_b32 v%d, 4, v1' % t0, 'v_lshlrev_b32 v%d, 11, v%d' % (t0, t0),
              'v_bfe_u32 v%d, v1, 2, 2' % t1, 'v_lshl_add_u32 v%d, v%d, 8, v%d' % (t0, t1, t0),
              'v_bfe_u32 v%d, v1, 2, 3' % t1, 'v_lshl_add_u32 v%d, v%d, 5, v%d' % (t0, t1, t0),
              'v_and_b32 v%d, 3, v1' % t1, 'v_lshl_add_u32 v%d, v%d, 3, v%d' % (t0, t1, t0),
              's_lshr_b32 s3, s%d, 1' % sW, 's_lshl_b32 s3, s3, 7', 'v_xor_b32 v%d, s3, v%d' % (vRB[0], t0)]
        for nb in range(1, 8):
            L.append('v_xor_b32 v%d, %d, v%d' % (vRB[nb], nb * 32, vRB[0]))
        L += ['v_lshrrev_b32 v%d, 5, v1' % t0, 'v_lshlrev_b32 v%d, 12, v%d' % (t0, t0),
              'v_bfe_u32 v%d, v1, 4, 1' % t1, 'v_lshl_add_u32 v%d, v%d, 10, v%d' % (t0, t1, t0),
              'v_bfe_u32 v%d, v1, 2, 2' % t1, 'v_lshl_add_u32 v%d, v%d, 7, v%d' % (t0, t1, t0),
              'v_bfe_u32 v%d, v1, 3, 2' % t1, 'v_lshl_add_u32 v%d, v%d, 5, v%d' % (t0, t1, t0),
              'v_and_b32 v%d, 3, v1' % t1, 'v_lshl_add_u32 v%d, v%d, 3, v%d' % (vRG[0], t1, t0)]
        for nb in range(1, 4):
            L.append('v_xor_b32 v%d, %d, v%d' % (vRG[nb], nb * 32, vRG[0]))
        L += ['v_lshrrev_b32 v%d, 3, v1' % t0, 'v_lshl_add_u32 v%d, s%d, 6, v%d' % (t0, sRot2, t0), 's_movk_i32 s3, 3456', 'v_mul_lo_u32 v%d, v%d, s3' % (t0, t0),
              'v_bfe_u32 v%d, v1, 4, 1' % t1, 'v_lshlrev_b32 v%d, 1, v%d' % (t1, t1), 'v_and_b32 v%d, 7, v1' % vG[1],
              'v_xor_b32 v%d, v%d, v%d' % (t1, t1, vG[1]), 'v_lshl_add_u32 v%d, v%d, 4, v%d' % (vG[0], t1, t0),
              'v_xor_b32 v%d, 4, v%d' % (t1, t1), 'v_lshl_add_u32 v%d, v%d, 4, v%d' % (vG[1], t1, t0)]
        L += ['s_mul_i32 s%d, s%d, %d' % (sGo[0], sW, 16 * 3456), 's_lshl_b32 s3, s%d, 7' % sFB,
              's_add_u32 s%d, s%d, s3' % (sGo[0], sGo[0]), 's_add_u32 s%d, s%d, %d' % (sGo[1], sGo[0], 8 * 3456 - 1024)]
        L += ['s_lshr_b32 s3, s%d, 1' % sW, 's_lshl_b32 s3, s3, 11', 'v_lshlrev_b32 v%d, 4, v1' % t0,
              'v_add_u32 v%d, s3, v%d' % (vSTK, t0), 'v_add_u32 v%d, s3, v%d' % (vSTV, vSTK),
              's_lshl_b32 s3, s2, 7', 'v_mov_b32 v%d, s3' % vFL, 'v_mov_b32 v%d, 0x7fff0000' % t0, 'v_cmp_eq_u32 vcc, 0, v0',
              's_nop 1', 'v_cndmask_b32 v%d, v%d, v%d, vcc' % (vFL, t0, vFL)]
        L += ['s_lshl_b32 s%d, s%d, 4' % (sT0, sI), 's_lshl_b32 s3, s%d, 2' % sW, 's_sub_u32 s%d, 240, s%d' % (sT1, sT0),
              's_add_u32 s%d, s%d, s3' % (sT0, sT0), 's_add_u32 s%d, s%d, s3' % (sT1, sT1),
              'v_mov_b32 v%d, s%d' % (t0, sT0), 'v_mov_b32 v%d, s%d' % (t1, sT1), 'v_cmp_lt_u32 vcc, 31, v1',
              'v_and_b32 v%d, 3, v1' % vPA, 's_nop 0', 'v_cndmask_b32 v%d, v%d, v%d, vcc' % (t0, t0, t1), 'v_add_lshl_u32 v%d, v%d, v%d, 7' % (vPA, vPA, t0)]
        return L

    def dmaA(self, t, tag, fl):
        st = t & 1
        A = []
        for p in range(8):
            it = []
            if p % 4 == 0: it.append('s_add_u32 m0, s%d, %d' % (sMA, st * 32768 + (p >> 2) * 4096))
            it.append(('buffer_load_dwordx4 v%d, %s, s%d offen offset:%d%s lds' % (vA[p & 1], s4(S_A), sAo[p >> 1], (p & 3) * 1024, fl), tag))
            A.append(it)
        return A
    def dmaB(self, t, sub, S, tag, fl):
        st = t & 1
        B = []
        for j in range(4):
            it = []
            if j == 0: it.append('s_add_u32 m0, s%d, %d' % (sMB, st * 32768 + sub * 16384))
            it.append(('buffer_load_dwordx4 v%d, %s, s%d offen offset:%d%s lds' % (vB[j >> 1], s4(S), sBo[j], j * 1024, fl), tag))
            B.append(it)
        return B
    def rot_step(self, n):
        return [['s_add_u32 s%d, s%d, 1' % (sRot, sRot), 's_cmp_eq_u32 s%d, %d' % (sRot, n), 's_cselect_b32 s%d, %d, 1' % (sInc, 1 - n), 's_cmov_b32 s%d, 0' % sRot],
                's_lshl_b32 s%d, s%d, 19' % (sIncB, sInc)]
    def dma1(self, t):
        tag = 'dma%d' % t
        it = self.dmaB(t, 0, S_B0, tag, '') + self.dmaA(t, tag, '')[:4] + self.dmaB(t, 1, S_B1, tag, '') + self.dmaA(t, tag, '')[4:]
        it[1] = it[1] + self.rot_step(8)
        it[11] = it[11] + ['v_add_u32 v%d, s%d, v%d' % (vB[0], sIncB, vB[0]), 'v_add_u32 v%d, s%d, v%d' % (vB[1], sIncB, vB[1])]
        if t < 7: it[15] = it[15] + ['v_lshl_add_u32 v%d, s%d, 7, v%d' % (v, sInc, v) for v in vA]
        return it
    def dma2(self, t):
        tag = 'dma%d' % t
        st = t & 1
        G = []
        for j in range(4):
            it = []
            if j % 2 == 0: it.append('s_add_u32 m0, s%d, %d' % (sMB, st * 32768 + 16384 + (j >> 1) * 2048))
            it.append(('buffer_load_dwordx4 v%d, %s, s%d offen offset:%d lds' % (vG[j & 1], s4([S_B1, S_B2][j >> 1]), sGo[j & 1], (j & 1) * 1024), tag))
            G.append(it)
        A = self.dmaA(t, tag, self.opt.get('xnfl', ' sc1'))
        it = G + A[:4] + self.dmaB(t, 0, S_B0, tag, '') + A[4:]
        if t == 17: return it
        it[1] = it[1] + self.rot_step(10) + ['s_mul_i32 s%d, s%d, %d' % (sIncG, sInc, 64 * 3456)]
        it[5] = it[5] + ['v_add_u32 v%d, s%d, v%d' % (v, sIncG, v) for v in vG]
        it[11] = it[11] + ['v_add_u32 v%d, s%d, v%d' % (v, sIncB, v) for v in vB]
        it[15] = it[15] + ['v_lshl_add_u32 v%d, s%d, 7, v%d' % (v, sInc, v) for v in vA]
        return it
    def dmaKV(self, t):
        tag = 'dma%d' % t
        st = t & 1
        it = []
        for half in range(2):
            for p in range(8):
                x = []
                if p % 4 == 0:
                    x.append('s_add_u32 m0, s%d, %d' % (sMA, (half - 1) * 65536 + st * 32768 + (p >> 2) * 4096))
                x.append(('buffer_load_dwordx4 v%d, %s, s%d offen offset:%d sc1 lds' % (vA[p >> 2], s4(S_A), sAo[2 * st + half], (p & 3) * 1024), tag))
                it.append(x)
        return it

    def p1_tile(self, nb, mb):
        if nb < 4: p, b = (nb >> 1) * 8 + mb, nb & 1
        else: p, b = 16 + (nb - 4) * 4 + (mb >> 1), mb & 1
        if p < 28: return ('v', (144 if b else 32) + 4 * p)
        return ('a', 224 + (p - 28) * 8 + 4 * b)
    def p2_tile(self, nb, mb):
        k = nb * 4 + mb
        return ('a', 64 + 4 * k) if k < 40 else ('v', 160 + 4 * (k - 40))

    def gemms(self):
        o = self.opt
        S = Stream()
        subs = []
        for t in range(18):
            for ks in range(2):
                ph = 1 if t < 8 else 2
                base = S.n()
                subs.append((ph, t, ks, base))
                first = ks == 0 and t in (0, 8)
                ng, nm = (8, 8) if ph == 1 else (16, 4)
                for nb in range(ng):
                    for mb in (range(nm) if nb % 2 == 0 else reversed(range(nm))):
                        k, r = self.p1_tile(nb, mb) if ph == 1 else self.p2_tile(nb, mb)
                        d = vr(r, 4, k)
                        a, b = ar(self.fragA(ph, ks, mb), 4), ar(self.fragB(ph, nb), 4)
                        if ph == 2 or nb < 4: a, b = b, a
                        S.add('%s %s, %s, %s, %s' % (MF, d, a, b, '0' if first else d))
        BAR = o.get('bar', 39)
        pre = []
        for si, (ph, t, ks, base) in enumerate(subs):
            ng, nm, ring = (8, 8, 4) if ph == 1 else (16, 4, 8)
            rdA = [self.readA(ph, t, ks, mb) for mb in range(nm)]
            rdB = [self.readB(ph, t, ks, nb) for nb in range(ng)]
            lo = -10 ** 9
            if ks == 0 and t > 0:
                lo = base - 64 + BAR
                S.at(lo, [('@vmwait', 'dma%d' % t), 's_waitcnt lgkmcnt(0)', 's_barrier'])
            items = []
            for nb in range(ng):
                g = base + (nb - ring + 1) * nm - 1
                if t == 8 and ks == 0:
                    g = base - 64 + BAR if nb < 4 else max(g, base - 1)
                items.append((max(g, lo), 0, rdB[nb]))
            for mb in range(nm):
                if ks == 0: g = lo + 1 + 2 * mb
                else: g = base - 64 + 8 + mb * (40 // nm)
                items.append((g, 1, [rdA[mb]]))
            items.sort(key=lambda x: (x[0], x[1]))
            for g, _, ls in items:
                if g < 0: pre += ls
                else:
                    for l in ls:
                        gg = S.flow([(g, l)], g)
                        if ks == 1: assert gg < base + 34, (t, gg - base)
        for t in range(2, 20):
            g0 = (t - 2) * 128 + 64 + BAR
            its = self.dma1(t) if t < 8 else self.dma2(t) if t < 18 else self.dmaKV(t)
            if t == 19:
                S.at(g0, ['s_waitcnt lgkmcnt(0)', 's_barrier'])
            span = o.get('dspan', 64) if t < 19 else 22
            if o.get('nodma'): its = []
            if o.get('noA'): its = [x for x in its if not any(isinstance(y, tuple) and s4(S_A) in y[0] for y in x)]
            if t in (7, 17): span = min(span, 64)
            for k, it in enumerate(its):
                g = g0 + 2 + k * span // 16
                if it[0].startswith('s_add_u32 m0') if isinstance(it[0], str) else False:
                    S.at(g - 1, it[0]); it = it[1:]
                S.at(g, it[0], front=True)
                if len(it) > 1: S.flow(it[1:], g)
        self.extras(S, BAR)
        return pre, S

    def fragA(self, ph, ks, mb): return ks * 32 + mb * 4
    def fragB(self, ph, nb):
        if ph == 1: return 64 + (nb & 3) * 4
        s = nb & 7
        return 16 + s * 4 if s < 4 else 48 + (s - 4) * 4
    def readA(self, ph, t, ks, mb):
        return 'ds_read_b128 %s, v%d offset:%d' % (ar(self.fragA(ph, ks, mb), 4), (vRA1 if ph == 1 else vRA2)[ks], (t & 1) * 32768 + mb * 2048)
    def readB(self, ph, t, ks, nb):
        f = self.fragB(ph, nb)
        st = (t & 1) * 32768
        if ph == 1: v, off, dj = vRB[nb & 3], st + (nb >> 2) * 16384 + ks * 8192, 1024
        elif nb >= 8: v, off, dj = vRB[nb - 8], st + ks * 8192, 1024
        else: v, off, dj = vRG[nb >> 1], st + 16384 + ks * 8192 + (nb & 1) * 2048, 512
        return ['ds_read_b64_tr_b16 %s, v%d offset:%d' % (ar(f + 2 * j, 2), v, off + j * dj) for j in range(2)]

    def extras(self, S, BAR):
        o = self.opt
        bar = lambda t: t * 128 + 64 + BAR
        S.at(bar(1), [('@vmwait', 'xn')], front=True)
        S.flow(self.flag(1), bar(1) + 1)
        rd = ['v_lshrrev_b32 v%d, 2, v1' % vT1, 'v_lshlrev_b32 v%d, 8, v%d' % (vT1, vT1), 'v_and_b32 v%d, 3, v1' % vT0,
              'v_lshl_add_u32 v%d, v%d, 3, v%d' % (vT1, vT0, vT1), 's_add_u32 s3, s%d, 0x10000' % sMA, 'v_add_u32 v%d, s3, v%d' % (vT1, vT1)]
        for q in range(8):
            for j in range(2):
                rd.append('ds_read_b64_tr_b16 %s, v%d offset:%d' % (ar(80 + 4 * q + 2 * j, 2), vT1, q * 32 + j * 4096))
        g = S.flow(rd, 2 * 128 + 44, cap=4)
        stv = ['v_lshlrev_b32 v%d, 4, v1' % vT0, 's_movk_i32 s%d, 4096' % sSO]
        g = S.flow(stv, g + 1)
        for q in range(8 if not o.get('now') else 0):
            S.flow([('buffer_store_dwordx4 %s, v%d, %s, %s offen offset:%d sc1' % (ar(80 + 4 * q, 4), vT0, s4(S_W), '0' if q < 4 else 's%d' % sSO, (q & 3) * 1024), 'kv')],
                   3 * 128 + 44 + q * 7)
        S.flow(self.poll_issue(), 5 * 128 + 50)
        gs = 6 * 128 + 44
        su = (srd_off(S_A, pWS, WS_XN, 2048 * 1280) if not o.get('readx') else srd_off(S_A, pX, 0, 2048 * 1280)) + srd(S_B0, pWQ, pWQ + 1, 640 * 8192)
        su += ['s_cmp_lt_u32 s%d, 27' % sFB, 's_cselect_b32 s%d, 0x%x, 0' % (S_B1 + 2, 640 * 3456), 's_mov_b32 s%d, s%d' % (S_B2 + 2, S_B1 + 2),
               's_mov_b32 s%d, s%d' % (S_B1, pWG), 's_mov_b32 s%d, s%d' % (S_B1 + 1, pWG + 1),
               's_mov_b32 s%d, s%d' % (S_B2, pWU), 's_mov_b32 s%d, s%d' % (S_B2 + 1, pWU + 1), 's_mov_b32 s%d, 0x00020000' % (S_B2 + 3)]
        su += ['s_lshl_b32 s%d, s%d, 2' % (sT0, sI), 's_sub_u32 s%d, 60, s%d' % (sT1, sT0),
               's_add_u32 s%d, s%d, s%d' % (sT0, sT0, sW), 's_add_u32 s%d, s%d, s%d' % (sT1, sT1, sW),
               's_mul_i32 s%d, s%d, %d' % (sAo[0], sT0, 32 * 1280), 's_mul_i32 s%d, s%d, %d' % (sAo[2], sT1, 32 * 1280),
               's_add_u32 s%d, s%d, %d' % (sAo[1], sAo[0], 16 * 1280 - 2048), 's_add_u32 s%d, s%d, %d' % (sAo[3], sAo[2], 16 * 1280 - 2048)]
        su += self.a_dma_addr(1280, sRot2)
        su += ['s_sub_u32 s%d, s%d, s%d' % (sInc, sRot2, sRot), 's_mov_b32 s%d, s%d' % (sRot, sRot2), 's_lshl_b32 s%d, s%d, 19' % (sIncG, sInc)]
        su += ['v_add_u32 v%d, s%d, v%d' % (v, sIncG, v) for v in vB]
        su += ['s_lshl_b32 s%d, s%d, 4' % (sT0, sH), 's_lshl_b32 s%d, s%d, 1' % (sT1, sI), 's_add_u32 s%d, s%d, s%d' % (sT0, sT0, sT1),
               's_and_b32 s%d, s%d, 1' % (sT1, sW), 's_add_u32 s%d, s%d, s%d' % (sT0, sT0, sT1), 's_lshl_b32 s%d, s%d, 16' % (sT0, sT0)]
        su += srd_off(S_ST, pWS, 's%d' % sT0, 65536)
        su = self.keep_scc(su)
        g = S.flow(su, gs)
        assert g < bar(6) - 1, g
        S.at(bar(6) - 1, self.stamp(5) + self.poll_check(1) + self.stamp(6))
        fx = ['s_lshr_b32 s3, s%d, 1' % sW, 's_lshl_b32 s3, s3, 7'] + ['v_xor_b32 v%d, s3, v%d' % (v, v) for v in vRB]
        g = S.flow(fx, 7 * 128 + 64 + 34)
        assert g < 8 * 128, g
        b15 = 7 * 128 + 64
        pk = []
        for p in range(28):
            e = b15 + (17 if p < 8 else 33 if p < 16 else 41 + 8 * ((p - 16) >> 2))
            a, b = 32 + 4 * p, 144 + 4 * p
            pk += [(e, 'v_cvt_pk_bf16_f32 v%d, v%d, v%d' % (a, a, a + 1)), 'v_cvt_pk_bf16_f32 v%d, v%d, v%d' % (a + 1, a + 2, a + 3),
                   'v_cvt_pk_bf16_f32 v%d, v%d, v%d' % (a + 2, b, b + 1), 'v_cvt_pk_bf16_f32 v%d, v%d, v%d' % (a + 3, b + 2, b + 3)]
        g = b15
        for p in range(28):
            g = S.flow(pk[4 * p:4 * p + 4], g)
            if p >= 4: assert g < 8 * 128 + 40 + ((p - 4) & ~3) - 1, (p, g)
        for q in range(4):
            for k in range(4):
                g = S.flow(['v_accvgpr_read_b32 v%d, a%d' % (vT0, 224 + 8 * q + 2 * k), 'v_accvgpr_read_b32 v%d, a%d' % (vT1, 225 + 8 * q + 2 * k),
                            'v_cvt_pk_bf16_f32 v%d, v%d, v%d' % (144 + 4 * q + k, vT0, vT1)], max(g, 8 * 128 + 2))
        order = sorted(range(32), key=lambda p: self.kv_off(p)[0])
        g0, g1 = g + 1, o.get('st_end', 13 * 128)
        last = None
        stw = o.get('stw')
        for n, p in enumerate(order):
            off, v = self.kv_off(p)
            gg = g0 + n * (g1 - g0) // 32
            if stw:
                gg = max(g0, bar(stw[0] + n // stw[1]) + 3 + o.get('dspan', 64) + (n % stw[1]) * stw[2])
            it = []
            if off >> 12 != last:
                last = off >> 12
                it.append('s_mov_b32 s%d, %d' % (sSO, off & ~4095))
            if not o.get('nokv'):
                it.append(('buffer_store_dwordx4 v[%d:%d], v%d, %s, s%d offen offset:%d%s' % (32 + 4 * p, 35 + 4 * p, v, s4(S_ST), sSO, off & 4095, o.get('kvfl', ' sc1')), 'kv'))
            gl = S.flow(it, gg)
            if stw: g0 = max(g0, gl)
        tf = o.get('kvflag', 14)
        S.at(bar(tf), [('@vmwait', 'kv')], front=True)
        S.flow(self.flag(2), bar(tf) + 1)
        pa = ['s_and_b32 s3, s2, 31', 'v_and_b32 v%d, 7, v1' % vPA, 'v_lshlrev_b32 v%d, 5, v%d' % (vPA, vPA), 'v_add_lshl_u32 v%d, s3, v%d, 7' % (vPA, vPA)]
        S.flow(pa + self.poll_issue(), 16 * 128 + 10)
        su = ['s_lshl_b32 s%d, s%d, 20' % (sT0, sH)] + srd_off(S_A, pWS, 's%d' % sT0, 1 << 20)
        su += ['s_lshl_b32 s%d, s%d, 13' % (sAo[0], sW), 's_add_u32 s%d, s%d, 0x8000' % (sAo[1], sAo[0]),
               's_lshl_b32 s3, s%d, 16' % sI, 's_add_u32 s%d, s%d, s3' % (sAo[2], sAo[0]),
               's_add_u32 s%d, s%d, 0x18000' % (sAo[2], sAo[2]), 's_add_u32 s%d, s%d, 0x10000' % (sAo[3], sAo[2]),
               'v_lshlrev_b32 v%d, 4, v1' % vA[0], 'v_add_u32 v%d, 0x1000, v%d' % (vA[1], vA[0])]
        g = S.flow(self.keep_scc(su), 16 * 128 + 44)
        assert g < bar(16) - 1
        S.at(bar(16) - 1, self.stamp(10) + self.poll_check(2) + self.stamp(11))
        S.at(10 * 128, self.stamp(7)); S.at(12 * 128, self.stamp(8)); S.at(14 * 128, self.stamp(9))
        if self.SO:
            S.at(8 * 128 - 1, self.stamp(2))

    def keep_scc(self, lines):
        out = []
        for l in lines:
            op = l.split()[0]
            if op in ('s_addc_u32', 's_cselect_b32', 's_cmov_b32', 's_cselect_b64'):
                if not isinstance(out[-1], list): out[-1] = [out[-1]]
                out[-1].append(l)
            else: out.append(l)
        return out

    def kv_off(self, p):
        if p < 16:
            mb, dsl = p & 7, p >> 3
            return (mb >> 2) * 32768 + (mb & 3) * 4096 + dsl * 1024, vSTK
        n, mp = (p - 16) >> 2, (p - 16) & 3
        return (mp >> 1) * 32768 + 16384 + (mp & 1) * 8192 + n * 1024, vSTV

    def p2_epilogue(self):
        L = []
        sC = sT0
        L += ['s_mov_b32 s%d, 0x3e0293ee' % sC]
        for ds in (1, 2, 3, 0):
            for qb in range(4):
                dst = 32 + (qb * 4 + ds) * 4
                for hf in range(2):
                    k, r = self.p2_tile(8 + 2 * ds + hf, qb)
                    if k == 'a':
                        t = 96 + (qb * 2 + hf) * 4
                        L += ['v_accvgpr_read_b32 v%d, a%d' % (t + e, r + e) for e in range(4)]
                        r = t
                    L += ['v_mul_f32 v%d, s%d, v%d' % (r + e, sC, r + e) for e in range(4)]
                    L += ['v_cvt_pk_bf16_f32 v%d, v%d, v%d' % (dst + 2 * hf + e, r + 2 * e, r + 2 * e + 1) for e in range(2)]
        L += ['s_add_u32 s3, s%d, 0x10000' % sMA, 'v_add_u32 v%d, s3, v%d' % (vT0, vA[0]), 'v_xor_b32 v%d, 0x2000, v%d' % (vT1, vT0)]
        for f in range(8):
            L.append('ds_write_b128 v%d, v[%d:%d] offset:%d' % (vT0, 64 + 4 * f, 67 + 4 * f, f * 1024))
        L += ['s_cmp_ge_u32 s%d, 27' % sFB, 's_cbranch_scc1 %s' % self.lab('skipgelu')]
        self.ool.append([self.lab('skipgelu') + ':', 's_waitcnt vmcnt(0)', 's_branch %s' % self.lab('nogelu')])
        sL, sHh, c1, c2 = sGo[0], sGo[1], sT1, sT2
        L += srd_off(S_ST, pWS, WS_H, 32 * 54 * 4096)
        L += ['s_lshr_b32 s3, s%d, 1' % sW, 's_lshl_b32 s%d, s%d, 1' % (sL, sI), 's_sub_u32 s%d, 30, s%d' % (sHh, sL),
              's_add_u32 s%d, s%d, s3' % (sL, sL), 's_add_u32 s%d, s%d, s3' % (sHh, sHh),
              's_mul_i32 s%d, s%d, %d' % (sL, sL, 54 * 4096), 's_mul_i32 s%d, s%d, %d' % (sHh, sHh, 54 * 4096),
              's_lshl_b32 s3, s%d, 13' % sFB, 's_and_b32 s%d, s%d, 1' % (c1, sW), 's_lshl_b32 s%d, s%d, 11' % (c1, c1), 's_add_u32 s3, s3, s%d' % c1,
              's_add_u32 s%d, s%d, s3' % (sL, sL), 's_add_u32 s%d, s%d, s3' % (sHh, sHh)]
        import struct, math
        f2u = lambda x: struct.unpack('<I', struct.pack('<f', x))[0]
        kk = 2 * math.sqrt(2 / math.pi) * math.log2(math.e)
        L += ['s_mov_b32 s%d, 0x%x' % (c1, f2u(-kk * 0.044715)), 'v_mov_b32 v%d, 0x%x' % (vPR, f2u(-kk))]
        n = 0
        for m in range(2):
            for mb in range(4):
                base = 96 + (n % 2) * 28
                G, U, T, D = base, base + 8, base + 16, base + 24
                n += 1
                for hf in range(2):
                    _, rg = self.p2_tile(2 * (2 * m + hf), mb)
                    _, ru = self.p2_tile(2 * (2 * m + hf) + 1, mb)
                    L += ['v_accvgpr_read_b32 v%d, a%d' % (G + 4 * hf + e, rg + e) for e in range(4)]
                    L += ['v_accvgpr_read_b32 v%d, a%d' % (U + 4 * hf + e, ru + e) for e in range(4)]
                L += ['v_mul_f32 v%d, v%d, v%d' % (T + e, G + e, G + e) for e in range(8)]
                L += ['v_fma_f32 v%d, v%d, s%d, v%d' % (T + e, T + e, c1, vPR) for e in range(8)]
                L += ['v_mul_f32 v%d, v%d, v%d' % (T + e, T + e, G + e) for e in range(8)]
                L += ['v_exp_f32 v%d, v%d' % (T + e, T + e) for e in range(8)]
                L += ['v_mul_f32 v%d, v%d, v%d' % (G + e, G + e, U + e) for e in range(8)]
                L += ['v_add_f32 v%d, 1.0, v%d' % (T + e, T + e) for e in range(8)]
                L += ['v_rcp_f32 v%d, v%d' % (T + e, T + e) for e in range(8)]
                L += ['v_mul_f32 v%d, v%d, v%d' % (G + e, G + e, T + e) for e in range(8)]
                L += ['v_cvt_pk_bf16_f32 v%d, v%d, v%d' % (D + e, G + 2 * e, G + 2 * e + 1) for e in range(4)]
                L += [('buffer_store_dwordx4 v[%d:%d], v%d, %s, s%d offen offset:%d sc1' % (D, D + 3, vA[m], s4(S_ST), sL if mb < 2 else sHh, (mb & 1) * 1024), 'h')]
        L += [self.lab('nogelu') + ':']
        return L

    def dump_q(self):
        L = srd_off(S_X, pWS, WS_Q, 16 << 20)
        L += ['s_lshl_b32 s3, s2, 2', 's_add_u32 s3, s3, s%d' % sW, 's_lshl_b32 s3, s3, 14']
        for f in range(16):
            L += ['buffer_store_dwordx4 v[%d:%d], v%d, %s, s3 offen' % (32 + 4 * f, 35 + 4 * f, vA[0], s4(S_X)), 's_add_u32 s3, s3, 1024']
        return L

    def build(self, stats=None):
        o = self.opt
        L = self.prologue()
        pre, S = self.gemms()
        L += [('@vmwait', 'dma0'), 's_barrier'] + self.stamp(1) + pre
        L += S.lines()
        L += self.stamp(3)
        L += self.p2_epilogue()
        L += self.stamp(4)
        if o.get('stop') == 2:
            L += self.dump_q()
        L += self.epoch_out()
        L += ['s_waitcnt vmcnt(0)'] + self.stamp(13) + self.stamp(15, True) + self.stamps_out()
        L += ['s_endpgm']
        out, st = process(L, stats=stats, lazy=o.get('lazy', 8))
        for blk in self.ool:
            out += process(blk, stats=stats)[0]
        out += [self.lab('end') + ':']
        return out
```

```python
from asmlib import *

MF = 'v_mfma_f32_32x32x16_bf16'

class Gemm:
    def __init__(self, **kw):
        self.__dict__.update(kw)

    def fragA(self, buf, mb): return self.fa + buf * 8 + mb * 4
    def fragB(self, buf, nb): return self.fb + buf * 32 + nb * 4

    def reads(self, t, ks, buf):
        st = t & 1
        A = ['ds_read_b128 %s, v%d offset:%d' % (ar(self.fragA(buf, mb), 4), self.vRA[ks], st * 8192 + mb * 4096) for mb in range(2)]
        out = []
        for i, nb in enumerate(self.nbs):
            for j in range(2):
                v, off = self.b_read(nb, st, ks, j)
                out.append('ds_read_b64_tr_b16 %s, v%d offset:%d' % (ar(self.fragB(buf, nb) + 2 * j, 2), v, off))
            if i == 0:
                out = [A[0]] + out + [A[1]]
        return out

    def mfma(self, nb, mb, buf, first, fa=None, fb=None):
        a = ar(self.fragA(buf, mb) if fa is None else fa, 4)
        b = ar(self.fragB(buf, nb) if fb is None else fb, 4)
        d = self.acc(nb, mb)
        c = '0' if first else d
        if self.swap(nb):
            return '%s %s, %s, %s, %s' % (MF, d, b, a, c)
        return '%s %s, %s, %s, %s' % (MF, d, a, b, c)

    def prologue_dma(self):
        out = []
        for t in range(2):
            for it in self.dma(t):
                out += [(l, 'dma%d' % t) if 'buffer_load' in l else l for l in it]
            out += self.dma_post(t)
        return out

    def prologue_reads(self):
        out = [('@vmwait', 'dma0'), 's_barrier']
        out += self.reads(0, 0, 0)
        return out

    def body(self, read_span=(0, 12), bar_gap=1, dma_span=(2, 30), tail=None, nodma=False, drain=False):
        n = len(self.nbs) * 2
        mf = []
        fill = {}
        front = {}
        post = {}
        post2 = {}
        T = self.nsteps
        for t in range(T):
            for ks in range(4):
                base = len(mf)
                buf = ks & 1
                for nb in self.nbs:
                    for mb in range(2):
                        mf.append(self.mfma(nb, mb, buf, t == 0 and ks == 0))
                if drain and base > 0:
                    post2[base - 1] = ['s_waitcnt lgkmcnt(0)']
                lo, hi = read_span
                lo = lo * n // 16; hi = hi * n // 16
                if ks < 3:
                    spread(self.reads(t, ks + 1, buf ^ 1), base + lo, base + hi, fill)
                elif t + 1 < T:
                    g = base + bar_gap
                    fill.setdefault(g, []).extend([('@vmwait', 'dma%d' % (t + 1)), 's_waitcnt lgkmcnt(0)', 's_barrier'])
                    spread(self.reads(t + 1, 0, buf ^ 1), g, max(base + hi, g + 1) + 1, fill)
                    if t + 2 < T and not nodma:
                        items = [[(l, 'dma%d' % (t + 2)) if 'buffer_load' in l else l for l in it] for it in self.dma(t + 2)]
                        items[-1] = items[-1] + self.dma_post(t + 2)
                        a, b = base + dma_span[0] * n // 16, base + dma_span[1] * n // 16
                        for k, it in enumerate(items):
                            gi = a + (k * (b - a)) // len(items)
                            post.setdefault(gi - 1, []).append(it[0])
                            front.setdefault(gi, []).extend(it[1:])
        for k in set(list(front) + list(post) + list(post2)):
            assert len(post.get(k, [])) <= 1
            fill[k] = front.get(k, []) + fill.get(k, []) + post.get(k, []) + post2.get(k, [])
        return mf, fill
```

```python
from asmlib import *
from gemm import Gemm

WS_KV = 0
WS_XN = 32 << 20
WS_H = 36 << 20
WS_CTX = 44 << 20
WS_DBG = 128 << 20

def stamp(i, on, real=False):
    if not on: return []
    return ['%s s[%d:%d]' % ('s_memrealtime' if real else 's_memtime', 76 + 2 * i, 77 + 2 * i)]

def stamps_out(n, on, sWS, sW, S=72):
    if not on: return []
    o = ['s_waitcnt lgkmcnt(0)',
         's_add_u32 s%d, s%d, 0x%x' % (S, sWS, WS_DBG), 's_addc_u32 s%d, s%d, 0' % (S + 1, sWS + 1),
         's_mov_b32 s%d, 0x10000' % (S + 2), 's_mov_b32 s%d, 0x00020000' % (S + 3),
         's_lshl_b32 s3, s2, 2', 's_add_u32 s3, s3, s%d' % sW, 's_lshl_b32 s3, s3, 6', 'v_mov_b32 v0, s3',
         's_mov_b64 exec, 1']
    for i in range(n):
        o += ['v_mov_b32 v2, s%d' % (76 + 2 * i), 'buffer_store_dword v2, v0, s[%d:%d], 0 offen offset:%d' % (S, S + 3, 4 * i), 's_nop 1']
    return o

def srd(d, lo, hi, nrec):
    return ['s_mov_b32 s%d, s%d' % (d, lo), 's_mov_b32 s%d, s%d' % (d + 1, hi),
            's_mov_b32 s%d, 0x%x' % (d + 2, nrec), 's_mov_b32 s%d, 0x00020000' % (d + 3)]

def half_reduce(v, t):
    return ['v_add_f32_dpp v%d, v%d, v%d quad_perm:[1,0,3,2] row_mask:0xf bank_mask:0xf' % (v, v, v),
            'v_add_f32_dpp v%d, v%d, v%d quad_perm:[2,3,0,1] row_mask:0xf bank_mask:0xf' % (v, v, v),
            'v_add_f32_dpp v%d, v%d, v%d row_half_mirror row_mask:0xf bank_mask:0xf' % (v, v, v),
            'v_add_f32_dpp v%d, v%d, v%d row_mirror row_mask:0xf bank_mask:0xf' % (v, v, v),
            'v_mov_b32 v%d, v%d' % (t, v),
            'v_permlane16_swap_b32 v%d, v%d' % (v, t),
            'v_add_f32 v%d, v%d, v%d' % (v, v, t)]

def layernorm(L, X, T, sMask):
    o = []
    for i in range(10):
        o.append('v_lshlrev_b32 v%d, 16, v%d' % (X + 2 * i, L + i))
        o.append('v_and_b32 v%d, s%d, v%d' % (X + 2 * i + 1, sMask, L + i))
    o.append('v_add_f32 v%d, v%d, v%d' % (T, X, X + 1))
    o.append('v_add_f32 v%d, v%d, v%d' % (T + 1, X + 2, X + 3))
    for i in range(4, 20, 2):
        o.append('v_add_f32 v%d, v%d, v%d' % (T, T, X + i))
        o.append('v_add_f32 v%d, v%d, v%d' % (T + 1, T + 1, X + i + 1))
    o.append('v_add_f32 v%d, v%d, v%d' % (T, T, T + 1))
    o += half_reduce(T, T + 1)
    o.append('v_mul_f32 v%d, 0x3acccccd, v%d' % (T, T))
    o.append('v_sub_f32 v%d, v%d, v%d' % (L, X, T))
    o.append('v_sub_f32 v%d, v%d, v%d' % (L + 1, X + 1, T))
    o.append('v_mul_f32 v%d, v%d, v%d' % (T + 1, L, L))
    o.append('v_mul_f32 v%d, v%d, v%d' % (T + 2, L + 1, L + 1))
    for i in range(2, 20, 2):
        o.append('v_sub_f32 v%d, v%d, v%d' % (L, X + i, T))
        o.append('v_sub_f32 v%d, v%d, v%d' % (L + 1, X + i + 1, T))
        o.append('v_fmac_f32 v%d, v%d, v%d' % (T + 1, L, L))
        o.append('v_fmac_f32 v%d, v%d, v%d' % (T + 2, L + 1, L + 1))
    o.append('v_add_f32 v%d, v%d, v%d' % (T + 1, T + 1, T + 2))
    o += half_reduce(T + 1, T + 2)
    o.append('v_mul_f32 v%d, 0x3acccccd, v%d' % (T + 1, T + 1))
    o.append('v_cvt_pk_bf16_f32 v%d, v%d, v%d' % (T + 2, T, T + 1))
    o.append('v_lshlrev_b32 v%d, 16, v%d' % (T, T + 2))
    o.append('v_and_b32 v%d, s%d, v%d' % (T + 1, sMask, T + 2))
    o.append('v_add_f32 v%d, 0x3727c5ac, v%d' % (T + 1, T + 1))
    o.append('v_cvt_pk_bf16_f32 v%d, v%d, v%d' % (T + 1, T + 1, T + 1))
    o.append('v_lshlrev_b32 v%d, 16, v%d' % (T + 1, T + 1))
    o.append('v_sqrt_f32 v%d, v%d' % (T + 1, T + 1))
    o.append('v_cvt_pk_bf16_f32 v%d, v%d, v%d' % (T + 1, T + 1, T + 1))
    o.append('v_lshlrev_b32 v%d, 16, v%d' % (T + 1, T + 1))
    o.append('v_rcp_f32 v%d, v%d' % (T + 1, T + 1))
    for i in range(20):
        o.append('v_sub_f32 v%d, v%d, v%d' % (X + i, X + i, T))
    for i in range(10):
        o.append('v_cvt_pk_bf16_f32 v%d, v%d, v%d' % (L + i, X + 2 * i, X + 2 * i + 1))
    for i in range(10):
        o.append('v_lshlrev_b32 v%d, 16, v%d' % (X + 2 * i, L + i))
        o.append('v_and_b32 v%d, s%d, v%d' % (X + 2 * i + 1, sMask, L + i))
    for i in range(20):
        o.append('v_mul_f32 v%d, v%d, v%d' % (X + i, X + i, T + 1))
    for i in range(10):
        o.append('v_cvt_pk_bf16_f32 v%d, v%d, v%d' % (L + i, X + 2 * i, X + 2 * i + 1))
    return o


def a_addr_setup(vA0, vA1, vRA, rowstride, sRowStride, sMA, t0, t1):
    o = []
    o += ['v_lshrrev_b32 v%d, 3, v1' % t0,
          'v_mul_lo_u32 v%d, v%d, s%d' % (t0, t0, sRowStride),
          'v_lshrrev_b32 v%d, 4, v1' % t1,
          'v_and_b32 v%d, 7, v1' % vA1,
          'v_xor_b32 v%d, v%d, v%d' % (t1, t1, vA1),
          'v_lshl_add_u32 v%d, v%d, 4, v%d' % (vA0, t1, t0),
          'v_xor_b32 v%d, 4, v%d' % (t1, t1),
          'v_lshl_add_u32 v%d, v%d, 4, v%d' % (vA1, t1, t0),
          'v_add_u32 v%d, %d, v%d' % (vA1, 8 * rowstride, vA1)]
    o += ['v_and_b32 v%d, 31, v1' % t0,
          'v_lshrrev_b32 v%d, 1, v%d' % (t1, t0),
          'v_and_b32 v%d, 7, v%d' % (t1, t1),
          'v_lshrrev_b32 v%d, 5, v1' % vRA[0],
          'v_xor_b32 v%d, v%d, v%d' % (t1, t1, vRA[0]),
          'v_lshlrev_b32 v%d, 7, v%d' % (t0, t0),
          'v_lshl_add_u32 v%d, v%d, 4, v%d' % (t0, t1, t0),
          'v_add_u32 v%d, s%d, v%d' % (vRA[0], sMA, t0)]
    for ks in range(1, 4):
        o.append('v_xor_b32 v%d, %d, v%d' % (vRA[ks], ks * 32, vRA[0]))
    return o


def b256_addr_setup(vB, vRB, rowstride_log2, t0, t1, t2):
    o = []
    o += ['v_lshrrev_b32 v%d, 4, v1' % t0,
          'v_and_b32 v%d, 15, v1' % t1,
          'v_lshlrev_b32 v%d, 2, v%d' % (t2, t0),
          'v_xor_b32 v%d, v%d, v%d' % (t1, t1, t2),
          'v_lshlrev_b32 v%d, %d, v%d' % (t0, rowstride_log2, t0),
          'v_lshl_add_u32 v%d, v%d, 4, v%d' % (vB, t1, t0)]
    o += ['v_lshrrev_b32 v%d, 5, v1' % t0,
          'v_lshlrev_b32 v%d, 11, v%d' % (t0, t0),
          'v_bfe_u32 v%d, v1, 2, 2' % t1,
          'v_lshl_add_u32 v%d, v%d, 8, v%d' % (t0, t1, t0),
          'v_lshl_add_u32 v%d, v%d, 6, v%d' % (t0, t1, t0),
          'v_bfe_u32 v%d, v1, 4, 1' % t1,
          'v_lshl_add_u32 v%d, v%d, 5, v%d' % (t0, t1, t0),
          'v_and_b32 v%d, 3, v1' % t1,
          'v_lshl_add_u32 v%d, v%d, 3, v%d' % (vRB[0], t1, t0)]
    for nb in range(1, 4):
        o.append('v_xor_b32 v%d, %d, v%d' % (vRB[nb], nb * 64, vRB[0]))
    return o


def build(name='k1_kernel', opt=None, stats=None):
    opt = opt or {}
    S_C, S_UK, S_UV, S_KV, S_X, S_XN = 4, 8, 12, 16, 20, 24
    sAo = [28, 29, 30, 31]
    sBo = [32, 33, 34, 35]
    sMA, sMB, sW, sMask, sT, sT2 = 36, 37, 38, 39, 40, 41
    sSt = [44 + i for i in range(8)]
    P = 56
    vA0, vA1, vB, vST = 2, 3, 4, 5
    vRA = [6, 7, 8, 9]
    vRB = [10, 11, 12, 13]
    vLN = 14
    t0, t1, t2 = 16, 17, 18
    def acc(nb, mb):
        i = nb * 2 + mb
        return vr(32 + i * 16, 16) if i < 14 else ar((i - 14) * 16, 16)
    def dma(t):
        st = t & 1
        items = []
        A = []
        for j in range(4):
            for par in range(2):
                p = 2 * j + par
                A.append(['s_add_u32 m0, s%d, %d' % (sMA, st * 8192 + p * 1024 - t * 128),
                          'buffer_load_dwordx4 v%d, s[%d:%d], s%d offen offset:%d lds' % ([vA0, vA1][par], S_C, S_C + 3, sAo[j], t * 128)])
        B = []
        for sub in range(2):
            for j in range(4):
                B.append(['s_add_u32 m0, s%d, %d' % (sMB, st * 32768 + sub * 16384 + j * 1024),
                          'buffer_load_dwordx4 v%d, s[%d:%d], s%d offen lds' % (vB, [S_UK, S_UV][sub], [S_UK, S_UV][sub] + 3, sBo[j])])
        for i in range(8):
            items += [B[i], A[i]]
        return items
    def dma_post(t):
        return ['v_add_u32 v%d, 0x80000, v%d' % (vB, vB)]
    def b_read(nb, st, ks, j):
        return vRB[nb & 3], st * 32768 + (nb >> 2) * 16384 + ks * 4096 + j * 1024
    g = Gemm(nsteps=8, acc=acc, swap=lambda nb: nb < 4, dma=dma, dma_post=dma_post, vRA=vRA, b_read=b_read,
             fa=32, fb=48, nbs=list(range(8)))

    L = []
    L += ['s_cmp_ge_u32 s2, 256', 's_cbranch_scc1 %s_end' % name]
    SO = opt.get('stamps', False)
    L += stamp(0, SO) + stamp(6, SO, True)
    L += ['s_load_dwordx4 s[%d:%d], s[0:1], 0' % (P, P + 3),
          's_load_dwordx4 s[%d:%d], s[0:1], 24' % (P + 4, P + 7),
          's_load_dwordx2 s[%d:%d], s[0:1], 96' % (P + 8, P + 9)]
    L += ['v_and_b32 v1, 63, v0', 'v_lshrrev_b32 v%d, 6, v0' % t0, 's_nop 0',
          'v_readfirstlane_b32 s%d, v%d' % (sW, t0)]
    sH, sMT = 42, 43
    L += ['s_and_b32 s%d, s2, 7' % sH, 's_lshl_b32 s%d, s%d, 2' % (sH, sH),
          's_bfe_u32 s%d, s2, 0x20003' % sT, 's_add_u32 s%d, s%d, s%d' % (sH, sH, sT),
          's_lshr_b32 s%d, s2, 5' % sMT]
    L += ['s_mov_b32 s%d, 0xffff0000' % sMask]
    L += ['s_lshl_b32 s%d, s%d, 14' % (sMA, sW), 's_add_u32 s%d, s%d, 0x10000' % (sMA, sMA),
          's_lshl_b32 s%d, s%d, 12' % (sMB, sW)]
    L += ['s_lshl_b32 s%d, s%d, 2' % (sT, sMT), 's_add_u32 s%d, s%d, s%d' % (sT, sT, sW),
          's_lshl_b32 s%d, s%d, 16' % (sAo[0], sT)]
    for j in range(1, 4):
        L.append('s_add_u32 s%d, s%d, %d' % (sAo[j], sAo[0], j * 16384))
    L += ['s_lshl_b32 s%d, s%d, 17' % (sBo[0], sW), 's_lshl_b32 s%d, s%d, 8' % (sT2, sH),
          's_add_u32 s%d, s%d, s%d' % (sBo[0], sBo[0], sT2)]
    for j in range(1, 4):
        L.append('s_add_u32 s%d, s%d, %d' % (sBo[j], sBo[0], j * 32768))
    for j in range(8):
        L.append('s_mov_b32 s%d, %d' % (sSt[j], j * 4096))
    L += ['s_movk_i32 s%d, 1024' % sT2]
    L += a_addr_setup(vA0, vA1, vRA, 1024, sT2, sMA, t0, t1)
    L += b256_addr_setup(vB, vRB, 13, t0, t1, t2)
    L += ['v_lshlrev_b32 v%d, 4, v1' % vST]
    L += ['s_lshl_b32 s%d, s2, 2' % sT2, 's_add_u32 s%d, s%d, s%d' % (sT2, sT2, sW), 's_lshl_b32 s%d, s%d, 1' % (sT2, sT2),
          'v_lshrrev_b32 v%d, 5, v1' % t0, 'v_add_u32 v%d, s%d, v%d' % (t0, sT2, t0),
          's_movk_i32 s%d, 1280' % sT2,
          'v_mul_lo_u32 v%d, v%d, s%d' % (t0, t0, sT2),
          'v_and_b32 v%d, 31, v1' % t1,
          'v_lshl_add_u32 v%d, v%d, 4, v%d' % (vLN, t1, t0),
          'v_lshl_add_u32 v%d, v%d, 3, v%d' % (vLN + 1, t1, t0)]
    L += ['s_waitcnt lgkmcnt(0)']
    L += srd(S_X, P, P + 1, 2048 * 1280) + srd(S_C, P + 2, P + 3, 2048 * 1024)
    L += srd(S_UK, P + 4, P + 5, 512 * 8192) + srd(S_UV, P + 6, P + 7, 512 * 8192)
    LNL, LNX, LNT = 32, 48, 72
    doln = not opt.get('noln')
    if doln:
        L += ['buffer_load_dwordx4 v[%d:%d], v%d, s[%d:%d], 0 offen' % (LNL, LNL + 3, vLN, S_X, S_X + 3),
              'buffer_load_dwordx4 v[%d:%d], v%d, s[%d:%d], 0 offen offset:512' % (LNL + 4, LNL + 7, vLN, S_X, S_X + 3),
              'buffer_load_dwordx2 v[%d:%d], v%d, s[%d:%d], 0 offen offset:1024' % (LNL + 8, LNL + 9, vLN + 1, S_X, S_X + 3)]
    L += g.prologue_dma()
    L += ['s_lshl_b32 s%d, s%d, 5' % (sT2, sH), 's_add_u32 s%d, s%d, s%d' % (sT2, sT2, sT),
          's_lshl_b32 s%d, s%d, 15' % (sT2, sT2),
          's_add_u32 s%d, s%d, s%d' % (S_KV, P + 8, sT2), 's_addc_u32 s%d, s%d, 0' % (S_KV + 1, P + 9),
          's_mov_b32 s%d, 32768' % (S_KV + 2), 's_mov_b32 s%d, 0x00020000' % (S_KV + 3),
          's_add_u32 s%d, s%d, 0x%x' % (S_XN, P + 8, WS_XN), 's_addc_u32 s%d, s%d, 0' % (S_XN + 1, P + 9),
          's_mov_b32 s%d, %d' % (S_XN + 2, 2048 * 1280), 's_mov_b32 s%d, 0x00020000' % (S_XN + 3)]
    if doln:
        L += layernorm(LNL, LNX, LNT, sMask)
        L += ['buffer_store_dwordx4 v[%d:%d], v%d, s[%d:%d], 0 offen' % (LNL, LNL + 3, vLN, S_XN, S_XN + 3),
              'buffer_store_dwordx4 v[%d:%d], v%d, s[%d:%d], 0 offen offset:512' % (LNL + 4, LNL + 7, vLN, S_XN, S_XN + 3),
              'buffer_store_dwordx2 v[%d:%d], v%d, s[%d:%d], 0 offen offset:1024' % (LNL + 8, LNL + 9, vLN + 1, S_XN, S_XN + 3)]
    L += stamp(1, SO)
    pr = g.prologue_reads()
    L += pr[:2] + stamp(2, SO) + pr[2:]
    mf, fill = g.body(read_span=opt.get('read_span', (0, 12)), bar_gap=opt.get('bar_gap', 1),
                      dma_span=opt.get('dma_span', (2, 30)), nodma=opt.get('nodma', False), drain=opt.get('drain', False))
    L += interleave(mf, fill)
    L += stamp(3, SO)
    flags = opt.get('stflags', '')
    def tile_out(nb, mb):
        i = nb * 2 + mb
        o = []
        if i < 14:
            r = 32 + i * 16
        else:
            r = 16 if i == 14 else 32
            o += ['v_accvgpr_read_b32 v%d, a%d' % (r + k, (i - 14) * 16 + k) for k in range(16)]
        for k in range(8):
            o.append('v_cvt_pk_bf16_f32 v%d, v%d, v%d' % (r + k, r + 2 * k, r + 2 * k + 1))
            if k in (3, 7):
                half = k >> 2
                if nb < 4:
                    off = (mb * 8 + nb * 2 + half) * 1024
                else:
                    off = 16384 + ((nb - 4) * 4 + mb * 2 + half) * 1024
                if not opt.get('nostore'):
                    o.append('buffer_store_dwordx4 v[%d:%d], v%d, s[%d:%d], s%d offen offset:%d %s' %
                             (r + half * 4, r + half * 4 + 3, vST, S_KV, S_KV + 3, sSt[off >> 12], off & 4095, flags))
        return o
    for nb in range(8):
        for mb in range(2):
            L += tile_out(nb, mb)
    L += stamp(4, SO)
    if SO: L += ['s_waitcnt vmcnt(0)']
    L += stamp(5, SO) + stamp(7, SO, True) + stamps_out(8, SO, P + 8, sW)
    L += ['%s_end:' % name, 's_endpgm']
    out, st = process(L, stats=stats)
    return out, 512, 256

if __name__ == '__main__':
    stats = []
    out, _, _ = build(stats=stats)
    print('\n'.join(out))
    import sys
    print(stats, file=sys.stderr)
```

```python
import sys, build
from attn import *
NAME = 'recurrent_scan__compressed_kv_cla__geglu_ffn__prompt_kernel'
def write(opt, path, cls=KA):
    k = cls(NAME, opt)
    k.lab = lambda s: 'L_' + s
    out = k.build([])
    t = build.HEADER.rstrip('\n').split('\n')
    t.append('; @launch grid=(256,1,1) block=(256,1,1) lds=163840')
    t.append('.amdgcn_target "amdgcn-amd-amdhsa--gfx950"')
    t += ['.text', '.globl %s' % NAME, '.p2align 12', '.p2align 8', '.type %s,@function' % NAME, '%s:' % NAME]
    t += [l if l.endswith(':') else ' ' + l for l in out]
    t.append('.section .rodata,"a"')
    t += descriptor(NAME, 512, 256, 102)
    open(path, 'w').write('\n'.join(t) + '\n')
if __name__ == '__main__':
    write({'codepf_n': 3, 'dsp': 4, 'rot2': 'i', 'wpf': 1}, 'recurrent_scan__compressed_kv_cla__geglu_ffn__prompt.s')
```

```python
from asmlib import *
from fused import *

sK, sM, sN, sTI, sX, sXe, sCL, sEv, sRedo, sStage = range(64, 74)
sTri = [84, 86, 92, 94]
sCtL, sCtH, sRho = 91, 96, 97
vK, vV, vD1, vD2, vD3, vBig = 4, 5, 6, 7, 24, 25
CP = 8
QL = 32
SB = [64, 96]
PB = 128
CG = [144, 160]
O0, L0 = 176, 240
KF, QH, O1, L1, ONES, VF, QP = 0, 32, 64, 128, 136, 192, 224

class KA(K):
    def qreg(self, mode, q, ds):
        if q >= 2: return ar(QH + ((q - 2) * 4 + ds) * 4, 4)
        return vr(QL + (q * 4 + ds) * 4, 4) if mode == 'D' else ar(QP + (q * 4 + ds) * 4, 4)
    def creg(self, mode, q, kb):
        b = CG[1] if q >= 2 else CG[0] if mode == 'D' else CP
        return b + ((q & 1) * 2 + kb) * 4
    def oreg(self, q, db):
        off = ((db >> 1) * 2 + (q & 1)) * 8 + (db & 1) * 4
        return vr(O0 + off, 4) if q < 2 else ar(O1 + off, 4)
    def lreg(self, q):
        return vr(L0 + 4 * q, 4) if q < 2 else ar(L1 + 4 * (q - 2), 4)
    def qk(self, mode, u):
        out = []
        for m in range(32):
            ds, kb = m >> 3, (m >> 2) & 1
            q = (m & 3) if kb == 0 else 3 - (m & 3)
            d = vr(SB[u] + (q * 2 + kb) * 4, 4)
            out.append('%s %s, %s, %s, %s' % (MF, d, ar(KF + (kb * 4 + ds) * 4, 4), self.qreg(mode, q, ds), vr(self.creg(mode, q, kb), 4) if ds == 0 else d))
        return out
    def pv(self, zero=False, qs=(0, 1, 2, 3)):
        out = []
        for db in range(-1, 8):
            for q in (qs if db & 1 else reversed(qs)):
                d = self.lreg(q) if db < 0 else self.oreg(q, db)
                out.append('%s %s, %s, %s, %s' % (MF, d, ar(ONES if db < 0 else VF + db * 4, 4), vr(PB + 4 * q, 4), '0' if zero else d))
        return out
    def kread(self, u, kb, ds): return 'ds_read_b128 %s, v%d offset:%d' % (ar(KF + (kb * 4 + ds) * 4, 4), vK, ((2 * u + kb) * 4 + ds) * 1024)
    def vread(self, u, db): return 'ds_read_b128 %s, v%d offset:%d' % (ar(VF + db * 4, 4), vV, 16384 + (u * 8 + db) * 1024)
    def cvts(self, u): return ['v_cvt_pk_bf16_f32 v%d, v%d, v%d' % (PB + e, SB[u] + 2 * e, SB[u] + 2 * e + 1) for e in range(16)]
    def exps(self, u):
        o = []
        for kb, q in [(0, 0), (0, 1), (0, 2), (0, 3), (1, 3), (1, 2), (1, 1), (1, 0)]:
            r = SB[u] + (q * 2 + kb) * 4
            o += ['v_exp_f32 v%d, v%d' % (r + e, r + e) for e in range(4)]
        return o
    def tri(self, c):
        return ['v_cndmask_b32 v%d, v%d, v%d, s[%d:%d]' % (c + b + r, vBig, c + b + r, sTri[r], sTri[r] + 1) for b in (0, 12) for r in range(4)] + \
               ['v_mov_b32 v%d, v%d' % (c + 4 + r, vBig) for r in range(4)]
    def allm(self, c): return ['v_mov_b32 v%d, v%d' % (c + r, vBig) for r in range(16)]
    def hookD(self, tag):
        a, b, c = self.lab('hd' + tag), self.lab('hdr' + tag), self.lab('hda' + tag)
        self.ool.append([a + ':', 's_cmp_eq_u32 s%d, 0' % sStage, 's_cbranch_scc0 %s' % c] + self.tri(CG[0]) +
                        ['s_mov_b32 s%d, 1' % sStage, 's_mov_b32 s%d, 0' % sCL, 's_branch %s' % b,
                         c + ':'] + self.allm(CG[0]) + ['s_movk_i32 s%d, 1000' % sCL, 's_nop 0', 's_branch %s' % b])
        return ['s_sub_u32 s%d, s%d, 1' % (sCL, sCL), 's_cbranch_scc1 %s' % a, b + ':']
    def kv_dma(self, mode):
        def four(v): return ['buffer_load_dwordx4 v%d, %s, s%d offen offset:%d sc1 lds' % (v, s4(S_A), sK, k * 1024) for k in range(4)]
        it = ['s_add_u32 m0, s%d, 0x4000' % sM] + four(vD1)
        if mode == 'S': it += ['s_add_u32 m0, s%d, 0xc000' % sM] + four(vD3)
        it += ['s_xor_b32 s%d, s%d, 0x10000' % (sM, sM), 's_add_u32 s%d, s%d, %s' % (sK, sK, 's%d' % sTI if mode == 'D' else '0x10000'),
               's_mov_b32 m0, s%d' % sM] + four(vA[0])
        if mode == 'S': it += ['s_add_u32 m0, s%d, 0x8000' % sM] + four(vD2)
        return it

    def finalize(self, sC, bit):
        L = []
        if bit:
            L += ['v_max_f32 v%d, v%d, v%d' % (L0 + 1, L0, L0 + 4), 'v_add_f32 v%d, v%d, v%d' % (L0 + 2, L0, L0 + 4),
                  'v_cmp_gt_f32 vcc, 0x5f800000, v%d' % (L0 + 2), 's_cmp_eq_u64 vcc, -1', 's_cselect_b32 s3, 0, %d' % bit, 's_or_b32 s%d, s%d, s3' % (sRedo, sRedo)]
            L.pop(0)
        L += ['v_rcp_f32 v%d, v%d' % (L0, L0), 'v_rcp_f32 v%d, v%d' % (L0 + 4, L0 + 4), 's_mov_b32 s3, s%d' % sC]
        for ds in range(4):
            if ds == 2: L.append('s_add_u32 s3, s3, 0x2000')
            for q in range(2):
                b = O0 + (ds * 2 + q) * 8
                L += ['v_pk_mul_f32 v[%d:%d], v[%d:%d], v[%d:%d] op_sel_hi:[1,0]' % (b + 2 * e, b + 2 * e + 1, b + 2 * e, b + 2 * e + 1, L0 + 4 * q, L0 + 4 * q + 1) for e in range(4)]
                L += ['v_cvt_pk_bf16_f32 v%d, v%d, v%d' % (b + e, b + 2 * e, b + 2 * e + 1) for e in range(4)]
                L += [('buffer_store_dwordx4 v[%d:%d], v%d, %s, s3 offen offset:%d sc1' % (b, b + 3, vA[ds & 1], s4(S_ST), q * 1024), 'ctx')]
        return L
    def zero0(self): return ['v_mov_b64 v[%d:%d], 0' % (r, r + 1) for r in range(O0, L0 + 8, 2)]

    def body(self, mode, first=False):
        o = self.opt
        S = Stream()
        for l in self.qk(mode, 0): S.add(l)
        if not first:
            for l in self.pv(): S.add(l)
        b1 = S.n()
        for l in self.qk(mode, 1) + self.pv(zero=first): S.add(l)
        tag = ('f' if first else '') + mode
        for base, u in ((0, 1), (b1, 0)):
            for m in range(8):
                S.at(base + 4 * m + 3, self.kread(u, m & 1, m >> 1))
        BAR = 31 if first else o.get('abar', 39)
        tog = ['v_mov_b32 v%d, v%d' % (vV, vK), 'v_xor_b32 v%d, %s, v%d' % (vK, 's%d' % sX if mode == 'D' else '0x10000', vK)]
        e0 = self.exps(0)
        if first:
            S.flow(e0[:3], 28)
            S.at(31, e0[3:27] + tog + self.hookD(tag + '1') + ['s_waitcnt vmcnt(0) lgkmcnt(0)', 's_barrier'] + self.flag(3))
            e0 = e0[27:]
        else:
            S.at(BAR, ['s_waitcnt vmcnt(0) lgkmcnt(0)', 's_barrier'])
            S.at(b1 - 2, tog)
            if mode == 'D':
                S.at(-1, self.hookD(tag + '0'))
                S.at(b1 - 1, self.hookD(tag + '1'))
            else:
                S.at(b1 - 1, ['s_cmp_lg_u32 s%d, 0' % sEv, 's_cbranch_scc1 %s' % self.lab('hmid'), self.lab('hmidr') + ':'])
            c = self.cvts(1)
            vr_ = [self.vread(1, db) for db in range(8)]
            S.flow([x for k in range(8) for x in (vr_[k], c[2 * k], c[2 * k + 1])], 0)
        if not first:
            S.at(S.n() - 1, ['s_sub_u32 s%d, s%d, 1' % (sN, sN), 's_cbranch_scc0 %s' % self.lab('top' + mode)])
        dm = self.kv_dma(mode)
        if o.get('dsp') and not first:
            sp = o['dsp'] if mode == 'S' else o.get('dspD', o['dsp'])
            g = BAR + 1
            pend = []
            k = 0
            for l in dm:
                if l.startswith('s_'):
                    S.at(g if k == 0 else gp, l)
                    if k and S.load[gp] >= 8: gp += 1
                else:
                    gp = BAR + 2 + int(k * sp)
                    while S.load.get(gp, 0) > 4: gp += 1
                    S.at(gp, l, front=True); k += 1
                    if S.load[gp] >= 8: gp += 1
            ge = S.flow(e0, 28)
            it = [self.vread(0, db) for db in range(8)]
        else:
            n0 = 0 if first else o.get('dma0', 6)
            g = BAR + 1
            for k in range(0, n0, 2):
                S.at(g, dm[k:k + 2]); g += o.get('dma0s', 3)
            ge = S.flow(e0, 32 if first else 28)
            vr_ = [self.vread(0, db) for db in range(8)]
            rest = dm[n0:]
            it = []
            while vr_ or rest:
                if rest: it.append(rest.pop(0))
                if rest: it.append(rest.pop(0))
                if vr_: it.append(vr_.pop(0))
        g = S.flow(self.exps(1), b1 + 28)
        assert g < S.n(), g
        c = self.cvts(0)
        g = b1 + 30
        for l in reversed(c):
            while S.load.get(g, 0) + 4 > 8: g -= 1
            S.at(g, l, front=True)
        assert g > ge or first, (g, ge)
        gl = S.flow(it, b1, gmax=b1 + 30)
        if o.get('verbose'): print(tag, 'exp0 end', ge - b1, 'cvt start', g - b1, 'dma end', gl - b1, 'over', [(k, v) for k, v in sorted(S.load.items()) if v > 8])
        return S.lines()

    def attn_pro(self):
        L = ['v_add_u32 v%d, 0x4000, v%d' % (vD1, vA[0]), 'v_add_u32 v%d, 0x8000, v%d' % (vD2, vA[0]), 'v_add_u32 v%d, 0xc000, v%d' % (vD3, vA[0]),
             'v_mov_b32 v%d, v%d' % (vK, vA[0]), 'v_mov_b32 v%d, 0xf149f2ca' % vBig,
             'v_lshrrev_b32 v8, 4, v1', 'v_and_b32 v9, 15, v1', 'v_lshlrev_b32 v10, 8, v8', 'v_lshlrev_b32 v8, 2, v8', 'v_sub_u32 v8, v8, v9',
             'v_mov_b32 v9, 0x3f803f80']
        L += ['v_cmp_ge_i32 s[%d:%d], %d, v8' % (sTri[r], sTri[r] + 1, -r) for r in range(4)]
        L += ['v_accvgpr_write_b32 a%d, v9' % (ONES + e) for e in range(4)]
        L += ['s_lshl_b32 s3, s%d, 12' % sW, 's_add_u32 s%d, s3, 0x8000' % sK, 's_add_u32 s%d, s3, 0x10000' % sM,
              's_mov_b32 s%d, 0x8000' % sTI, 's_mov_b32 s%d, 0x10000' % sX,
              's_and_b32 s%d, s%d, 1' % (sXe, sW), 's_lshl_b32 s%d, s%d, 15' % (sXe, sXe), 's_add_u32 s%d, s%d, 0x10000' % (sXe, sXe),
              's_lshl_b32 s%d, s%d, 2' % (sCL, sI), 's_add_u32 s%d, s%d, s%d' % (sCL, sCL, sW),
              's_lshl_b32 s%d, s%d, 1' % (sN, sI), 's_mov_b32 s%d, 0' % sRedo, 's_mov_b32 s%d, 0' % sStage,
              's_sub_u32 s3, 16, s%d' % sI, 's_lshl_b32 s%d, s3, 16' % (S_A + 2)]
        L += ['s_lshr_b32 s3, s%d, 1' % sW, 's_lshl_b32 s3, s3, 5', 's_add_u32 s3, s3, s%d' % sH, 's_lshl_b32 s3, s3, 14',
              's_lshl_b32 s%d, s%d, 20' % (sCtL, sI), 's_sub_u32 s%d, 0x%x, s%d' % (sCtH, 15 << 20, sCtL),
              's_add_u32 s%d, s%d, s3' % (sCtL, sCtL), 's_add_u32 s%d, s%d, s3' % (sCtH, sCtH),
              's_and_b32 s3, s%d, 1' % sW, 's_lshl_b32 s3, s3, 11', 's_add_u32 s%d, s%d, s3' % (sCtL, sCtL),
              's_xor_b32 s3, s3, 0x800', 's_add_u32 s%d, s%d, s3' % (sCtH, sCtH)]
        L += srd_off(S_ST, pWS, WS_CTX, 16 << 20)
        L += [('@vmwait', 'dma19'), 's_waitcnt lgkmcnt(0)', 's_barrier']
        L += ['ds_read_b128 v[%d:%d], v10 offset:%d' % (96 + 4 * ds, 99 + 4 * ds, ds * 1024) for ds in range(4)]
        L += ['ds_read_b128 %s, v%d offset:%d' % (ar(QH + 4 * f, 4), vT0, f * 1024) for f in range(8)]
        L += ['v_xor_b32 v%d, 0x80008000, v%d' % (96 + e, 96 + e) for e in range(16)]
        L += ['ds_read_b128 %s, v%d offset:%d' % (ar(QP + 4 * f, 4), vT1, f * 1024) for f in range(8)]
        S = Stream()
        grp = [('D', 0), ('D', 1), ('D', 2), ('D', 3), ('S', 0), ('S', 1)]
        for half in (grp[:2], grp[2:4], grp[4:]):
            for ds in range(4):
                for mode, q in half:
                    d = vr(self.creg(mode, q, 0), 4)
                    S.add('%s %s, %s, %s, %s' % (MF, d, vr(96 + 4 * ds, 4), self.qreg(mode, q, ds), '0' if ds == 0 else d))
        for m in range(8): S.at(m, self.kread(0, m & 1, m >> 1))
        for n, (mode, q) in enumerate(grp):
            c = self.creg(mode, q, 0)
            S.at(min(23, (n >> 1) * 8 + 12 + 2 * (n & 1)), ['v_mov_b64 v[%d:%d], v[%d:%d]' % (c + 4 + e, c + 5 + e, c + e, c + 1 + e) for e in (0, 2)])
        L += S.lines()
        L += self.hookD('p')
        return L

    def attention(self, st, stats, lazy):
        out = []
        def run(lines, st):
            o, st = process(lines, st, stats=stats, lazy=lazy)
            return o, st
        def loop(lines, st):
            o1, st1 = process(lines, st, lazy=lazy); o2, st2 = run(lines, st1)
            assert st1.sig() == st2.sig()
            assert process(o2, st, pad=False)[0] == o2 and process(o2, st2, pad=False)[0] == o2
            return o2, st2
        o, st = run(self.attn_pro() + self.stamp(16) + self.body('D', True), st); out += o
        ent = ['s_sub_u32 s%d, s%d, 1' % (sN, sN), 's_cbranch_scc1 %s' % self.lab('postD')]
        o, st = run(ent, st); out += o
        bd = [self.lab('topD') + ':'] + self.body('D')
        o2, st = loop(bd, st); out += o2
        post = [self.lab('postD') + ':', 's_cmp_eq_u32 s%d, 0x8000' % sTI, 's_mov_b32 s%d, 0x10000' % sTI, 's_mov_b32 s%d, s%d' % (sX, sXe), 's_mov_b32 s%d, 0' % sN,
                's_cbranch_scc1 %s' % self.lab('topD')]
        post += self.stamp(17)
        post += ['s_mov_b32 s%d, 1' % sEv, 's_mov_b32 s%d, 0' % sStage, 's_lshl_b32 s3, s%d, 1' % sI, 's_sub_u32 s%d, 13, s3' % sN, 's_cbranch_scc1 %s' % self.lab('postS')]
        o, st = run(post, st); out += o
        bs = [self.lab('topS') + ':'] + self.body('S')
        o2, st = loop(bs, st); out += o2
        post = [self.lab('postS') + ':', 's_cmp_eq_u32 s%d, 0' % sStage, 's_cbranch_scc1 %s' % self.lab('hs0')]
        o, st = run(post, st); out += o
        lb = self.lab
        self.ool.append([lb('hs0') + ':', 's_mov_b32 s%d, 1' % sStage, 's_mov_b32 s%d, 0' % sN, 's_or_b32 s%d, s%d, 2' % (sEv, sEv),
                         's_cmp_eq_u32 s%d, 2' % sW, 's_cbranch_scc1 %s' % lb('topS'),
                         's_cmp_eq_u32 s%d, 1' % sW, 's_cbranch_scc1 %s' % lb('hs0a'),
                         's_cmp_eq_u32 s%d, 3' % sW, 's_cbranch_scc1 %s' % lb('hs0b')] + self.tri(CG[1]) + ['s_nop 0', 's_branch %s' % lb('topS'),
                         lb('hs0a') + ':'] + self.allm(CG[1]) + self.allm(CP) + ['s_nop 0', 's_branch %s' % lb('topS'),
                         lb('hs0b') + ':'] + self.tri(CP) + ['s_nop 0', 's_branch %s' % lb('topS')])
        self.ool.append([lb('hmid') + ':', 's_bitcmp1_b32 s%d, 0' % sEv, 's_cbranch_scc0 %s' % lb('hm1'), 's_nop 7'] + self.finalize(sCtL, 1) + self.zero0() +
                        [lb('hm1') + ':', 's_bitcmp1_b32 s%d, 1' % sEv, 's_mov_b32 s%d, 0' % sEv, 's_cbranch_scc0 %s' % lb('hmidr'),
                         's_cmp_eq_u32 s%d, 0' % sW, 's_cbranch_scc1 %s' % lb('hm2'),
                         's_cmp_eq_u32 s%d, 3' % sW, 's_cbranch_scc0 %s' % lb('hmidr')] + self.tri(CG[1]) + self.allm(CP) + ['s_nop 0', 's_branch %s' % lb('hmidr'),
                         lb('hm2') + ':'] + self.allm(CG[1]) + self.tri(CP) + ['s_nop 0', 's_branch %s' % lb('hmidr')])
        o, st = run(self.stamp(18) + self.attn_tail(), st); out += o
        return out, st

    def attn_tail(self):
        L = [self.vread(1, db) for db in range(8)]
        c = self.cvts(1)
        L += c[8:]
        S = Stream()
        for l in self.pv(qs=(2, 3)) + self.pv(qs=(0, 1)): S.add(l)
        ad = ['s_lshl_b32 s%d, s%d, 15' % (sT0, sW), 's_add_u32 s%d, s%d, 0x10000' % (sT0, sT0), 's_lshl_b32 s%d, s%d, 14' % (sT1, sW), 's_add_u32 s%d, s%d, 0x18000' % (sT1, sT1),
              ['s_cmp_lt_u32 s%d, 2' % sW, 's_cselect_b32 s%d, s%d, s%d' % (sT0, sT0, sT1), 's_cselect_b32 s%d, 1, 0' % sT1], 's_lshl_b32 s%d, 0x4000, s%d' % (sT1, sT1),
              'v_add_u32 v%d, s%d, v%d' % (vT0, sT0, vA[0]), 'v_xor_b32 v%d, s%d, v%d' % (vT1, sT1, vT0),
              's_lshl_b32 s%d, s%d, 12' % (sT0, sW), 's_add_u32 s%d, s%d, 0x14000' % (sT0, sT0), 'v_add_u32 v%d, s%d, v%d' % (vK, sT0, vA[0]), 'v_xor_b32 v%d, 0x1000, v%d' % (vV, vK),
              's_lshl_b32 s%d, s%d, 13' % (sT0, sW), 'v_lshlrev_b32 v%d, 7, v1' % vPA, 'v_add_u32 v%d, s%d, v%d' % (vPA, sT0, vPA)] + self.poll_issue()
        S.flow(c[:8] + ad, 0)
        wr = ['ds_write_b128 v%d, %s offset:%d' % (vT0, ar(O1 + 4 * t, 4), t * 1024) for t in range(16)]
        S.flow(wr, 21, cap=4, gmax=35)
        L += S.lines()
        L += ['s_waitcnt vmcnt(0)'] + ['ds_write_b128 v%d, %s offset:%d' % (vK, ar(L1 + 4 * q, 4), q * 1024) for q in range(2)]
        L += self.poll_check(3) + ['s_waitcnt lgkmcnt(0)', 's_barrier']
        L += ['ds_read_b32 v%d, v%d offset:%d' % (PB + q, vV, q * 1024) for q in range(2)]
        L += ['ds_read_b128 v[%d:%d], v%d offset:%d' % (64 + 4 * t, 67 + 4 * t, vT1, t * 1024) for t in range(16)]
        L += ['v_add_f32 v%d, v%d, v%d' % (L0 + 4 * q, L0 + 4 * q, PB + q) for q in range(2)]
        L += ['v_pk_add_f32 v[%d:%d], v[%d:%d], v[%d:%d]' % (O0 + e, O0 + e + 1, O0 + e, O0 + e + 1, 64 + e, 65 + e) for e in range(0, 64, 2)]
        L += self.finalize(sCtH, 2)
        L += ['s_cmp_lg_u32 s%d, 0' % sRedo, 's_cbranch_scc1 %s' % self.lab('redo'), self.lab('redor') + ':']
        self.slow()
        return L

    def slow(self):
        lb = self.lab
        C = CG[0]
        sO, sC, sJ = sK, sM, sN
        B = [lb('redo') + ':', 's_waitcnt vmcnt(0)', 's_bitcmp1_b32 s%d, 0' % sRedo, 's_cbranch_scc0 %s' % lb('rd2'),
             's_andn2_b32 s%d, s%d, 1' % (sRedo, sRedo), 's_lshl_b32 s%d, s%d, 2' % (sRho, sI), 's_add_u32 s%d, s%d, s%d' % (sRho, sRho, sW),
             's_mov_b32 s%d, s%d' % (sC, sCtL), 's_branch %s' % lb('sl0'),
             lb('rd2') + ':', 's_bitcmp1_b32 s%d, 1' % sRedo, 's_cbranch_scc0 %s' % lb('redor'),
             's_mov_b32 s%d, 0' % sRedo, 's_lshl_b32 s%d, s%d, 2' % (sRho, sI), 's_sub_u32 s%d, 60, s%d' % (sRho, sRho), 's_xor_b32 s3, s%d, 1' % sW,
             's_add_u32 s%d, s%d, s3' % (sRho, sRho), 's_mov_b32 s%d, s%d' % (sC, sCtH)]
        B += ['v_accvgpr_read_b32 v%d, a%d' % (QL + e, QP + e) for e in range(32)]
        B += [lb('sl0') + ':']
        def head(name):
            return ['s_mov_b32 s%d, 0' % sJ, lb(name) + ':', 's_lshr_b32 s%d, s%d, 1' % (sO, sJ), 's_lshl_b32 s%d, s%d, 15' % (sO, sO), 's_and_b32 s3, s%d, 1' % sJ,
                    's_lshl_b32 s3, s3, 13', 's_add_u32 s%d, s%d, s3' % (sO, sO)] + \
                   ['buffer_load_dwordx4 %s, v%d, %s, s%d offen offset:%d sc1' % (ar(KF + 4 * f, 4), vA[f >> 2], s4(S_A), sO, (f & 3) * 1024) for f in range(8)]
        def mask(name):
            return ['s_cmp_eq_u32 s%d, s%d' % (sJ, sRho), 's_cbranch_scc0 %s' % lb(name)] + self.tri(C) + [lb(name) + ':', 's_nop 1']
        qk = [l for l in self.qk('D', 0) if l.split(',')[2].strip().startswith('v')]
        assert len(qk) == 16
        def tail(name):
            return ['s_add_u32 s%d, s%d, 1' % (sJ, sJ), 's_cmp_le_u32 s%d, s%d' % (sJ, sRho), 's_nop 7', 's_cbranch_scc1 %s' % lb(name)]
        M = PB
        B += ['v_mov_b32 v%d, 0' % (C + e) for e in range(16)] + ['v_mov_b32 v%d, v%d' % (M + q, vBig) for q in range(2)]
        B += head('sl1') + mask('sl1m') + qk
        for q in range(2):
            B += ['v_max3_f32 v%d, v%d, v%d, v%d' % (M + q, M + q, SB[0] + 8 * q + 2 * e, SB[0] + 8 * q + 2 * e + 1) for e in range(4)]
        B += tail('sl1')
        for q in range(2):
            for sw in ('16', '32'):
                B += ['v_mov_b32 v%d, v%d' % (M + 2, M + q), 'v_permlane%s_swap_b32 v%d, v%d' % (sw, M + q, M + 2), 'v_max_f32 v%d, v%d, v%d' % (M + q, M + q, M + 2)]
            B += ['v_sub_f32 v%d, 0, v%d' % (C + 8 * q + e, M + q) for e in range(8)]
        B += self.zero0()
        B += head('sl2') + ['s_add_u32 s%d, s%d, 0x4000' % (sO, sO)]
        B += ['buffer_load_dwordx4 %s, v%d, %s, s%d offen offset:%d sc1' % (ar(VF + 4 * f, 4), vA[f >> 2], s4(S_A), sO, (f & 3) * 1024) for f in range(8)]
        B += mask('sl2m') + qk
        B += ['v_exp_f32 v%d, v%d' % (SB[0] + e, SB[0] + e) for e in range(16)] + self.cvts(0)[:8] + self.pv(qs=(0, 1))
        B += tail('sl2')
        B += self.finalize(sC, 0) + ['s_branch %s' % lb('redo')]
        self.ool.append(B)

    def phase4(self):
        o = self.opt
        R = o.get('ring', 6)
        sRB, sCB, sB, sWo = sK, sM, sN, sTI
        S_H, S_C, S_WD, S_WO = S_B0, S_B1, S_B2, S_W
        accF, accS = 32, 112
        XR = 192
        L = ['s_and_b32 s%d, s2, 6' % sRB, 's_lshl_b32 s%d, s%d, 2' % (sRB, sRB), 's_bfe_u32 s3, s2, 0x30003', 's_add_u32 s%d, s%d, s3' % (sRB, sRB),
             's_and_b32 s%d, s2, 1' % sCB, 's_lshl_b32 s%d, s%d, 2' % (sCB, sCB), 's_lshr_b32 s3, s2, 6', 's_add_u32 s%d, s%d, s3' % (sCB, sCB),
             's_mul_i32 s%d, s%d, %d' % (sT0, sRB, 54 * 4096), 's_add_u32 s%d, s%d, 0x%x' % (sT0, sT0, WS_H),
             's_lshl_b32 s%d, s%d, 19' % (sT1, sRB), 's_add_u32 s%d, s%d, 0x%x' % (sT1, sT1, WS_CTX)]
        L += srd_off(S_H, pWS, 's%d' % sT0, 54 * 4096) + srd_off(S_WD, pWS, WS_W + (5 << 20), 54 * 40960)
        L += ['s_lshl_b32 s%d, s%d, 12' % (sB, sW), 's_mul_i32 s%d, s%d, 8' % (sWo, sW), 's_add_u32 s%d, s%d, s%d' % (sWo, sWo, sCB), 's_mul_i32 s%d, s%d, 5120' % (sWo, sWo)]
        NK = 46
        def loads(k):
            base = (k % R) * 36
            sb, sw = (S_H, S_WD) if k < 14 else (S_C, S_WO)
            it = []
            if k == 14: it += ['s_sub_u32 s%d, s%d, %d' % (sB, sB, 14 * 16384), 's_sub_u32 s%d, s%d, %d' % (sWo, sWo, 14 * 163840)]
            it += ['buffer_load_dwordx4 %s, v%d, %s, s%d offen offset:%d sc1' % (ar(base + 16 + 4 * n, 4), vA[n >> 2], s4(sw), sWo, (n & 3) * 1024) for n in range(5)]
            if k == 14: it.append(self.stamp(20) + self.poll_check(5) + self.stamp(21))
            it += ['buffer_load_dwordx4 %s, v%d, %s, s%d offen offset:%d sc1' % (ar(base + 4 * j, 4), vA[0], s4(sb), sB, j * 1024) for j in range(4)]
            it += ['s_add_u32 s%d, s%d, 16384' % (sB, sB), 's_add_u32 s%d, s%d, 163840' % (sWo, sWo)]
            return it
        for k in range(R - 1): L += flat(loads(k))
        L += srd_off(S_C, pWS, 's%d' % sT1, 128 * 4096) + srd_off(S_WO, pWS, WS_W, 128 * 40960)
        L += ['s_lshr_b32 s%d, s%d, 1' % (sT0, sRB), 's_sub_u32 s%d, 15, s%d' % (sT1, sT0), 's_min_u32 s%d, s%d, s%d' % (sT0, sT0, sT1), 's_lshl_b32 s%d, s%d, 12' % (sT0, sT0),
              'v_and_b32 v%d, 31, v1' % vPA, 'v_lshlrev_b32 v%d, 7, v%d' % (vPA, vPA), 'v_add_u32 v%d, s%d, v%d' % (vPA, sT0, vPA)]
        L += [('@vmwait', 'ctx'), 's_barrier'] + self.flag(5) + self.stamp(19)
        S = Stream()
        for k in range(NK):
            base = (k % R) * 36
            acc = accF if k < 14 else accS
            for n in range(5):
                for j in (range(4) if n % 2 == 0 else reversed(range(4))):
                    d = vr(acc + (j * 5 + n) * 4, 4)
                    S.add('%s %s, %s, %s, %s' % (MF, d, ar(base + 16 + 4 * n, 4), ar(base + 4 * j, 4), '0' if k in (0, 14) else d))
        for k in range(NK):
            if k + R - 1 < NK:
                g = k * 20
                for x in loads(k + R - 1):
                    S.at(g, x); g += 1 if isinstance(x, str) and x.startswith('s_') else 2
                    g = min(g, k * 20 + 19)
        S.at((14 - R) * 20 + 1, self.poll_issue())
        vO = 4
        xa = ['s_lshl_b32 s%d, s%d, 2' % (sT0, sRB), 's_add_u32 s%d, s%d, s%d' % (sT0, sT0, sW), 's_mul_i32 s%d, s%d, %d' % (sT0, sT0, 16 * 1280),
              's_mul_i32 s%d, s%d, 160' % (sT1, sCB), 's_add_u32 s%d, s%d, s%d' % (sT0, sT0, sT1),
              'v_and_b32 v%d, 15, v1' % vO, 'v_mul_u32_u24 v%d, 1280, v%d' % (vO, vO), 'v_lshrrev_b32 v5, 4, v1', 'v_lshl_add_u32 v%d, v5, 3, v%d' % (vO, vO),
              'v_add_u32 v%d, s%d, v%d' % (vO, sT0, vO)] + self.keep_scc(srd(S_X, pX, pX + 1, 2048 * 1280) + srd(S_ST, pOUT, pOUT + 1, 2048 * 1280))
        xa += ['buffer_load_dwordx2 v[%d:%d], v%d, %s, 0 offen offset:%d' % (XR + 2 * n, XR + 2 * n + 1, vO, s4(S_X), n * 32) for n in range(5)]
        xa += ['s_mul_i32 s%d, s%d, 10240' % (sT0, sW), 'v_add_u32 v5, s%d, v%d' % (sT0, vA[0]), 'v_add_u32 v6, 0x%x, v5' % 81920,
               's_lshl_b32 s%d, s%d, 2' % (sT0, sT0), 'v_add_u32 v7, s%d, v%d' % (sT0, vA[0])]
        g = S.flow(xa, (NK - R + 1) * 20)
        wr = lambda acc, sel: ['ds_write_b128 v%d, v[%d:%d] offset:%d' % (5 + (j >> 1), acc + (j * 5 + n) * 4, acc + (j * 5 + n) * 4 + 3, (j & 1) * 40960 + (sel * 5 + n) * 1024)
                               for j in range(4) for n in range(5)]
        S.flow(wr(accF, 0), g + 1, cap=4)
        L += S.lines() + self.stamp(22)
        L += wr(accS, 1) + ['s_waitcnt lgkmcnt(0)', 's_barrier']
        for t in range(10):
            L += ['ds_read_b128 v[%d:%d], v7 offset:%d' % (32 + (t * 4 + ww) * 4, 35 + (t * 4 + ww) * 4, ww * 10240 + t * 1024) for ww in range(4)]
        L += ['s_mov_b32 s3, 0xbfb8aa3b']
        for t in range(10):
            b = 32 + t * 16
            for x, y in ((0, 4), (8, 12), (0, 8)):
                L += ['v_pk_add_f32 v[%d:%d], v[%d:%d], v[%d:%d]' % (b + x + e, b + x + e + 1, b + x + e, b + x + e + 1, b + y + e, b + y + e + 1) for e in (0, 2)]
        for n in range(5):
            f, s, x = 32 + n * 16, 112 + n * 16, XR + 2 * n
            L += ['v_mul_f32 v%d, s3, v%d' % (f + 4 + e, f + e) for e in range(4)]
            L += ['v_exp_f32 v%d, v%d' % (f + 4 + e, f + 4 + e) for e in range(4)]
            L += ['v_lshlrev_b32 v%d, 16, v%d' % (f + 8 + 2 * e, x + e) for e in range(2)] + ['v_and_b32 v%d, s%d, v%d' % (f + 9 + 2 * e, sMask, x + e) for e in range(2)]
            L += ['v_add_f32 v%d, 1.0, v%d' % (f + 4 + e, f + 4 + e) for e in range(4)]
            L += ['v_rcp_f32 v%d, v%d' % (f + 4 + e, f + 4 + e) for e in range(4)]
            L += ['v_mul_f32 v%d, v%d, v%d' % (f + e, f + e, s + e) for e in range(4)]
            L += ['v_fma_f32 v%d, v%d, v%d, v%d' % (f + e, f + e, f + 4 + e, f + 8 + e) for e in range(4)]
            L += ['v_cvt_pk_bf16_f32 v%d, v%d, v%d' % (f + e, f + 2 * e, f + 2 * e + 1) for e in range(2)]
            L += ['buffer_store_dwordx2 v[%d:%d], v%d, %s, 0 offen offset:%d' % (f, f + 1, vO, s4(S_ST), n * 32)]
        return L

    def build(self, stats=None):
        o = self.opt
        lazy = o.get('lazy', 8)
        L = self.prologue()
        pre, S = self.gemms()
        L += [('@vmwait', 'dma0'), 's_barrier'] + self.stamp(1) + pre
        L += S.lines()
        L += self.stamp(3)
        L += self.p2_epilogue()
        L += self.stamp(4)
        out, st = process(L, stats=stats, lazy=lazy)
        oa, st = self.attention(st, stats, lazy)
        out += oa
        L = self.phase4() + self.epoch_out()
        if self.SO: L += ['s_waitcnt vmcnt(0)'] + self.stamp(13) + self.stamp(15, True) + self.stamps_out()
        L += ['s_endpgm']
        out += process(L, st, stats=stats, lazy=lazy)[0]
        for blk in self.ool:
            out += process(blk, stats=stats)[0]
        out += [self.lab('end') + ':']
        return out
```

```python
from asmlib import *
from fused import *
from attn import *

WS_P = 72 << 20
sFA, sFW, sFM, sWO, sRL, sRH, sCB, sP0, sDH = 34, [35, 36, 37, 38], 39, [40, 41, 42, 43], 44, 45, 46, 47, [None, 48, 49, 50]
S_H, S_WD, S_WO, S_P = S_B0, S_B1, S_B2, S_W
FACC, FA, FB = 140, 160, 172
vFW, vFR = 248, 249
V2, P2 = 160, 144
CXL = 32
ACCL = [64 + 8 * n for n in range(10)]
ACCH = [32, 40, 48, 56, 144, 152, 160, 168, 8, 16]
vW1, vW2, v8K, vMW, vMR, vR = 4, 5, 6, 7, 24, [30, 25]
NRING = 16
sM2, sK2 = sTI, sX
sU = [51, 54, 55, 62, 74, 88]
def tmp(lines, k):
    f = lambda l: [f(y) for y in l] if isinstance(l, list) else re.sub(r'\bs3\b', 's%d' % sU[k], l)
    return [f(l) for l in lines]

vTC = 252
AD = ['s_lshl_b32 s%d, s%d, 14' % (sM2, sW), 'v_add_u32 v%d, s%d, v%d' % (vMW, sM2, vA[0]), 'v_xor_b32 v%d, 0x4000, v%d' % (vMR, vMW), 's_xor_b32 s%d, s%d, 0x4000' % (sM2, sM2),
      's_add_u32 s%d, s%d, %d' % (sK2, sK, 144 * 1024), 'v_lshl_add_u32 v250, v1, 2, s%d' % sK2, 'v_xor_b32 v251, 0x1000, v250',
      'v_lshrrev_b32 v%d, 4, v1' % vTC, 'v_and_b32 v253, 15, v1', 'v_lshlrev_b32 v253, 7, v253', 'v_lshl_add_u32 v%d, v%d, 12, v253' % (vTC, vTC)]

class KB(KA):
    H16 = True
    MAXF = 12

    def f_setup(self):
        x, jj = sT0, sT1
        L = ['s_and_b32 s%d, s2, 7' % x, 's_bfe_u32 s%d, s2, 0x20003' % jj,
             's_and_b32 s3, s2, 1', 's_lshl_b32 s%d, s%d, 1' % (sCB, jj), 's_add_u32 s%d, s%d, s3' % (sCB, sCB),
             's_and_b32 s3, s2, 6', 's_lshl_b32 s%d, s%d, 3' % (sRL, sI), 's_sub_u32 s%d, 120, s%d' % (sRH, sRL),
             's_add_u32 s%d, s%d, s3' % (sRL, sRL), 's_xor_b32 s3, s3, 2', 's_add_u32 s%d, s%d, s3' % (sRH, sRH),
             's_cmp_lt_u32 s%d, 2' % sW, 's_cselect_b32 s%d, s%d, s%d' % (sFA, sRL, sRH), 's_and_b32 s3, s%d, 1' % sW,
             's_add_u32 s%d, s%d, s3' % (sFA, sFA), 's_mul_i32 s%d, s%d, %d' % (sFA, sFA, 54 * 1024),
             's_mul_i32 s%d, s%d, 5' % (sT2, sCB), 's_lshl_b32 s3, s%d, 2' % sW, 's_add_u32 s%d, s%d, s3' % (sT2, sT2), 's_mul_i32 s%d, s%d, 52' % (sFM, sW)]
        for k in range(4):
            L += ['s_add_u32 s3, s%d, %d' % (sFM, 13 * k), 's_lshr_b32 s3, s3, 6', 's_mul_i32 s3, s3, 35', 's_add_u32 s3, s3, s%d' % sT2, 's_lshl_b32 s%d, s3, 10' % sFW[k]]
        L += ['s_lshl_b32 s%d, s%d, 12' % (sFM, sW), 's_add_u32 s%d, s%d, 0x20000' % (sFM, sFM),
              'v_mov_b32 v%d, v%d' % (vFW, vA[0]), 'v_add_u32 v%d, 0x20000, v%d' % (vFR, vA[0])]
        L += srd_off(S_H, pWS, WS_H, 128 * 54 * 1024) + srd_off(S_WD, pWS, WS_W + (5 << 20), 54 * 40960)
        return self.keep_scc(L)
    def w_setup(self):
        x, jj = sT0, sT1
        L = ['s_bfe_u32 s%d, s2, 0x20003' % jj,
             's_lshl_b32 s%d, s%d, 2' % (sT2, sH), 's_add_u32 s%d, s%d, s%d' % (sT2, sT2, sW), 's_lshl_b32 s%d, s%d, 2' % (sT2, sT2), 's_add_u32 s%d, s%d, s%d' % (sT2, sT2, jj),
             's_mul_i32 s%d, s%d, 10240' % (sWO[0], sT2)]
        for hr in range(1, 4):
            L += ['s_add_u32 s3, s%d, %d' % (jj, hr), 's_and_b32 s3, s3, 3', 's_sub_u32 s3, s3, s%d' % jj, 's_lshl_b32 s%d, s3, 14' % sDH[hr],
                  's_mul_i32 s3, s%d, 10' % sDH[hr], 's_add_u32 s%d, s%d, s3' % (sWO[hr], sWO[0])]
        L += srd_off(S_WO, pWS, WS_W, 128 * 40960)
        return self.keep_scc(L)
    def p_setup(self):
        L = ['s_andn2_b32 s3, s2, 7', 's_add_u32 s3, s3, s%d' % sW, 's_add_u32 s3, s3, s%d' % sW, 's_mul_i32 s3, s3, 80', 's_and_b32 s%d, s2, 7' % sP0,
             's_add_u32 s3, s3, s%d' % sP0, 's_lshl_b32 s%d, s3, 10' % sP0]
        L += srd_off(S_P, pWS, WS_P, 256 * 81920)
        return self.keep_scc(L)

    def place_vm(self, S, lines, g0, sp, tag=None):
        gp, k, out = g0 - 1, 0, []
        nxt = g0
        for l in lines:
            t = l[0] if isinstance(l, tuple) else l
            if not t.startswith('buffer_'):
                while S.load.get(gp, 0) >= 8: gp += 1
                S.at(gp, l)
                nxt = max(nxt, gp + 1)
            else:
                g = nxt
                c = [y for y in range(g, g + self.opt.get('pairw', 2)) if S.load.get(y, 0) == 4]
                if c: g = c[0]
                while S.load.get(g, 0) > 4: g += 1
                S.at(g, (l, tag) if tag and not isinstance(l, tuple) else l, front=True)
                out.append(g); gp = g; nxt = g + sp
        return out

    def body2(self, mode, kind):
        o = self.opt
        first, second, last, hasf = kind == 'first', kind == 'second', kind == 'last', kind == 'loop'
        base = self.qk(mode, 0) + ([] if first else self.pv()) + self.qk(mode, 1) + self.pv(zero=first)
        b1 = 32 if first else 68
        ins = o.get('fpos', [47 + 6 * k for k in range(15)]) if hasf else []
        S = Stream(); G = {}; fg = []
        for n, l in enumerate(base):
            G[n] = S.n(); S.add(l)
            if n in ins:
                u = len(fg); fg.append(S.n())
                d = ar(FACC + 4 * (u % 5), 4)
                S.add('%s %s, %s, %s, %s' % (MF, d, ar(FB + 4 * (u % 5), 4), ar(FA + 4 * (u // 5), 4), d))
        tag = kind[0] + mode
        for b, u in ((0, 1), (b1, 0)):
            for m in range(8):
                if not (last and b): S.at(G[b + 4 * m + 3], self.kread(u, m & 1, m >> 1))
        BAR = 31 if first else o.get('abar', 39)
        tog = ['v_mov_b32 v%d, v%d' % (vV, vK), 'v_xor_b32 v%d, %s, v%d' % (vK, 's%d' % sX if mode == 'D' else '0x10000', vK)]
        if last: tog = tog[:1]
        e0 = self.exps(0)
        if first:
            S.flow(e0[:3], 28)
            S.at(31, e0[3:27] + tog + self.hookD(tag + '1') + ['s_waitcnt vmcnt(0) lgkmcnt(0)', 's_barrier'] + self.flag(3))
            e0 = e0[27:]
            fs = self.f_setup()
            g = S.flow(fs[:-8], 0)
            assert g < 28, g
        else:
            S.at(BAR, [('@vmwait', 'kv'), 's_waitcnt lgkmcnt(0)', 's_barrier'])
            S.load[BAR] = 8
            S.at(G[b1] - 2, tog)
            if mode == 'D':
                S.at(-1, self.hookD(tag + '0'))
                S.at(G[b1] - 1, self.hookD(tag + '1'))
            elif last:
                S.at(G[b1] - 1, ['s_branch %s' % self.lab('hmid'), self.lab('hmidr2') + ':'])
                S.load[G[b1] - 1] = 8
            else:
                S.at(G[b1] - 1, ['s_cmp_lg_u32 s%d, 0' % sEv, 's_cbranch_scc1 %s' % self.lab('hmid'), self.lab('hmidr') + ':'])
            c = self.cvts(1)
            vr_ = [self.vread(1, db) for db in range(8)]
            gfree = S.flow([x for k in range(8) for x in (vr_[k], c[2 * k], c[2 * k + 1])], 0)
        if hasf:
            S.at(S.n() - 1, ['s_sub_u32 s%d, s%d, 1' % (sN, sN), 's_cbranch_scc0 %s' % self.lab('top' + mode)])
            for u in range(15):
                g = BAR + 1 + u if u < 2 else fg[u - 2]
                S.at(g, 'ds_read_b128 %s, v%d offset:%d' % (ar(FB + 4 * (u % 5), 4), vFR, u * 1024))
            S.at(fg[13], 'v_xor_b32 v%d, 0x4000, v%d' % (vFR, vFR))
        fdma = ['s_mov_b32 m0, s%d' % sFM] + ['buffer_load_dwordx4 v%d, %s, s%d offen offset:%d sc1 lds' % (vFW, s4(S_WD), sFW[k], k * 1024) for k in range(4)] + \
               ['s_xor_b32 s%d, s%d, 0x4000' % (sFM, sFM), 'v_add_u32 v%d, %d, v%d' % (vFW, 3 * 40960, vFW)]
        fa = ['buffer_load_dwordx4 %s, v%d, %s, s%d offen offset:%d sc1' % (ar(FA + 4 * t, 4), vA[0], s4(S_H), sFA, t * 1024) for t in range(3)]
        sp = o['dsp'] if mode == 'S' else o.get('dspD', o['dsp'])
        vr0 = [self.vread(0, db) for db in range(8)]
        if first:
            self.place_vm(S, self.kv_dma(mode), 34, sp, 'kv')
            ge = S.flow(e0, 32)
        elif last:
            g = S.flow(self.w_setup() + ['v_add_u32 v%d, 0x2000, v%d' % (v8K, vA[0]), 's_mul_i32 s%d, s%d, 10240' % (sM, sW), 's_lshl_b32 s%d, s%d, 12' % (sK, sW)] + AD, gfree)
            assert g < BAR, g
            dm = []
            for hr in range(3):
                for n in range(10 if hr < 2 else 3):
                    if n % 4 == 0:
                        dm.append('s_add_u32 m0, s%d, %d' % (sM, 0x10000 + hr * 40960 + n * 1024) if hr < 2 else 's_add_u32 m0, s%d, %d' % (sK, 144 * 1024))
                    dm.append((self.wo_dma(hr, n), 'wo%d' % hr))
            gs = self.place_vm(S, dm, BAR + 2, sp)
            k = max(k for k, g in enumerate(gs) if g < G[b1] - 1)
            assert k < 9
            S.fill[gs[k]] = [(l[0], 'pre') if isinstance(l, tuple) and l[0].startswith('buffer_') else l for l in S.fill[gs[k]]]
            ge = S.flow(e0, G[28] + 1)
        else:
            gs = self.place_vm(S, fdma + self.kv_dma(mode), BAR + 2, sp, 'kv')
            g = gs[-1] + sp
            if second:
                S.at(BAR - 1, self.poll_check(2))
                g = o.get('gb', 124)
                S.at(g - 1, self.poll_check(3))
                S.flow(['v_accvgpr_write_b32 a%d, 0' % (FACC + e) for e in range(20)], gfree, gmax=28)
            for t in range(2):
                if hasf: g = max(g, fg[5 * t + 4])
                g = self.place_vm(S, fa[t:t + 1], g, sp)[0] + sp
            if hasf: S.flow([fa[2], 's_add_u32 s%d, s%d, 3072' % (sFA, sFA)], gfree)
            ge = S.flow(e0, G[28] + 1)
        if not last:
            g = S.flow(self.exps(1), G[b1 + 28] + 1)
            assert g < S.n(), g
        c = self.cvts(0)
        g = G[b1 + 30] if not last else G[b1 + 28]
        for l in reversed(c):
            while S.load.get(g, 0) + 4 > 8: g -= 1
            S.at(g, l, front=True)
        assert (g > ge and g >= G[b1]) or first, (g, ge)
        gl = S.flow(vr0, G[b1], gmax=G[b1 + 30])
        if first:
            pa = ['s_lshl_b32 s3, s%d, 6' % sW, 'v_add_lshl_u32 v%d, s3, v1, 7' % vPA]
            S.flow(pa + fs[-8:] + [(o.get('gp2', 90), self.poll_issue())], gl)
        if second:
            pa = ['s_lshl_b32 s3, s%d, 5' % sI, 'v_and_b32 v%d, 31, v1' % vPA, 'v_add_lshl_u32 v%d, s3, v%d, 7' % (vPA, vPA)]
            gg = S.flow(self.epoch_out() + ['s_lshl_b32 s3, s2, 5', 's_add_u32 s3, s3, s%d' % sW, 's_lshl_b32 s3, s3, 2', 's_add_u32 s3, s3, 16',
                                            'v_mov_b32 v%d, 0x7fff0000' % vFL, 'v_writelane_b32 v%d, s3, 0' % vFL] + pa, BAR + 1, gmax=80)
            gg = S.flow(self.poll_issue(), max(gg, o.get('gb', 124) - o.get('gp3', 44)), cap=12)
            assert gg < o.get('gb', 124) - 1
        if last:
            gl = S.flow(['ds_read_b128 %s, v%d offset:%d' % (ar(V2 + db * 4, 4), vV, 16384 + (8 + db) * 1024) for db in range(8)], gl, gmax=G[b1 + 31])
        if o.get('verbose'): print(tag, 'exp0 end', ge - G[b1], 'cvt start', g - G[b1], 'rd end', gl - G[b1], 'over', [(k, v) for k, v in sorted(S.load.items()) if v > 8])
        given = S if last else S.lines()
        return given

    def wo_dma(self, hr, n):
        return 'buffer_load_dwordx4 v%d, %s, s%d offen offset:%d sc1 lds' % ([vA[0], vA[1], v8K][n >> 2], s4(S_WO), sWO[hr], (n & 3) * 1024)
    def wo_lds(self, hr, ds, n):
        if hr < 2: a = 64 + (4 * hr + ds) * 10 + n
        elif hr == 2 and n < 4: a = 144 + ds * 4 + n
        elif hr == 2: a = (ds ^ 1) * 16 + n - 4
        else: a = (ds ^ 1) * 16 + 6 + n
        return [vA[0], vW1, vW2][a >> 6], (a & 63) * 1024

    def check(self, slow, t):
        return ['v_add_f32 v%d, v%d, v%d' % (t, L0, L0 + 4), 'v_cmp_gt_f32 vcc, 0x5f800000, v%d' % t, 's_cmp_eq_u64 vcc, -1',
                's_cbranch_scc0 %s' % self.lab(slow), self.lab(slow + 'r') + ':']
    def finalizeL(self):
        L = self.check('slowL', L0 + 2)
        L += ['v_rcp_f32 v%d, v%d' % (L0, L0), 'v_rcp_f32 v%d, v%d' % (L0 + 4, L0 + 4), 's_mov_b32 s3, s%d' % sCtL]
        for ds in range(4):
            if ds == 2: L.append('s_add_u32 s3, s3, 0x2000')
            for q in range(2):
                b, d = O0 + (ds * 2 + q) * 8, CXL + (ds * 2 + q) * 4
                L += ['v_pk_mul_f32 v[%d:%d], v[%d:%d], v[%d:%d] op_sel_hi:[1,0]' % (b + 2 * e, b + 2 * e + 1, b + 2 * e, b + 2 * e + 1, L0 + 4 * q, L0 + 4 * q + 1) for e in range(4)]
                L += ['v_cvt_pk_bf16_f32 v%d, v%d, v%d' % (d + e, b + 2 * e, b + 2 * e + 1) for e in range(4)]
                L += ['buffer_store_dwordx4 v[%d:%d], v%d, %s, s3 offen offset:%d sc1' % (d, d + 3, vA[ds & 1], s4(S_ST), q * 1024)]
        return L

    def slow2(self, name):
        lb = lambda s: self.lab(name + s)
        hi = name == 'slowH'
        C = 144
        SS, PP, M = (160, 8, 16) if hi else (96, 128, 136)
        Q = (lambda q, ds: ar(QP + (q * 4 + ds) * 4, 4)) if hi else (lambda q, ds: vr(QL + (q * 4 + ds) * 4, 4))
        sO, sJ = sSO, sSpin
        B = [lb('') + ':', 's_waitcnt vmcnt(0) lgkmcnt(0)', 's_lshl_b32 s%d, s%d, 2' % (sRho, sI)]
        if hi: B += ['s_sub_u32 s%d, 60, s%d' % (sRho, sRho), 's_xor_b32 s3, s%d, 1' % sW, 's_add_u32 s%d, s%d, s3' % (sRho, sRho)]
        else: B += ['s_add_u32 s%d, s%d, s%d' % (sRho, sRho, sW)]
        ld = ['buffer_load_dwordx4 %s, v%d, %s, s%d offen offset:%d sc1' % (ar(VF + 4 * f, 4), vA[f >> 2], s4(S_A), sO, (f & 3) * 1024) for f in range(8)]
        def head(n):
            return ['s_mov_b32 s%d, 0' % sJ, lb(n) + ':', 's_lshr_b32 s%d, s%d, 1' % (sO, sJ), 's_lshl_b32 s%d, s%d, 15' % (sO, sO), 's_and_b32 s3, s%d, 1' % sJ,
                    's_lshl_b32 s3, s3, 13', 's_add_u32 s%d, s%d, s3' % (sO, sO)] + ld
        def mask(n):
            return ['s_cmp_eq_u32 s%d, s%d' % (sJ, sRho), 's_cbranch_scc0 %s' % lb(n)] + self.tri(C) + [lb(n) + ':', 's_nop 1']
        qk = []
        for ds in range(4):
            for kb in range(2):
                for q in range(2):
                    d = vr(SS + (q * 2 + kb) * 4, 4)
                    qk.append('%s %s, %s, %s, %s' % (MF, d, ar(VF + (kb * 4 + ds) * 4, 4), Q(q, ds), vr(C + (q * 2 + kb) * 4, 4) if ds == 0 else d))
        def tail(n):
            return ['s_add_u32 s%d, s%d, 1' % (sJ, sJ), 's_cmp_le_u32 s%d, s%d' % (sJ, sRho), 's_nop 7', 's_cbranch_scc1 %s' % lb(n)]
        B += ['s_nop 7', 's_nop 7']
        B += ['v_mov_b32 v%d, 0' % (C + e) for e in range(16)] + ['v_mov_b32 v%d, v%d' % (M + q, vBig) for q in range(2)]
        B += head('1') + mask('1m') + qk
        for q in range(2):
            B += ['v_max3_f32 v%d, v%d, v%d, v%d' % (M + q, M + q, SS + 8 * q + 2 * e, SS + 8 * q + 2 * e + 1) for e in range(4)]
        B += tail('1')
        for q in range(2):
            for sw in ('16', '32'):
                B += ['v_mov_b32 v%d, v%d' % (M + 2, M + q), 'v_permlane%s_swap_b32 v%d, v%d' % (sw, M + q, M + 2), 'v_max_f32 v%d, v%d, v%d' % (M + q, M + q, M + 2)]
            B += ['v_sub_f32 v%d, 0, v%d' % (C + 8 * q + e, M + q) for e in range(8)]
        B += self.zero0()
        if hi:
            B += ['ds_write_b128 v%d, v[%d:%d] offset:%d' % (vMR, O0, O0 + 3, t * 1024) for t in range(16)] + ['s_waitcnt lgkmcnt(0)']
        B += head('2') + mask('2m') + qk + ['s_add_u32 s%d, s%d, 0x4000' % (sO, sO)]
        B += ['v_exp_f32 v%d, v%d' % (SS + e, SS + e) for e in range(16)] + ld
        B += ['v_cvt_pk_bf16_f32 v%d, v%d, v%d' % (PP + e, SS + 2 * e, SS + 2 * e + 1) for e in range(8)]
        B += [l.replace(vr(PB, 4), vr(PP, 4)).replace(vr(PB + 4, 4), vr(PP + 4, 4)) for l in self.pv(qs=(0, 1))]
        B += tail('2') + ['s_nop 7', 's_branch %s' % lb('r')]
        self.ool.append(B)

    def attention(self, st, stats, lazy):
        out = []
        lb = self.lab
        def run(lines, st): return process(lines, st, stats=stats, lazy=lazy)
        def ok(o, *sts):
            for s in sts:
                p = process(o, s, pad=False)[0]
                if p != o:
                    k = next(k for k in range(len(o)) if p[k] != o[k])
                    print('\n'.join(p[max(0, k - 30):k + 5])); print(s.lg, s.vm)
                assert p == o
                assert [t for t, _ in s.vm][-2:] == [None] * 2, s.vm
        def loop(lines, st):
            o1, st1 = process(lines, st, lazy=lazy); o2, st2 = run(lines, st1)
            assert st1.sig() == st2.sig()
            ok(o2, st, st2)
            return o2, st2
        lastD = ['s_mov_b32 s%d, 0x10000' % sTI, 's_mov_b32 s%d, s%d' % (sX, sXe)]
        o, st = run(self.attn_pro() + self.stamp(16) + self.body2('D', 'first') +
                    ['s_cmp_eq_u32 s%d, 0' % sI] + [l.replace('s_mov', 's_cmov') for l in lastD] + self.body2('D', 'second') +
                    ['s_waitcnt lgkmcnt(0)', 's_sub_u32 s%d, s%d, 2' % (sN, sN), 's_cbranch_scc1 %s' % lb('entS')], st); out += o
        st1 = st
        oD, st = loop([lb('topD') + ':'] + self.body2('D', 'loop'), st); out += oD
        post = ['s_cmp_eq_u32 s%d, 0x8000' % sTI] + lastD + ['s_mov_b32 s%d, 0' % sN, 's_cbranch_scc1 %s' % lb('topD')]
        o, st = run(post, st); out += o
        ok(oD, st)
        ent = [lb('entS') + ':'] + self.stamp(17) + ['s_mov_b32 s%d, 1' % sEv, 's_lshl_b32 s3, s%d, 1' % sI, 's_sub_u32 s%d, 13, s3' % sN, 's_cbranch_scc1 %s' % lb('postS')]
        o, st = run(ent, st); out += o
        st1 = process(o, st1)[1]
        stD = st
        oS, st = loop([lb('topS') + ':'] + self.body2('S', 'loop'), st); out += oS
        ok(oS, st1)
        post = [lb('postS') + ':', 's_or_b32 s%d, s%d, 2' % (sEv, sEv), 's_cmp_eq_u32 s%d, 2' % sW, 's_cbranch_scc0 %s' % lb('hs0'), lb('topL') + ':']
        self.ool.append([lb('hs0') + ':',
                         's_cmp_eq_u32 s%d, 1' % sW, 's_cbranch_scc1 %s' % lb('hs0a'),
                         's_cmp_eq_u32 s%d, 3' % sW, 's_cbranch_scc1 %s' % lb('hs0b')] + self.tri(CG[1]) + ['s_nop 0', 's_branch %s' % lb('topL'),
                         lb('hs0a') + ':'] + self.allm(CG[1]) + self.allm(CP) + ['s_nop 0', 's_branch %s' % lb('topL'),
                         lb('hs0b') + ':'] + self.tri(CP) + ['s_nop 0', 's_branch %s' % lb('topL')])
        self.ool.append([lb('hmid') + ':', 's_bitcmp1_b32 s%d, 0' % sEv, 's_cbranch_scc0 %s' % lb('hm1'), 's_nop 7'] + self.finalizeL() + self.zero0() +
                        ['s_bitcmp1_b32 s%d, 1' % sEv, 's_mov_b32 s%d, 0' % sEv, 's_cbranch_scc0 %s' % lb('hmidr'),
                         lb('hm1') + ':', 's_cmp_eq_u32 s%d, 0' % sW, 's_cbranch_scc1 %s' % lb('hm2'),
                         's_cmp_eq_u32 s%d, 3' % sW, 's_cbranch_scc0 %s' % lb('hmidr2')] + self.tri(CG[1]) + self.allm(CP) + ['s_nop 0', 's_branch %s' % lb('hmidr2'),
                         lb('hm2') + ':'] + self.allm(CG[1]) + self.tri(CP) + ['s_nop 0', 's_branch %s' % lb('hmidr2')])
        self.slow2('slowL'); self.slow2('slowH')
        o, st = run(post + self.finish(self.body2('S', 'last')), st); out += o
        ok(o, stD)
        return out, st

    def areg(self, part, hr, ds, q):
        f = ds * 2 + q
        if hr == 0: return vr(CXL + 4 * f, 4) if part == 0 else vr(O0 + 8 * f, 4)
        if part == 0: return ar([160, 64, 96][hr - 1] + 4 * f, 4)
        return ar([192, 224][hr - 1] + 4 * f, 4) if hr < 3 else vr(O0 + 4 + 8 * f, 4)
    def freg(self, k):
        return ar(64 + 4 * k, 4) if k < 16 else ar(160 + 4 * (k - 16), 4) if k < 24 else vr(O0 + 8 * (k - 24), 4)

    def finish(self, S):
        o = self.opt
        E = S.n()
        sp = o.get('wsp', 5.5)
        for l in self.pv(qs=(2, 3)) + self.pv(qs=(0, 1)):
            for q in range(4): l = l.replace(vr(PB + 4 * q, 4), vr(P2 + 4 * q, 4))
            for db in range(8): l = l.replace(', ' + ar(VF + 4 * db, 4) + ', v', ', ' + ar(V2 + 4 * db, 4) + ', v')
            S.add(l)
        allk = lambda *h: [(hr, ds) for hr in h for ds in range(4)]
        mix = o.get('mix', 'HLLHLLHH')
        seg = [('k', 0, allk(0))] + [('k', int(c == 'H'), [(int(c == 'L'), mix[:k].count(c))]) for k, c in enumerate(mix)]
        seg += [('c', 0, allk(2, 3))] if o.get('lc', 1) == 2 else [('k', 0, allk(2)), ('c', 0, allk(3))]
        hk = o.get('hk', 8)
        seg += [('k', 1, allk(1, 2, 3)[:hk], (0, 1, 2)), ('c', 1, allk(1, 2, 3)[hk:], (0, 1, 2)), ('c', 1, allk(1, 2, 3), (3, 4))]
        uses = []
        needA = {}
        lastA = {}
        done = {}
        seen = set()
        for kind, part, ks, *cs in seg:
            cs = cs[0] if cs else range(5)
            order = [(hr, ds, n) for hr, ds in ks for c in cs for n in (c, 5 + c)] if kind == 'k' else [(hr, ds, n) for c in cs for hr, ds in ks for n in (c, 5 + c)]
            for hr, ds, n in order:
                u = len(uses)
                uses.append((S.n(), hr, ds, n))
                needA.setdefault((part, hr, ds), S.n())
                for q in ((0, 1) if u % 2 == 0 else (1, 0)):
                    d = vr((ACCH if part else ACCL)[n] + 4 * q, 4)
                    S.add('%s %s, %s, %s, %s' % (MF, d, ar(4 * (u % NRING), 4), self.areg(part, hr, ds, q), d if (part, n) in seen else '0'))
                seen.add((part, n))
                done[(part, n)] = lastA[(part, hr, ds)] = S.n() - 1
        assert len(uses) == 320
        F0 = S.n()
        facc = lambda j, n: ar(FACC + 4 * n, 4) if j == 0 else vr(64 + (j - 1) * 20 + 4 * n, 4)
        fdone = {}
        for n in range(5):
            for t in range(3):
                for j in range(4):
                    d = facc(j, n)
                    fdone[(j, n)] = S.n()
                    S.add('%s %s, %s, %s, %s' % (MF, d, self.freg(9 * t + 4 + n), self.freg(9 * t + j), '0' if t == 0 and j else d))
        bar = lambda g, *tags: S.at(g, [('@vmwait', t) for t in tags] + ['s_waitcnt lgkmcnt(0)', 's_barrier'])
        LA = o.get('wla', 16)
        B1 = E - 1
        bar(B1, 'wo0'); S.load[B1] = 8
        first = lambda p: min(g for g, hr, ds, n in uses if p(hr))
        B3, B4a, B4 = [first(lambda h: h == k) - LA - 1 for k in (1, 2, 3)]
        if o.get('lc', 1) == 2: B4 = B4a
        else: S.at(B4a, [('@vmwait', 'wo2'), 's_barrier']); S.load[B4a] = 8
        S.at(B4, [('@vmwait', 'wo3'), 's_barrier']); S.load[B4] = 8
        g6 = E + o.get('g6', 0)
        touch = lambda s: ['buffer_load_dword a%d, v%d, %s, s%d offen sc1' % (135, vTC, s4(S_ST), s)] if o.get('touch', 1) else []
        S.at(g6, [('@vmwait', 'pre')] + self.flag(6))
        wr = []
        gw = E + 6
        for db in range(8):
            for q in range(2):
                t = (db >> 1) * 4 + q * 2 + (db & 1)
                wr.append((max(int(gw), E + 2 + 2 * db + 4), 'ds_write_b128 v%d, %s offset:%d' % (vMW, ar(O1 + 4 * t, 4), t * 1024)))
                gw += o.get('msp', 3.5)
        gmw = S.flow(wr, E + 4)
        gt6 = S.flow(touch(sCtL) + [(E + 9, 'ds_write_b32 v251, a%d offset:3072' % L1), (E + 19, 'ds_write_b32 v251, a%d offset:3328' % (L1 + 4))], E + 6)
        for u, (g, hr, ds, n) in enumerate(uses):
            v, off = self.wo_lds(hr, ds, n)
            S.at(g - LA, 'ds_read_b128 %s, v%d offset:%d' % (ar(4 * (u % NRING), 4), v, off))
        ex = lambda q: ['v_exp_f32 v%d, v%d' % (SB[1] + 8 * q + e, SB[1] + 8 * q + e) for e in range(8)]
        cv = lambda q: ['v_cvt_pk_bf16_f32 v%d, v%d, v%d' % (P2 + e, SB[1] + 2 * e, SB[1] + 2 * e + 1) for e in range(4 * q, 4 * q + 4)]
        g = S.flow(ex(2)[:4] + ex(3) + ex(2)[4:] + cv(3) + cv(2), E - 36 - 3)
        assert g < E - 1, g
        ad = ['v_add_u32 v%d, 0x10000, v%d' % (vW1, vA[0]), 'v_add_u32 v%d, 0x20000, v%d' % (vW2, vA[0])]
        pa = ['s_andn2_b32 s3, s2, 24', 's_lshl_b32 s3, s3, 5', 's_add_u32 s3, s3, s%d' % sW, 's_lshl_b32 s3, s3, 2', 's_add_u32 s3, s3, 16',
              'v_and_b32 v%d, 3, v1' % vPA, 'v_lshl_add_u32 v%d, v%d, 10, s3' % (vPA, vPA)]
        g = S.flow(ex(0) + cv(0) + ex(1) + cv(1), g)
        assert g < E + 18, g - E
        gp = S.flow(ad + tmp(pa, 0), E - 36)
        assert gp < E + 36 - LA - 1, gp - E
        g = gmw
        B2 = max(g + o.get('b2d', 8), E + 37)
        while S.load.get(B2, 0): B2 += 1
        bar(B2, 'wo1')
        assert gt6 <= B2 + 6 and B2 < B3
        S.at(B2, ['ds_read_b32 v%d, v250 offset:%d' % (L0 + 1 + 4 * q, 3072 + q * 256) for q in range(2)])
        g = B2 + 6
        S.at(g, ['v_add_f32 v%d, v%d, v%d' % (L0 + 4 * q, L0 + 4 * q, L0 + 1 + 4 * q) for q in range(2)] + self.check('slowH', L0 + 2))
        X = lambda f: 240 + 8 * (f & 1)
        rdx = lambda f: ['ds_read_b128 v[%d:%d], v%d offset:%d' % (X(f) + 4 * k, X(f) + 4 * k + 3, vMR, (2 * f + k) * 1024) for k in range(2)]
        vTC2 = vMW
        g = S.flow(['v_mov_b32 v%d, v%d' % (vTC2, vTC)] + rdx(1) + ['v_rcp_f32 v%d, v%d' % (vR[q], L0 + 4 * q) for q in range(2)] + rdx(0), g + 1)
        g += 4
        freed = {}
        cap = o.get('fcap', 8)
        for f in (1, 0, 3, 2, 5, 4, 7, 6):
            b, ds, q = O0 + 8 * f, f >> 1, f & 1
            g = S.flow(['v_add_f32 v%d, v%d, v%d' % (b + e, b + e, X(f) + e) for e in range(8)], g, cap=cap)
            freed[f] = g
            it = (rdx(f + 2) if f < 6 else []) + ['v_mul_f32 v%d, v%d, v%d' % (b + e, b + e, vR[q]) for e in range(8)]
            it += ['v_cvt_pk_bf16_f32 v%d, v%d, v%d' % (b + e, b + 2 * e, b + 2 * e + 1) for e in range(4)]
            g = S.flow(it, g, cap=cap)
            assert g < needA[(1, 0, ds)] - 1, (f, g, needA[(1, 0, ds)])
            if f == 5: g = S.flow(['s_add_u32 s%d, s%d, 0x2000' % (sT2, sCtH)], g, cap=cap)
            g = S.flow([('buffer_store_dwordx4 v[%d:%d], v%d, %s, s%d offen offset:%d sc1' % (b, b + 3, vA[ds & 1], s4(S_ST), sCtH if ds < 2 else sT2, q * 1024), 'cx')], g, cap=cap)
        gfin = g
        def aloads(part):
            it = []
            for hr in range(1, 4):
                for ds in range(4):
                    if ds == 0: it.append('s_add_u32 s%d, s%d, s%d' % (sT0, sCtH if part else sCtL, sDH[hr]))
                    if ds == 2: it.append('s_add_u32 s%d, s%d, 0x2000' % (sT0, sT0))
                    it += ['buffer_load_dwordx4 %s, v%d, %s, s%d offen offset:%d sc1' % (self.areg(part, hr, ds, q), vA[ds & 1], s4(S_ST), sT0, q * 1024) for q in range(2)]
            return it
        def chk(gs, part):
            sl = [needA[(part, 1 + k // 8, (k >> 1) & 3)] - g for k, g in enumerate(gs)]
            if o.get('verbose'): print('A slack', part, sl)
            assert min(sl) > 0
        c6 = E + o.get('c6', 60)
        assert gp < c6 - o.get('pd', 30) and c6 >= E + 36
        S.at(c6 - o.get('pd', 30), self.poll_issue())
        S.at(c6, self.stamp(19) + self.poll_check(6) + self.stamp(20))
        al = aloads(0)
        w2, w3 = [], []
        for a in range(16):
            hr, n = (2, 4 + a) if a < 6 else (3, a - 6)
            dm = w2 if a < 6 else w3
            if n % 4 == 0: dm.append('s_add_u32 m0, s%d, %d' % (sM2, a * 1024))
            dm.append((freed[a >> 1] + 1, (self.wo_dma(hr, n), 'wo%d' % hr)))
        q = al[:10] + [(B2 + 8, 's_mov_b32 m0, s%d' % sK2), (self.wo_dma(2, 3), 'wo2')] + al[10:20] + w2 + w3 + al[20:]
        gs = self.place_vm2(S, q, c6 + 1, sp)
        chk(gs[:8] + gs[9:17] + gs[33:], 0)
        if o.get('verbose'): print('E', E, 'B2', B2 - E, 'fin end', gfin - E, 'c6', c6 - E, 'vm', [x - E for x in gs], 'B4', B4a - E, B4 - E, 'F0', F0 - E)
        assert gs[22] < B4a and gs[32] < B4
        gAL, gW3 = gs[-1], gs[32]
        S.flow(tmp(self.p_setup(), 4), gfin + 1)
        g7 = gfin + o.get('g7', 75)
        S.flow([[('@vmwait', 'cx')] + self.flag(7)] + [l.replace('v%d,' % vTC, 'v%d,' % vTC2) for l in touch(sCtH)], g7)
        c7 = E + o.get('c7', 350)
        assert c7 > gAL
        assert g7 < c7 - o.get('pd', 30)
        S.at(c7 - o.get('pd', 30), self.poll_issue())
        S.at(c7, self.stamp(21) + self.poll_check(7) + self.stamp(22))
        gs = self.place_vm2(S, aloads(1), c7 + 1, sp)
        chk(gs, 1)
        gAH = gs[-1]
        gst = {}
        for part in range(2):
            g = 0
            for n in sorted(range(10), key=lambda n: done[(part, n)]):
                b = (ACCH if part else ACCL)[n]
                t = part + (part and n % 5 > 2)
                g = S.flow(['v_cvt_pk_bf16_f32 v%d, v%d, v%d' % (b + e, b + 2 * e, b + 2 * e + 1) for e in range(4)] +
                           ['s_add_u32 s%d, s%d, %d' % (sT1, sP0, (n // 5) * 81920 + (part * 5 + n % 5) * 8192),
                            ('buffer_store_dwordx4 v[%d:%d], v%d, %s, s%d offen sc1' % (b, b + 3, vA[0], s4(S_P), sT1), 'p%d' % t)], max(g, done[(part, n)] + 4))
                gst[t] = g
        assert gst[0] < min(done[(1, n)] for n in range(10))
        g8 = S.flow([[('@vmwait', 'p0')] + self.flag(8)], gst[0] + o.get('g8', 80))
        g9 = S.flow([[('@vmwait', 'p1')] + self.flag(9)], gst[1] + o.get('g9', 75))
        sJ = sFW
        su = ['s_mul_i32 s%d, s%d, 3' % (sFM, sW), 's_add_u32 s%d, s%d, 42' % (sFM, sFM)]
        for j in range(4):
            su += ['s_add_u32 s3, s%d, %d' % (sW, j), 's_bitcmp1_b32 s3, 1', 's_cselect_b32 s%d, s%d, s%d' % (sJ[j], sRH, sRL), 's_and_b32 s3, s3, 1',
                   's_add_u32 s3, s3, s%d' % sJ[j], 's_mul_i32 s3, s3, 54', 's_add_u32 s3, s3, s%d' % sFM, 's_lshl_b32 s%d, s3, 10' % sJ[j]]
        su += ['s_lshl_b32 s%d, s%d, 3' % (sFM, sFM), 's_add_u32 s%d, s%d, s%d' % (sFM, sFM, sCB), 's_mul_i32 s%d, s%d, 5120' % (sFM, sFM)]
        g = S.flow(tmp(self.keep_scc(su), 1), c7 + 2)
        it = []
        for t in range(3):
            it += ['buffer_load_dwordx4 %s, v%d, %s, s%d offen offset:%d sc1' % (self.freg(9 * t + j), vA[0], s4(S_H), sJ[j], t * 1024) for j in range(4)]
            it += ['buffer_load_dwordx4 %s, v%d, %s, s%d offen offset:%d sc1' % (self.freg(9 * t + 4 + n), vA[n >> 2], s4(S_WD), sFM, (n & 3) * 1024) for n in range(5)]
            if t < 2: it.append('s_add_u32 s%d, s%d, 40960' % (sFM, sFM))
        gl = max(max(v for (p, hr, ds), v in lastA.items() if p == 0 or hr == 0) + 1, gAH + sp, g + 1)
        gs = self.place_vm2(S, it, gl, sp)
        if o.get('verbose'): print('g7', g7 - E, 'c7', c7 - E, 'AH end', gAH - E, 'pst', gst[0] - E, gst[1] - E, 'fl', gs[0] - E, gs[-1] - E)
        assert gs[-1] < F0 + 20
        gF = gs[-1]
        sPA, sPB, sOA, sOB = sWO
        vO, vO2 = 6, 24
        su = ['s_mul_i32 s%d, s2, 10' % sPB, 's_add_u32 s%d, s%d, s%d' % (sPA, sPB, sW), 's_lshl_b32 s%d, s%d, 13' % (sPA, sPA),
              's_mul_i32 s3, s%d, 5' % sCB, 's_add_u32 s3, s3, s%d' % sW, 's_lshl_b32 s3, s3, 5', 's_mul_i32 s%d, s%d, 20480' % (sOA, sRL), 's_mul_i32 s%d, s%d, 20480' % (sOB, sRH),
              's_add_u32 s%d, s%d, s3' % (sOA, sOA), 's_add_u32 s%d, s%d, s3' % (sOB, sOB), 's_add_u32 s3, s%d, 32' % sOA,
              's_cmp_eq_u32 s%d, 3' % sW, 's_cselect_b32 s%d, s3, s%d' % (sOB, sOB), 's_cselect_b32 s3, 1, 5', 's_lshl_b32 s3, s3, 13', 's_add_u32 s%d, s%d, s3' % (sPB, sPA),
              'v_and_b32 v%d, 15, v1' % vO, 'v_mul_u32_u24 v%d, 1280, v%d' % (vO, vO), 'v_lshrrev_b32 v%d, 4, v1' % vO2, 'v_lshl_add_u32 v%d, v%d, 3, v%d' % (vO, vO2, vO),
              'v_add_u32 v%d, 20480, v%d' % (vO2, vO)]
        su += srd(S_X, pX, pX + 1, 2048 * 1280) + srd(S_A, pOUT, pOUT + 1, 2048 * 1280)
        g = S.flow(tmp(self.keep_scc(su), 2), gW3 + 1)
        XR = 240
        xl = ['buffer_load_dwordx2 v[%d:%d], v%d, %s, s%d offen offset:%d' % (XR + 4 * k + 2 * q, XR + 4 * k + 2 * q + 1, [vO, vO2][q], s4(S_X), [sOA, sOB, sOB][k], 96 * (k == 2)) for k in range(3) for q in range(2)]
        gs = self.place_vm2(S, xl, max(g + 1, gAL + 4), 4)
        if o.get('verbose'): print('x loads', gs[0] - E, gs[-1] - E)
        SEL = 140
        su = ['s_andn2_b32 s3, s2, 7', 's_lshl_b32 s3, s3, 7', 's_and_b32 s%d, s2, 6' % sT2, 's_lshl_b32 s%d, s%d, 1' % (sT2, sT2), 's_add_u32 s3, s3, s%d' % sT2, 's_add_u32 s3, s3, 16',
              'v_and_b32 v%d, 7, v1' % vPA, 'v_lshl_add_u32 v%d, v%d, 7, s3' % (vPA, vPA)]
        g = S.flow(tmp(su, 5), c7 + 2)
        pd = o.get('pd', 30)
        c8 = max(gF + 4, g8 + 30 + pd)
        assert g < c8 - pd
        pregs = {0: [124, 128, 132] + [O0 + 8 * f for f in range(3, 8)], 1: [32 + 4 * p for p in range(6)] + [152, 156], 2: [192 + 4 * p for p in range(8)]}
        prn = lambda k, p: (ar if k == 2 else vr)(pregs[k][p], 4)
        pl = lambda k: ['buffer_load_dwordx4 %s, v%d, %s, s%d offen offset:%d sc1' % (prn(k, p), vA[p >> 2], s4(S_P), [sPA, sPB, sPA][k], (p & 3) * 1024) for p in range(8)]
        S.at(c8 - pd, self.poll_issue())
        S.at(c8, self.stamp(23) + self.poll_check(8) + self.stamp(24))
        gs = self.place_vm2(S, pl(0), c8 + 1, sp)
        c9 = g9 + o.get('d9', 30) + pd
        assert c9 < S.n() - 2 and c9 - pd > c8, (c9 - F0, c8 - F0)
        S.at(c9 - pd, self.poll_issue())
        S.at(c9, self.stamp(25) + self.poll_check(9) + self.stamp(26))
        n_in = min(8, (S.n() - 2 - c9) // 3)
        self.place_vm2(S, pl(1)[:n_in], c9 + 1, 3)
        S.at(F0 + 1, ['s_barrier'])
        vFJ = [136, 137, 138, 139]
        su = []
        for j in range(4):
            su += ['s_add_u32 s3, s%d, %d' % (sW, j), 's_and_b32 s3, s3, 3', 's_mul_i32 s3, s3, 20', 's_add_u32 s3, s3, s%d' % sW, 's_lshl_b32 s3, s3, 10', 'v_add_u32 v%d, s3, v%d' % (vFJ[j], vA[0])]
        su += ['s_lshl_b32 s3, s%d, 12' % sW, 'v_add_u32 v25, s3, v%d' % vA[0], 's_cmp_eq_u32 s%d, 3' % sW, 's_cselect_b32 s3, 4, 40', 's_lshl_b32 s3, s3, 10', 'v_add_u32 v252, s3, v25']
        X0 = SEL + 2
        su += ['v_lshrrev_b32 v%d, 4, v1' % SEL, 'v_bfe_u32 v%d, v1, 1, 3' % (SEL + 1), 'v_lshlrev_b32 v%d, 1, v%d' % (SEL, SEL), 'v_sub_u32 v%d, v%d, v%d' % (SEL + 1, SEL + 1, SEL),
               'v_and_b32 v%d, 1, v1' % SEL, 'v_lshlrev_b32 v%d, 4, v%d' % (SEL, SEL), 's_movk_i32 s3, 0x3f80', 'v_lshlrev_b32 v%d, v%d, s3' % (SEL, SEL),
               ['v_cmp_eq_u32 vcc, 0, v%d' % (SEL + 1), 'v_cndmask_b32 v%d, 0, v%d, vcc' % (X0, SEL)], ['v_cmp_eq_u32 vcc, 1, v%d' % (SEL + 1), 'v_cndmask_b32 v%d, 0, v%d, vcc' % (X0 + 1, SEL)],
               'v_mov_b64 v[%d:%d], 0' % (SEL, SEL + 1)]
        su = [l for x in su for l in ([x] if isinstance(x, list) else [x])]
        k = next(k for k, l in enumerate(su) if isinstance(l, list))
        g = S.flow(tmp(self.keep_scc(su[:k]) + su[k:], 3), g8 + 1)
        assert g < F0 + 12, g - F0
        fw = sorted(fdone, key=lambda k: fdone[k])
        wl = []
        for k in fw: wl.append((max(fdone[k] + 4, wl[-1][0] + 3 if wl else 0), 'ds_write_b128 v%d, %s offset:%d' % (vFJ[k[0]], facc(*k), k[1] * 4096)))
        nin = sum(1 for e, _ in wl if e < S.n())
        S.flow(wl[:nin], F0 + 2, gmax=S.n() - 1)
        for k, gx in enumerate(o.get('xst', [])): S.at(E + gx, self.stamp([5, 6, 7, 8, 9, 10, 11, 12, 18][k]))
        if o.get('verbose'): print('g8', g8 - E, 'g9', g9 - E, 'c8', c8 - F0, 'c9', c9 - F0, 'nin', n_in, nin, 'over', [(k - E, v) for k, v in sorted(S.load.items()) if v > 8 and k >= E - 40])
        L = S.lines() + pl(1)[n_in:] + [l for _, l in wl[nin:]] + self.stamp(27)
        fl = [('@vmwait', 'p2')] + self.flag(10)
        L += ['s_add_u32 s%d, s%d, %d' % (sPA, sPB, 3 * 8192), 's_mov_b32 s3, 0xbfb8aa3b', 's_waitcnt lgkmcnt(0)', 's_barrier']
        FR = lambda k, q: [64, 80, 96, 160, 176, 8][2 * k + q]
        rd = lambda k: ['ds_read_b128 v[%d:%d], v%d offset:%d' % (FR(k, q) + 4 * ww, FR(k, q) + 4 * ww + 3, 252 if k else 25, 12288 * (k == 2) + q * 20480 + ww * 1024) for q in range(2) for ww in range(4)]
        pk = lambda op, d, x, y: 'v_pk_%s_f32 v[%d:%d], %s, v[%d:%d]' % (op, d, d + 1, x if isinstance(x, str) else 'v[%d:%d]' % (x, x + 1), y, y + 1)
        def silu(k):
            R = []
            for q in range(2):
                b = FR(k, q)
                for x, y in ((0, 4), (8, 12), (0, 8)): R += [pk('add', b + x + e, b + x + e, b + y + e) for e in (0, 2)]
                R += ['v_mul_f32 v%d, s3, v%d' % (b + 4 + e, b + e) for e in range(4)]
                R += ['v_exp_f32 v%d, v%d' % (b + 4 + e, b + 4 + e) for e in range(4)]
                R += ['v_lshlrev_b32 v%d, 16, v%d' % (b + 8 + 2 * e, XR + 4 * k + 2 * q + e) for e in range(2)]
                R += ['v_add_f32 v%d, 1.0, v%d' % (b + 4 + e, b + 4 + e) for e in range(4)]
                R += ['v_rcp_f32 v%d, v%d' % (b + 4 + e, b + 4 + e) for e in range(4)]
                R += ['v_and_b32 v%d, s%d, v%d' % (b + 9 + 2 * e, sMask, XR + 4 * k + 2 * q + e) for e in range(2)]
                R += [pk('mul', b + e, b + e, b + 4 + e) for e in (0, 2)]
            return R
        SUM = lambda k, q: [112, 116, 120, 56, 60, 148][2 * k + q]
        sums = lambda k: ['%s %s, %s, %s, %s' % (MF, vr(SUM(k, q), 4), vr(SEL + 2 - 2 * q, 4), prn(k, p), vr(SUM(k, q), 4) if p else '0') for p in range(8) for q in range(2)]
        def outs(k):
            R = []
            for q in range(2):
                b, d = FR(k, q), SUM(k, q)
                R += ['v_pk_fma_f32 v[%d:%d], v[%d:%d], v[%d:%d], v[%d:%d]' % (d + e, d + e + 1, d + e, d + e + 1, b + e, b + e + 1, b + 8 + e, b + 9 + e) for e in (0, 2)]
            for q in range(2):
                d = SUM(k, q)
                R += ['v_cvt_pk_bf16_f32 v%d, v%d, v%d' % (d + e, d + 2 * e, d + 2 * e + 1) for e in range(2)]
                R += ['buffer_store_dwordx2 v[%d:%d], v%d, %s, s%d offen offset:%d%s' % (d, d + 1, [vO, vO2][q], s4(S_A), [sOA, sOB, sOB][k], 96 * (k == 2), o.get('outfl', ''))]
            return R
        def mixin(a, m):
            R = []
            for k, l in enumerate(a):
                R.append(l)
                if k % 3 == 2 and m: R.append(m.pop(0))
            return R + m
        L += rd(0) + rd(1) + fl + self.stamp(28) + ['v_mov_b64 v[%d:%d], 0' % (SEL + 4, SEL + 5)] + rd(2)
        w = mixin(silu(0), sums(0)) + outs(0) + mixin(silu(1), sums(1)) + outs(1)
        pi = o.get('pi', 60)
        L += w[:pi] + self.poll_issue() + w[pi:]
        L += ['s_cmp_lt_u32 s%d, 2' % sW, 's_cbranch_scc0 %s' % self.lab('fin')] + self.stamp(29) + self.poll_check(10) + self.stamp(30)
        L += pl(2) + silu(2) + sums(2) + outs(2) + [self.lab('fin') + ':']
        return L

    def place_vm2(self, S, lines, g0, sp):
        vg = self.opt.get('vgap', 2)
        def isvm(l):
            t = l[0] if isinstance(l, tuple) else l
            return t.startswith('buffer_')
        def near(g): return any(isvm(l) for y in range(g - vg + 1, g + vg) for l in S.fill.get(y, []))
        g, out, pend, fr = int(g0), [], [], 0
        for l in lines:
            if isinstance(l, tuple) and isinstance(l[0], int):
                g = max(g, l[0]); l = l[1]
            if not isvm(l):
                pend.append(l); continue
            k = 0
            while near(g) and k < 6: g += 1; k += 1
            if pend:
                S.at(g - 1, pend); pend = []
            S.at(g, l)
            out.append(g); fr += sp - int(sp); g += int(sp) + int(fr); fr -= int(fr)
        assert not pend
        return out

    def build(self, stats=None):
        o = self.opt
        lazy = o.get('lazy', 8)
        L = self.prologue()
        pre, S = self.gemms()
        L += [('@vmwait', 'dma0'), 's_barrier'] + self.stamp(1) + pre
        L += S.lines()
        L += self.stamp(3)
        L += self.p2_epilogue()
        L += self.stamp(4)
        out, st = process(L, stats=stats, lazy=lazy)
        oa, st = self.attention(st, stats, lazy)
        out += oa
        L = []
        if self.SO: L += ['s_waitcnt vmcnt(0)'] + self.stamp(13) + self.stamp(15, True) + self.stamps_out()
        L += ['s_endpgm']
        out += process(L, st, stats=stats, lazy=lazy)[0]
        for blk in self.ool:
            out += process(blk, stats=stats)[0]
        out += [self.lab('end') + ':']
        return out
```

```python
from asmlib import *
from fused import *
from attn import *

WS_P = 72 << 20
sFA, sFW, sFM, sWO, sRL, sRH, sCB, sP0, sDH = 34, [35, 36, 37, 38], 39, [40, 41, 42, 43], 44, 45, 46, 47, [None, 48, 49, 50]
S_H, S_WD, S_WO, S_P = S_B0, S_B1, S_B2, S_W
FACC, FA, FB = 140, 160, 172
vFW, vFR = 248, 249
V2, P2 = 160, 144
CXL = 32
ACCL = [64 + 8 * n for n in range(10)]
ACCH = [32, 40, 48, 56, 144, 152, 160, 168, 8, 16]
vW1, vW2, v8K, vMW, vMR, vR = 4, 5, 6, 7, 24, [30, 25]
NRING = 16
sM2, sK2 = sTI, sX
sU = [51, 54, 55, 62, 74, 88]
def tmp(lines, k):
    f = lambda l: [f(y) for y in l] if isinstance(l, list) else re.sub(r'\bs3\b', 's%d' % sU[k], l)
    return [f(l) for l in lines]

class KB(KA):
    H16 = True
    MAXF = 12

    def f_setup(self):
        x, jj = sT0, sT1
        L = ['s_and_b32 s%d, s2, 7' % x, 's_bfe_u32 s%d, s2, 0x20003' % jj,
             's_and_b32 s3, s2, 1', 's_lshl_b32 s%d, s%d, 1' % (sCB, jj), 's_add_u32 s%d, s%d, s3' % (sCB, sCB),
             's_and_b32 s3, s2, 6', 's_lshl_b32 s%d, s%d, 3' % (sRL, sI), 's_sub_u32 s%d, 120, s%d' % (sRH, sRL),
             's_add_u32 s%d, s%d, s3' % (sRL, sRL), 's_xor_b32 s3, s3, 2', 's_add_u32 s%d, s%d, s3' % (sRH, sRH),
             's_cmp_lt_u32 s%d, 2' % sW, 's_cselect_b32 s%d, s%d, s%d' % (sFA, sRL, sRH), 's_and_b32 s3, s%d, 1' % sW,
             's_add_u32 s%d, s%d, s3' % (sFA, sFA), 's_mul_i32 s%d, s%d, %d' % (sFA, sFA, 54 * 1024),
             's_mul_i32 s%d, s%d, 5' % (sT2, sCB), 's_lshl_b32 s3, s%d, 2' % sW, 's_add_u32 s%d, s%d, s3' % (sT2, sT2), 's_mul_i32 s%d, s%d, 52' % (sFM, sW)]
        for k in range(4):
            L += ['s_add_u32 s3, s%d, %d' % (sFM, 13 * k), 's_lshr_b32 s3, s3, 6', 's_mul_i32 s3, s3, 35', 's_add_u32 s3, s3, s%d' % sT2, 's_lshl_b32 s%d, s3, 10' % sFW[k]]
        L += ['s_lshl_b32 s%d, s%d, 12' % (sFM, sW), 's_add_u32 s%d, s%d, 0x20000' % (sFM, sFM),
              'v_mov_b32 v%d, v%d' % (vFW, vA[0]), 'v_add_u32 v%d, 0x20000, v%d' % (vFR, vA[0])]
        L += srd_off(S_H, pWS, WS_H, 128 * 54 * 1024) + srd_off(S_WD, pWS, WS_W + (5 << 20), 54 * 40960)
        return self.keep_scc(L)
    def w_setup(self):
        x, jj = sT0, sT1
        L = ['s_and_b32 s%d, s2, 7' % x, 's_bfe_u32 s%d, s2, 0x20003' % jj,
             's_lshl_b32 s%d, s%d, 2' % (sT2, sH), 's_add_u32 s%d, s%d, s%d' % (sT2, sT2, sW), 's_lshl_b32 s%d, s%d, 2' % (sT2, sT2), 's_add_u32 s%d, s%d, s%d' % (sT2, sT2, jj),
             's_mul_i32 s%d, s%d, 10240' % (sWO[0], sT2)]
        for hr in range(1, 4):
            L += ['s_add_u32 s3, s%d, %d' % (jj, hr), 's_and_b32 s3, s3, 3', 's_sub_u32 s3, s3, s%d' % jj, 's_lshl_b32 s%d, s3, 14' % sDH[hr],
                  's_mul_i32 s3, s%d, 10' % sDH[hr], 's_add_u32 s%d, s%d, s3' % (sWO[hr], sWO[0])]
        L += ['s_andn2_b32 s3, s2, 7', 's_add_u32 s3, s3, s%d' % sW, 's_add_u32 s3, s3, s%d' % sW, 's_mul_i32 s3, s3, 80', 's_add_u32 s3, s3, s%d' % x, 's_lshl_b32 s%d, s3, 10' % sP0]
        L += srd_off(S_WO, pWS, WS_W, 128 * 40960) + srd_off(S_P, pWS, WS_P, 256 * 81920)
        return self.keep_scc(L)

    def place_vm(self, S, lines, g0, sp, tag=None):
        gp, k, out = g0 - 1, 0, []
        nxt = g0
        for l in lines:
            t = l[0] if isinstance(l, tuple) else l
            if not t.startswith('buffer_'):
                while S.load.get(gp, 0) >= 8: gp += 1
                S.at(gp, l)
                nxt = max(nxt, gp + 1)
            else:
                g = nxt
                c = [y for y in range(g, g + self.opt.get('pairw', 2)) if S.load.get(y, 0) == 4]
                if c: g = c[0]
                while S.load.get(g, 0) > 4: g += 1
                S.at(g, (l, tag) if tag and not isinstance(l, tuple) else l, front=True)
                out.append(g); gp = g; nxt = g + sp
        return out

    def body2(self, mode, kind):
        o = self.opt
        first, second, last, hasf = kind == 'first', kind == 'second', kind == 'last', kind == 'loop'
        base = self.qk(mode, 0) + ([] if first else self.pv()) + self.qk(mode, 1) + self.pv(zero=first)
        b1 = 32 if first else 68
        ins = o.get('fpos', [47 + 6 * k for k in range(15)]) if hasf else []
        S = Stream(); G = {}; fg = []
        for n, l in enumerate(base):
            G[n] = S.n(); S.add(l)
            if n in ins:
                u = len(fg); fg.append(S.n())
                d = ar(FACC + 4 * (u % 5), 4)
                S.add('%s %s, %s, %s, %s' % (MF, d, ar(FB + 4 * (u % 5), 4), ar(FA + 4 * (u // 5), 4), d))
        tag = kind[0] + mode
        for b, u in ((0, 1), (b1, 0)):
            for m in range(8):
                if not (last and b): S.at(G[b + 4 * m + 3], self.kread(u, m & 1, m >> 1))
        BAR = 31 if first else o.get('abar', 39)
        tog = ['v_mov_b32 v%d, v%d' % (vV, vK), 'v_xor_b32 v%d, %s, v%d' % (vK, 's%d' % sX if mode == 'D' else '0x10000', vK)]
        if last: tog = tog[:1]
        e0 = self.exps(0)
        if first:
            S.flow(e0[:3], 28)
            S.at(31, e0[3:27] + tog + self.hookD(tag + '1') + ['s_waitcnt vmcnt(0) lgkmcnt(0)', 's_barrier'] + self.flag(3))
            e0 = e0[27:]
            fs = self.f_setup()
            g = S.flow(fs[:-8], 0)
            assert g < 28, g
        else:
            S.at(BAR, [('@vmwait', 'kv'), 's_waitcnt lgkmcnt(0)', 's_barrier'])
            S.load[BAR] = 8
            S.at(G[b1] - 2, tog)
            if mode == 'D':
                S.at(-1, self.hookD(tag + '0'))
                S.at(G[b1] - 1, self.hookD(tag + '1'))
            elif last:
                S.at(G[b1] - 1, ['s_branch %s' % self.lab('hmid'), self.lab('hmidr2') + ':'])
                S.load[G[b1] - 1] = 8
            else:
                S.at(G[b1] - 1, ['s_cmp_lg_u32 s%d, 0' % sEv, 's_cbranch_scc1 %s' % self.lab('hmid'), self.lab('hmidr') + ':'])
            c = self.cvts(1)
            vr_ = [self.vread(1, db) for db in range(8)]
            gfree = S.flow([x for k in range(8) for x in (vr_[k], c[2 * k], c[2 * k + 1])], 0)
        if hasf:
            S.at(S.n() - 1, ['s_sub_u32 s%d, s%d, 1' % (sN, sN), 's_cbranch_scc0 %s' % self.lab('top' + mode)])
            for u in range(15):
                g = BAR + 1 + u if u < 2 else fg[u - 2]
                S.at(g, 'ds_read_b128 %s, v%d offset:%d' % (ar(FB + 4 * (u % 5), 4), vFR, u * 1024))
            S.at(fg[13], 'v_xor_b32 v%d, 0x4000, v%d' % (vFR, vFR))
        fdma = ['s_mov_b32 m0, s%d' % sFM] + ['buffer_load_dwordx4 v%d, %s, s%d offen offset:%d sc1 lds' % (vFW, s4(S_WD), sFW[k], k * 1024) for k in range(4)] + \
               ['s_xor_b32 s%d, s%d, 0x4000' % (sFM, sFM), 'v_add_u32 v%d, %d, v%d' % (vFW, 3 * 40960, vFW)]
        fa = ['buffer_load_dwordx4 %s, v%d, %s, s%d offen offset:%d sc1' % (ar(FA + 4 * t, 4), vA[0], s4(S_H), sFA, t * 1024) for t in range(3)]
        sp = o['dsp'] if mode == 'S' else o.get('dspD', o['dsp'])
        vr0 = [self.vread(0, db) for db in range(8)]
        if first:
            self.place_vm(S, self.kv_dma(mode), 34, sp, 'kv')
            ge = S.flow(e0, 32)
        elif last:
            g = S.flow(self.w_setup() + ['v_add_u32 v%d, 0x2000, v%d' % (v8K, vA[0]), 's_mul_i32 s%d, s%d, 10240' % (sM, sW), 's_lshl_b32 s%d, s%d, 12' % (sK, sW)], gfree)
            assert g < BAR, g
            dm = []
            for hr in range(3):
                for n in range(10 if hr < 2 else 3):
                    if n % 4 == 0:
                        dm.append('s_add_u32 m0, s%d, %d' % (sM, 0x10000 + hr * 40960 + n * 1024) if hr < 2 else 's_add_u32 m0, s%d, %d' % (sK, 144 * 1024))
                    dm.append((self.wo_dma(hr, n), 'wo%d' % hr))
            gs = self.place_vm(S, dm, BAR + 2, sp)
            k = max(k for k, g in enumerate(gs) if g < G[b1] - 1)
            assert k < 9
            S.fill[gs[k]] = [(l[0], 'pre') if isinstance(l, tuple) and l[0].startswith('buffer_') else l for l in S.fill[gs[k]]]
            ge = S.flow(e0, G[28] + 1)
        else:
            gs = self.place_vm(S, fdma + self.kv_dma(mode), BAR + 2, sp, 'kv')
            g = gs[-1] + sp
            if second:
                S.at(BAR - 1, self.poll_check(2))
                g = o.get('gb', 124)
                S.at(g - 1, self.poll_check(3))
                S.flow(['v_accvgpr_write_b32 a%d, 0' % (FACC + e) for e in range(20)], gfree, gmax=28)
            for t in range(2):
                if hasf: g = max(g, fg[5 * t + 4])
                g = self.place_vm(S, fa[t:t + 1], g, sp)[0] + sp
            if hasf: S.flow([fa[2], 's_add_u32 s%d, s%d, 3072' % (sFA, sFA)], gfree)
            ge = S.flow(e0, G[28] + 1)
        if not last:
            g = S.flow(self.exps(1), G[b1 + 28] + 1)
            assert g < S.n(), g
        c = self.cvts(0)
        g = G[b1 + 30] if not last else G[b1 + 28]
        for l in reversed(c):
            while S.load.get(g, 0) + 4 > 8: g -= 1
            S.at(g, l, front=True)
        assert (g > ge and g >= G[b1]) or first, (g, ge)
        gl = S.flow(vr0, G[b1], gmax=G[b1 + 30])
        if first:
            pa = ['s_lshl_b32 s3, s%d, 6' % sW, 'v_add_lshl_u32 v%d, s3, v1, 7' % vPA]
            S.flow(pa + fs[-8:] + [(o.get('gp2', 90), self.poll_issue())], gl)
        if second:
            pa = ['s_lshl_b32 s3, s%d, 5' % sI, 'v_and_b32 v%d, 31, v1' % vPA, 'v_add_lshl_u32 v%d, s3, v%d, 7' % (vPA, vPA)]
            gg = S.flow(self.epoch_out() + ['s_lshl_b32 s3, s2, 5', 's_add_u32 s3, s3, s%d' % sW, 's_lshl_b32 s3, s3, 2', 's_add_u32 s3, s3, 16',
                                            'v_mov_b32 v%d, 0x7fff0000' % vFL, 'v_writelane_b32 v%d, s3, 0' % vFL] + pa, BAR + 1, gmax=80)
            gg = S.flow(self.poll_issue(), max(gg, o.get('gb', 124) - o.get('gp3', 44)), cap=12)
            assert gg < o.get('gb', 124) - 1
        if last:
            gl = S.flow(['ds_read_b128 %s, v%d offset:%d' % (ar(V2 + db * 4, 4), vV, 16384 + (8 + db) * 1024) for db in range(8)], gl, gmax=G[b1 + 31])
        if o.get('verbose'): print(tag, 'exp0 end', ge - G[b1], 'cvt start', g - G[b1], 'rd end', gl - G[b1], 'over', [(k, v) for k, v in sorted(S.load.items()) if v > 8])
        given = S if last else S.lines()
        return given

    def wo_dma(self, hr, n):
        return 'buffer_load_dwordx4 v%d, %s, s%d offen offset:%d sc1 lds' % ([vA[0], vA[1], v8K][n >> 2], s4(S_WO), sWO[hr], (n & 3) * 1024)
    def wo_lds(self, hr, ds, n):
        if hr < 2: a = 64 + (4 * hr + ds) * 10 + n
        elif hr == 2 and n < 4: a = 144 + ds * 4 + n
        elif hr == 2: a = (ds ^ 1) * 16 + n - 4
        else: a = (ds ^ 1) * 16 + 6 + n
        return [vA[0], vW1, vW2][a >> 6], (a & 63) * 1024

    def check(self, slow, t):
        return ['v_add_f32 v%d, v%d, v%d' % (t, L0, L0 + 4), 'v_cmp_gt_f32 vcc, 0x5f800000, v%d' % t, 's_cmp_eq_u64 vcc, -1',
                's_cbranch_scc0 %s' % self.lab(slow), self.lab(slow + 'r') + ':']
    def finalizeL(self):
        L = self.check('slowL', L0 + 2)
        L += ['v_rcp_f32 v%d, v%d' % (L0, L0), 'v_rcp_f32 v%d, v%d' % (L0 + 4, L0 + 4), 's_mov_b32 s3, s%d' % sCtL]
        for ds in range(4):
            if ds == 2: L.append('s_add_u32 s3, s3, 0x2000')
            for q in range(2):
                b, d = O0 + (ds * 2 + q) * 8, CXL + (ds * 2 + q) * 4
                L += ['v_pk_mul_f32 v[%d:%d], v[%d:%d], v[%d:%d] op_sel_hi:[1,0]' % (b + 2 * e, b + 2 * e + 1, b + 2 * e, b + 2 * e + 1, L0 + 4 * q, L0 + 4 * q + 1) for e in range(4)]
                L += ['v_cvt_pk_bf16_f32 v%d, v%d, v%d' % (d + e, b + 2 * e, b + 2 * e + 1) for e in range(4)]
                L += ['buffer_store_dwordx4 v[%d:%d], v%d, %s, s3 offen offset:%d sc1' % (d, d + 3, vA[ds & 1], s4(S_ST), q * 1024)]
        return L

    def slow2(self, name):
        lb = lambda s: self.lab(name + s)
        hi = name == 'slowH'
        C = 144
        SS, PP, M = (160, 8, 16) if hi else (96, 128, 136)
        Q = (lambda q, ds: ar(QP + (q * 4 + ds) * 4, 4)) if hi else (lambda q, ds: vr(QL + (q * 4 + ds) * 4, 4))
        sO, sJ = sSO, sSpin
        B = [lb('') + ':', 's_waitcnt vmcnt(0) lgkmcnt(0)', 's_lshl_b32 s%d, s%d, 2' % (sRho, sI)]
        if hi: B += ['s_sub_u32 s%d, 60, s%d' % (sRho, sRho), 's_xor_b32 s3, s%d, 1' % sW, 's_add_u32 s%d, s%d, s3' % (sRho, sRho)]
        else: B += ['s_add_u32 s%d, s%d, s%d' % (sRho, sRho, sW)]
        ld = ['buffer_load_dwordx4 %s, v%d, %s, s%d offen offset:%d sc1' % (ar(VF + 4 * f, 4), vA[f >> 2], s4(S_A), sO, (f & 3) * 1024) for f in range(8)]
        def head(n):
            return ['s_mov_b32 s%d, 0' % sJ, lb(n) + ':', 's_lshr_b32 s%d, s%d, 1' % (sO, sJ), 's_lshl_b32 s%d, s%d, 15' % (sO, sO), 's_and_b32 s3, s%d, 1' % sJ,
                    's_lshl_b32 s3, s3, 13', 's_add_u32 s%d, s%d, s3' % (sO, sO)] + ld
        def mask(n):
            return ['s_cmp_eq_u32 s%d, s%d' % (sJ, sRho), 's_cbranch_scc0 %s' % lb(n)] + self.tri(C) + [lb(n) + ':', 's_nop 1']
        qk = []
        for ds in range(4):
            for kb in range(2):
                for q in range(2):
                    d = vr(SS + (q * 2 + kb) * 4, 4)
                    qk.append('%s %s, %s, %s, %s' % (MF, d, ar(VF + (kb * 4 + ds) * 4, 4), Q(q, ds), vr(C + (q * 2 + kb) * 4, 4) if ds == 0 else d))
        def tail(n):
            return ['s_add_u32 s%d, s%d, 1' % (sJ, sJ), 's_cmp_le_u32 s%d, s%d' % (sJ, sRho), 's_nop 7', 's_cbranch_scc1 %s' % lb(n)]
        B += ['s_nop 7', 's_nop 7']
        B += ['v_mov_b32 v%d, 0' % (C + e) for e in range(16)] + ['v_mov_b32 v%d, v%d' % (M + q, vBig) for q in range(2)]
        B += head('1') + mask('1m') + qk
        for q in range(2):
            B += ['v_max3_f32 v%d, v%d, v%d, v%d' % (M + q, M + q, SS + 8 * q + 2 * e, SS + 8 * q + 2 * e + 1) for e in range(4)]
        B += tail('1')
        for q in range(2):
            for sw in ('16', '32'):
                B += ['v_mov_b32 v%d, v%d' % (M + 2, M + q), 'v_permlane%s_swap_b32 v%d, v%d' % (sw, M + q, M + 2), 'v_max_f32 v%d, v%d, v%d' % (M + q, M + q, M + 2)]
            B += ['v_sub_f32 v%d, 0, v%d' % (C + 8 * q + e, M + q) for e in range(8)]
        B += self.zero0()
        if hi:
            B += ['ds_write_b128 v%d, v[%d:%d] offset:%d' % (vMR, O0, O0 + 3, t * 1024) for t in range(16)] + ['s_waitcnt lgkmcnt(0)']
        B += head('2') + mask('2m') + qk + ['s_add_u32 s%d, s%d, 0x4000' % (sO, sO)]
        B += ['v_exp_f32 v%d, v%d' % (SS + e, SS + e) for e in range(16)] + ld
        B += ['v_cvt_pk_bf16_f32 v%d, v%d, v%d' % (PP + e, SS + 2 * e, SS + 2 * e + 1) for e in range(8)]
        B += [l.replace(vr(PB, 4), vr(PP, 4)).replace(vr(PB + 4, 4), vr(PP + 4, 4)) for l in self.pv(qs=(0, 1))]
        B += tail('2') + ['s_nop 7', 's_branch %s' % lb('r')]
        self.ool.append(B)

    def attention(self, st, stats, lazy):
        out = []
        lb = self.lab
        def run(lines, st): return process(lines, st, stats=stats, lazy=lazy)
        def ok(o, *sts):
            for s in sts:
                p = process(o, s, pad=False)[0]
                if p != o:
                    k = next(k for k in range(len(o)) if p[k] != o[k])
                    print('\n'.join(p[max(0, k - 30):k + 5])); print(s.lg, s.vm)
                assert p == o
                assert [t for t, _ in s.vm][-2:] == [None] * 2, s.vm
        def loop(lines, st):
            o1, st1 = process(lines, st, lazy=lazy); o2, st2 = run(lines, st1)
            assert st1.sig() == st2.sig()
            ok(o2, st, st2)
            return o2, st2
        lastD = ['s_mov_b32 s%d, 0x10000' % sTI, 's_mov_b32 s%d, s%d' % (sX, sXe)]
        o, st = run(self.attn_pro() + self.stamp(16) + self.body2('D', 'first') +
                    ['s_cmp_eq_u32 s%d, 0' % sI] + [l.replace('s_mov', 's_cmov') for l in lastD] + self.body2('D', 'second') +
                    ['s_waitcnt lgkmcnt(0)', 's_sub_u32 s%d, s%d, 2' % (sN, sN), 's_cbranch_scc1 %s' % lb('entS')], st); out += o
        st1 = st
        oD, st = loop([lb('topD') + ':'] + self.body2('D', 'loop'), st); out += oD
        post = ['s_cmp_eq_u32 s%d, 0x8000' % sTI] + lastD + ['s_mov_b32 s%d, 0' % sN, 's_cbranch_scc1 %s' % lb('topD')]
        o, st = run(post, st); out += o
        ok(oD, st)
        ent = [lb('entS') + ':'] + self.stamp(17) + ['s_mov_b32 s%d, 1' % sEv, 's_lshl_b32 s3, s%d, 1' % sI, 's_sub_u32 s%d, 13, s3' % sN, 's_cbranch_scc1 %s' % lb('postS')]
        o, st = run(ent, st); out += o
        st1 = process(o, st1)[1]
        stD = st
        oS, st = loop([lb('topS') + ':'] + self.body2('S', 'loop'), st); out += oS
        ok(oS, st1)
        post = [lb('postS') + ':', 's_or_b32 s%d, s%d, 2' % (sEv, sEv), 's_cmp_eq_u32 s%d, 2' % sW, 's_cbranch_scc0 %s' % lb('hs0'), lb('topL') + ':']
        self.ool.append([lb('hs0') + ':',
                         's_cmp_eq_u32 s%d, 1' % sW, 's_cbranch_scc1 %s' % lb('hs0a'),
                         's_cmp_eq_u32 s%d, 3' % sW, 's_cbranch_scc1 %s' % lb('hs0b')] + self.tri(CG[1]) + ['s_nop 0', 's_branch %s' % lb('topL'),
                         lb('hs0a') + ':'] + self.allm(CG[1]) + self.allm(CP) + ['s_nop 0', 's_branch %s' % lb('topL'),
                         lb('hs0b') + ':'] + self.tri(CP) + ['s_nop 0', 's_branch %s' % lb('topL')])
        self.ool.append([lb('hmid') + ':', 's_bitcmp1_b32 s%d, 0' % sEv, 's_cbranch_scc0 %s' % lb('hm1'), 's_nop 7'] + self.finalizeL() + self.zero0() +
                        ['s_bitcmp1_b32 s%d, 1' % sEv, 's_mov_b32 s%d, 0' % sEv, 's_cbranch_scc0 %s' % lb('hmidr'),
                         lb('hm1') + ':', 's_cmp_eq_u32 s%d, 0' % sW, 's_cbranch_scc1 %s' % lb('hm2'),
                         's_cmp_eq_u32 s%d, 3' % sW, 's_cbranch_scc0 %s' % lb('hmidr2')] + self.tri(CG[1]) + self.allm(CP) + ['s_nop 0', 's_branch %s' % lb('hmidr2'),
                         lb('hm2') + ':'] + self.allm(CG[1]) + self.tri(CP) + ['s_nop 0', 's_branch %s' % lb('hmidr2')])
        self.slow2('slowL'); self.slow2('slowH')
        o, st = run(post + self.finish(self.body2('S', 'last')), st); out += o
        ok(o, stD)
        return out, st

    def areg(self, part, hr, ds, q):
        f = ds * 2 + q
        if hr == 0: return vr(CXL + 4 * f, 4) if part == 0 else vr(O0 + 8 * f, 4)
        if part == 0: return ar([64, 96, 160][hr - 1] + 4 * f, 4)
        return ar([192, 224][hr - 1] + 4 * f, 4) if hr < 3 else vr(O0 + 4 + 8 * f, 4)
    def freg(self, k):
        return ar(64 + 4 * k, 4) if k < 16 else ar(160 + 4 * (k - 16), 4) if k < 24 else vr(O0 + 8 * (k - 24), 4)

    def finish(self, S):
        o = self.opt
        E = S.n()
        sp = o.get('wsp', 4)
        for l in self.pv(qs=(2, 3)) + self.pv(qs=(0, 1)):
            for q in range(4): l = l.replace(vr(PB + 4 * q, 4), vr(P2 + 4 * q, 4))
            for db in range(8): l = l.replace(', ' + ar(VF + 4 * db, 4) + ', v', ', ' + ar(V2 + 4 * db, 4) + ', v')
            S.add(l)
        allk = lambda *h: [(hr, ds) for hr in h for ds in range(4)]
        seg = o.get('seg', [('k', 0, allk(0)), ('k', 1, allk(0)[:2]), ('k', 0, allk(1)), ('k', 1, allk(0)[2:]), ('c', 0, allk(2, 3)), ('k', 1, allk(1)), ('c', 1, allk(2, 3))])
        uses = []
        needA = {}
        lastA = {}
        done = {}
        seen = set()
        for kind, part, ks in seg:
            order = [(hr, ds, n) for hr, ds in ks for n in range(10)] if kind == 'k' else [(hr, ds, n) for c in range(5) for hr, ds in ks for n in (c, 5 + c)]
            for hr, ds, n in order:
                u = len(uses)
                uses.append((S.n(), hr, ds, n))
                needA.setdefault((part, hr, ds), S.n())
                for q in ((0, 1) if u % 2 == 0 else (1, 0)):
                    d = vr((ACCH if part else ACCL)[n] + 4 * q, 4)
                    S.add('%s %s, %s, %s, %s' % (MF, d, ar(4 * (u % NRING), 4), self.areg(part, hr, ds, q), d if (part, n) in seen else '0'))
                seen.add((part, n))
                done[(part, n)] = lastA[(part, hr, ds)] = S.n() - 1
        assert len(uses) == 320
        F0 = S.n()
        facc = lambda j, n: ar(FACC + 4 * n, 4) if j == 0 else vr(64 + (j - 1) * 20 + 4 * n, 4)
        fdone = {}
        for t in range(3):
            for n in range(5):
                for j in (range(4) if n % 2 == 0 else reversed(range(4))):
                    d = facc(j, n)
                    fdone[(j, n)] = S.n()
                    S.add('%s %s, %s, %s, %s' % (MF, d, self.freg(9 * t + 4 + n), self.freg(9 * t + j), '0' if t == 0 and j else d))
        bar = lambda g, *tags: S.at(g, [('@vmwait', t) for t in tags] + ['s_waitcnt lgkmcnt(0)', 's_barrier'])
        LA = o.get('wla', 16)
        B1 = E - 1
        bar(B1, 'wo0'); S.load[B1] = 8
        first = lambda p: min(g for g, hr, ds, n in uses if p(hr))
        B3, B4 = first(lambda h: h == 1) - LA - 1, first(lambda h: h >= 2) - LA - 1
        S.at(B3, [('@vmwait', 'wo1'), 's_barrier']); S.load[B3] = 8
        S.at(B4, [('@vmwait', 'wo3'), 's_barrier']); S.load[B4] = 8
        for u, (g, hr, ds, n) in enumerate(uses):
            v, off = self.wo_lds(hr, ds, n)
            S.at(g - LA, 'ds_read_b128 %s, v%d offset:%d' % (ar(4 * (u % NRING), 4), v, off))
        ex = lambda q: ['v_exp_f32 v%d, v%d' % (SB[1] + 8 * q + e, SB[1] + 8 * q + e) for e in range(8)]
        cv = lambda q: ['v_cvt_pk_bf16_f32 v%d, v%d, v%d' % (P2 + e, SB[1] + 2 * e, SB[1] + 2 * e + 1) for e in range(4 * q, 4 * q + 4)]
        g = S.flow(ex(2)[:4] + ex(3) + ex(2)[4:] + cv(3) + cv(2), E - 36 - 3)
        assert g < E - 1, g
        ad = ['v_add_u32 v%d, 0x10000, v%d' % (vW1, vA[0]), 'v_add_u32 v%d, 0x20000, v%d' % (vW2, vA[0]),
              's_lshl_b32 s%d, s%d, 14' % (sM2, sW), 'v_add_u32 v%d, s%d, v%d' % (vMW, sM2, vA[0]), 'v_xor_b32 v%d, 0x4000, v%d' % (vMR, vMW), 's_xor_b32 s%d, s%d, 0x4000' % (sM2, sM2),
              's_add_u32 s%d, s%d, %d' % (sK2, sK, 144 * 1024), 'v_lshlrev_b32 v250, 2, v1', 'v_add_u32 v250, s%d, v250' % sK2, 'v_xor_b32 v251, 0x1000, v250']
        vTC = 252
        ad6 = ['v_lshrrev_b32 v%d, 4, v1' % vTC, 'v_and_b32 v253, 15, v1', 'v_lshlrev_b32 v253, 7, v253', 'v_lshl_add_u32 v%d, v%d, 12, v253' % (vTC, vTC)]
        g = S.flow(ex(1) + cv(1) + ex(0) + cv(0), g)
        assert g < E + 16, g - E
        ga = S.flow(ad + ad6, E - 36)
        assert ga < E + 36 - LA - 1, ga - E
        g6 = max(ga + 1, E + o.get('g6', 0))
        touch = lambda s: ['buffer_load_dword a%d, v%d, %s, s%d offen sc1' % (135, vTC, s4(S_ST), s)] if o.get('touch', 1) else []
        gt6 = S.flow([[('@vmwait', 'pre')] + self.flag(6)] + touch(sCtL), g6)
        wr = ['ds_write_b32 v251, a%d offset:%d' % (L1 + 4 * q, 3072 + q * 256) for q in range(2)]
        for db in range(8):
            for q in range(2):
                t = (db >> 1) * 4 + q * 2 + (db & 1)
                wr.append((E + 2 + 2 * db + 4, 'ds_write_b128 v%d, %s offset:%d' % (vMW, ar(O1 + 4 * t, 4), t * 1024)))
        g = S.flow(wr, max(ga + 1, E + 4))
        B2 = max(g + o.get('b2d', 8), E + 37)
        while S.load.get(B2, 0): B2 += 1
        bar(B2)
        assert gt6 <= B2 + 6
        S.at(B2, ['ds_read_b32 v%d, v250 offset:%d' % (L0 + 1 + 4 * q, 3072 + q * 256) for q in range(2)])
        g = B2 + 6
        S.at(g, ['v_add_f32 v%d, v%d, v%d' % (L0 + 4 * q, L0 + 4 * q, L0 + 1 + 4 * q) for q in range(2)] + self.check('slowH', L0 + 2))
        X = lambda f: 240 + 8 * (f & 1)
        rdx = lambda f: ['ds_read_b128 v[%d:%d], v%d offset:%d' % (X(f) + 4 * k, X(f) + 4 * k + 3, vMR, (2 * f + k) * 1024) for k in range(2)]
        vTC2 = vMW
        g = S.flow(['v_mov_b32 v%d, v%d' % (vTC2, vTC)] + rdx(1) + ['v_rcp_f32 v%d, v%d' % (vR[q], L0 + 4 * q) for q in range(2)] + rdx(0), g + 1)
        g += 4
        freed = {}
        cap = o.get('fcap', 8)
        for f in (1, 0, 3, 2, 5, 4, 7, 6):
            b, ds, q = O0 + 8 * f, f >> 1, f & 1
            g = S.flow(['v_add_f32 v%d, v%d, v%d' % (b + e, b + e, X(f) + e) for e in range(8)], g, cap=cap)
            freed[f] = g
            it = (rdx(f + 2) if f < 6 else []) + ['v_mul_f32 v%d, v%d, v%d' % (b + e, b + e, vR[q]) for e in range(8)]
            it += ['v_cvt_pk_bf16_f32 v%d, v%d, v%d' % (b + e, b + 2 * e, b + 2 * e + 1) for e in range(4)]
            g = S.flow(it, g, cap=cap)
            assert g < needA[(1, 0, ds)] - 1, (f, g, needA[(1, 0, ds)])
            if f == 5: g = S.flow(['s_add_u32 s%d, s%d, 0x2000' % (sT2, sCtH)], g, cap=cap)
            g = S.flow([('buffer_store_dwordx4 v[%d:%d], v%d, %s, s%d offen offset:%d sc1' % (b, b + 3, vA[ds & 1], s4(S_ST), sCtH if ds < 2 else sT2, q * 1024), 'cx')], g, cap=cap)
        gfin = g
        def aloads(part):
            it = []
            for hr in range(1, 4):
                for ds in range(4):
                    if ds == 0: it.append('s_add_u32 s%d, s%d, s%d' % (sT0, sCtH if part else sCtL, sDH[hr]))
                    if ds == 2: it.append('s_add_u32 s%d, s%d, 0x2000' % (sT0, sT0))
                    it += ['buffer_load_dwordx4 %s, v%d, %s, s%d offen offset:%d sc1' % (self.areg(part, hr, ds, q), vA[ds & 1], s4(S_ST), sT0, q * 1024) for q in range(2)]
            return it
        def chk(gs, part):
            sl = [needA[(part, 1 + k // 8, (k >> 1) & 3)] - g for k, g in enumerate(gs)]
            if o.get('verbose'): print('A slack', part, sl)
            assert min(sl) > 0
        pa = ['s_andn2_b32 s3, s2, 24', 's_lshl_b32 s3, s3, 5', 's_add_u32 s3, s3, s%d' % sW, 's_lshl_b32 s3, s3, 2', 's_add_u32 s3, s3, 16',
              'v_and_b32 v%d, 3, v1' % vPA, 'v_lshlrev_b32 v%d, 10, v%d' % (vPA, vPA), 'v_add_u32 v%d, s3, v%d' % (vPA, vPA)]
        gp = S.flow(tmp(pa, 0), g6 + 1)
        c6 = needA[(0, 1, 0)] - o.get('c6', 44)
        assert gp < c6 - 30 and c6 > B2
        S.at(c6 - o.get('pd', 30), self.poll_issue())
        S.at(c6, self.stamp(19) + self.poll_check(6) + self.stamp(20))
        gs = self.place_vm2(S, aloads(0), c6 + 1, o.get('asp', 4))
        chk(gs, 0)
        dm = [(B2 + 8, 's_mov_b32 m0, s%d' % sK2), (self.wo_dma(2, 3), 'wo3')]
        for a in range(16):
            hr, n = (2, 4 + a) if a < 6 else (3, a - 6)
            if n % 4 == 0: dm.append('s_add_u32 m0, s%d, %d' % (sM2, a * 1024))
            dm.append((freed[a >> 1] + 1, (self.wo_dma(hr, n), 'wo3')))
        gs = self.place_vm2(S, dm, o.get('gw', B2 + 8), sp)
        if o.get('verbose'): print('E', E, 'B2', B2 - E, 'fin end', gfin - E, 'c6', c6 - E, 'B3', B3 - E, 'wo3', [x - E for x in gs], 'B4', B4 - E, 'F0', F0 - E)
        assert gs[-1] < B4
        g7 = gfin + o.get('g7', 64)
        S.flow([[('@vmwait', 'cx')] + self.flag(7)] + [l.replace('v%d,' % vTC, 'v%d,' % vTC2) for l in touch(sCtH)], g7)
        c7 = needA[(1, 1, 0)] - o.get('c7', 44)
        assert g7 < c7 - 30
        S.at(c7 - o.get('pd', 30), self.poll_issue())
        S.at(c7, self.stamp(21) + self.poll_check(7) + self.stamp(22))
        gs = self.place_vm2(S, aloads(1), c7 + 1, o.get('asp', 4))
        chk(gs, 1)
        gAH = gs[-1]
        gst = {}
        for part in range(2):
            g = 0
            for n in sorted(range(10), key=lambda n: done[(part, n)]):
                b = (ACCH if part else ACCL)[n]
                g = S.flow(['v_cvt_pk_bf16_f32 v%d, v%d, v%d' % (b + e, b + 2 * e, b + 2 * e + 1) for e in range(4)] +
                           ['s_add_u32 s%d, s%d, %d' % (sT1, sP0, (n // 5) * 81920 + (part * 5 + n % 5) * 8192)], max(g, done[(part, n)] + 4))
                g = self.place_vm2(S, [('buffer_store_dwordx4 v[%d:%d], v%d, %s, s%d offen sc1' % (b, b + 3, vA[0], s4(S_P), sT1), 'p%d' % part)], g, 1)[0]
            gst[part] = g
        assert gst[0] < min(done[(1, n)] for n in range(10))
        g8 = gst[0] + o.get('g8', 80)
        S.flow([[('@vmwait', 'p0')] + self.flag(8)], g8)
        sJ = sFW
        su = ['s_mul_i32 s%d, s%d, 3' % (sFM, sW), 's_add_u32 s%d, s%d, 42' % (sFM, sFM)]
        for j in range(4):
            su += ['s_add_u32 s3, s%d, %d' % (sW, j), 's_bitcmp1_b32 s3, 1', 's_cselect_b32 s%d, s%d, s%d' % (sJ[j], sRH, sRL), 's_and_b32 s3, s3, 1',
                   's_add_u32 s3, s3, s%d' % sJ[j], 's_mul_i32 s3, s3, 54', 's_add_u32 s3, s3, s%d' % sFM, 's_lshl_b32 s%d, s3, 10' % sJ[j]]
        su += ['s_lshl_b32 s%d, s%d, 3' % (sFM, sFM), 's_add_u32 s%d, s%d, s%d' % (sFM, sFM, sCB), 's_mul_i32 s%d, s%d, 5120' % (sFM, sFM)]
        g = S.flow(tmp(self.keep_scc(su), 1), c7 + 2)
        it = []
        for t in range(3):
            it += ['buffer_load_dwordx4 %s, v%d, %s, s%d offen offset:%d sc1' % (self.freg(9 * t + j), vA[0], s4(S_H), sJ[j], t * 1024) for j in range(4)]
            it += ['buffer_load_dwordx4 %s, v%d, %s, s%d offen offset:%d sc1' % (self.freg(9 * t + 4 + n), vA[n >> 2], s4(S_WD), sFM, (n & 3) * 1024) for n in range(5)]
            if t < 2: it.append('s_add_u32 s%d, s%d, 40960' % (sFM, sFM))
        gl = max(max(v for (p, hr, ds), v in lastA.items() if p == 0 or hr == 0) + 1, gAH + sp, g + 1)
        gs = self.place_vm2(S, it, gl, sp)
        if o.get('verbose'): print('g7', g7 - E, 'c7', c7 - E, 'AH end', gAH - E, 'pst', gst[0] - E, gst[1] - E, 'fl', gs[0] - E, gs[-1] - E)
        assert gs[-1] < F0 + 20
        sPA, sPC, sOA, sOB, sOC = sWO[0], sWO[1], sWO[2], sWO[3], sDH[1]
        vO, vO2 = 6, 24
        su = ['s_mul_i32 s%d, s2, 10' % sPC, 's_add_u32 s%d, s%d, s%d' % (sPA, sPC, sW), 's_lshl_b32 s%d, s%d, 13' % (sPA, sPA),
              's_and_b32 s3, s%d, 1' % sW, 's_mul_i32 s3, s3, 5', 's_add_u32 s%d, s%d, s3' % (sPC, sPC), 's_add_u32 s%d, s%d, 4' % (sPC, sPC), 's_lshl_b32 s%d, s%d, 13' % (sPC, sPC),
              's_mul_i32 s3, s%d, 160' % sCB, 's_mul_i32 s%d, s%d, 20480' % (sOA, sRL), 's_mul_i32 s%d, s%d, 20480' % (sOB, sRH),
              's_add_u32 s%d, s%d, s3' % (sOA, sOA), 's_add_u32 s%d, s%d, s3' % (sOB, sOB),
              's_bitcmp1_b32 s%d, 0' % sW, 's_cselect_b32 s%d, s%d, s%d' % (sOC, sOB, sOA), 's_add_u32 s%d, s%d, 128' % (sOC, sOC),
              's_lshl_b32 s3, s%d, 5' % sW, 's_add_u32 s%d, s%d, s3' % (sOA, sOA), 's_add_u32 s%d, s%d, s3' % (sOB, sOB),
              'v_and_b32 v%d, 15, v1' % vO, 'v_mul_u32_u24 v%d, 1280, v%d' % (vO, vO), 'v_lshrrev_b32 v%d, 4, v1' % vO2, 'v_lshl_add_u32 v%d, v%d, 3, v%d' % (vO, vO2, vO),
              'v_add_u32 v%d, 20480, v%d' % (vO2, vO)]
        su += srd(S_X, pX, pX + 1, 2048 * 1280) + srd(S_A, pOUT, pOUT + 1, 2048 * 1280)
        su += ['s_andn2_b32 s3, s2, 7', 's_lshl_b32 s3, s3, 7', 's_and_b32 s%d, s2, 6' % sT2, 's_lshl_b32 s%d, s%d, 1' % (sT2, sT2), 's_add_u32 s3, s3, s%d' % sT2, 's_add_u32 s3, s3, 16',
               'v_and_b32 v%d, 7, v1' % vPA, 'v_lshlrev_b32 v%d, 7, v%d' % (vPA, vPA), 'v_add_u32 v%d, s3, v%d' % (vPA, vPA)]
        g = S.flow(tmp(self.keep_scc(su), 2), max(gAH + 1, B4 + 1, g + 1))
        XR = 240
        xl = ['buffer_load_dwordx2 v[%d:%d], v%d, %s, s%d offen' % (XR + 4 * k + 2 * q, XR + 4 * k + 2 * q + 1, [vO, vO2][q], s4(S_X), [sOA, sOB, sOC][k]) for k in range(3) for q in range(2)]
        gs = self.place_vm2(S, xl + self.poll_issue(), max(g + 1, gs[-1] + sp, g8 + 30), sp)
        c8 = max(gs[-1] + o.get('pd', 30), gst[1] + 2)
        assert c8 >= F0
        pregs = {0: [200 + 4 * p for p in range(8)], 1: [32 + 4 * p for p in range(8)], 2: [144 + 4 * p for p in range(8)]}
        pl = lambda k: ['buffer_load_dwordx4 v[%d:%d], v%d, %s, s%d offen offset:%d sc1' % (pregs[k][p], pregs[k][p] + 3, vA[p >> 2], s4(S_P), [sPA, sPA, sPC][k], (p & 3) * 1024) for p in range(8)]
        assert c8 < S.n() - 2, c8 - F0
        S.at(c8, self.stamp(23) + self.poll_check(8))
        n_in = min(8, (S.n() - 2 - c8) // 3)
        self.place_vm2(S, pl(0)[:n_in], c8 + 1, 3)
        S.at(F0 + 42, ['s_barrier'])
        vFJ = [4, 5, 7, 30]
        su = []
        for j in range(4):
            su += ['s_add_u32 s3, s%d, %d' % (sW, j), 's_and_b32 s3, s3, 3', 's_mul_i32 s3, s3, 20', 's_add_u32 s3, s3, s%d' % sW, 's_lshl_b32 s3, s3, 10', 'v_add_u32 v%d, s3, v%d' % (vFJ[j], vA[0])]
        su += ['s_lshl_b32 s3, s%d, 12' % sW, 'v_add_u32 v25, s3, v%d' % vA[0], 's_and_b32 s3, s%d, 1' % sW, 's_mul_i32 s3, s3, 40960', 's_add_u32 s3, s3, 16384', 'v_add_u32 v252, s3, v%d' % vA[0]]
        g = S.flow(tmp(su, 3), F0 + 2)
        assert g < F0 + 44, g - F0
        fw = sorted(fdone, key=lambda k: fdone[k])
        wl = [(fdone[k] + 4, 'ds_write_b128 v%d, %s offset:%d' % (vFJ[k[0]], facc(*k), k[1] * 4096)) for k in fw]
        nin = sum(1 for e, _ in wl if e < S.n())
        S.flow(wl[:nin], F0 + 44, gmax=S.n() - 1)
        for k, gx in enumerate(o.get('xst', [])): S.at(E + gx, self.stamp([5, 6, 7, 8, 9, 10, 11, 12, 18, 28, 29, 30, 31][k]))
        if o.get('verbose'): print('c8', c8 - F0, 'over', [(k - E, v) for k, v in sorted(S.load.items()) if v > 8 and k >= E - 40])
        L = S.lines() + self.stamp(24) + pl(0)[n_in:] + [l for _, l in wl[nin:]]
        L += [('@vmwait', 'p1')] + self.flag(9) + self.stamp(25) + ['s_add_u32 s%d, s%d, 40960' % (sPA, sPA), 's_waitcnt lgkmcnt(0)', 's_barrier']
        GR, FR = 176, 64
        L += ['s_mov_b32 s3, 0xbfb8aa3b']
        for k in range(3):
            for q in range(2):
                b = FR + q * 16 + (k & 1) * 32 if k < 2 else 8 if q == 0 else 32
                L += ['ds_read_b128 v[%d:%d], v%d offset:%d' % (b + 4 * ww, b + 4 * ww + 3, 252 if k == 2 else 25, k % 2 * 40960 * (k < 2) + q * 20480 + ww * 1024) for ww in range(4)]
        assert FR + 64 <= 128
        L += self.poll_issue()
        for k in range(3):
            for q in range(2):
                b = FR + q * 16 + (k & 1) * 32 if k < 2 else 8 if q == 0 else 32
                for x, y in ((0, 4), (8, 12), (0, 8)):
                    L += ['v_pk_add_f32 v[%d:%d], v[%d:%d], v[%d:%d]' % (b + x + e, b + x + e + 1, b + x + e, b + x + e + 1, b + y + e, b + y + e + 1) for e in (0, 2)]
                L += ['v_mul_f32 v%d, s3, v%d' % (b + 4 + e, b + e) for e in range(4)]
                L += ['v_exp_f32 v%d, v%d' % (b + 4 + e, b + 4 + e) for e in range(4)]
                L += ['v_add_f32 v%d, 1.0, v%d' % (b + 4 + e, b + 4 + e) for e in range(4)]
                L += ['v_rcp_f32 v%d, v%d' % (b + 4 + e, b + 4 + e) for e in range(4)]
                L += ['v_mul_f32 v%d, v%d, v%d' % (GR + 8 * k + 4 * q + e, b + e, b + 4 + e) for e in range(4)]
        def slot(k):
            A, T = 64, 72
            R = []
            for p in range(8):
                r = pregs[k][p]
                d = A if p == 0 else T + 8 * (p & 1)
                for e in range(4):
                    R += ['v_lshlrev_b32 v%d, 16, v%d' % (d + 2 * e, r + e), 'v_and_b32 v%d, s%d, v%d' % (d + 2 * e + 1, sMask, r + e)]
                if p: R += ['v_pk_add_f32 v[%d:%d], v[%d:%d], v[%d:%d]' % (A + 2 * e, A + 2 * e + 1, A + 2 * e, A + 2 * e + 1, d + 2 * e, d + 2 * e + 1) for e in range(4)]
            for e in range(4):
                R += ['v_lshlrev_b32 v%d, 16, v%d' % (T + 2 * e, XR + 4 * k + e), 'v_and_b32 v%d, s%d, v%d' % (T + 2 * e + 1, sMask, XR + 4 * k + e)]
            R += ['v_pk_fma_f32 v[%d:%d], v[%d:%d], v[%d:%d], v[%d:%d]' % (A + 2 * e, A + 2 * e + 1, A + 2 * e, A + 2 * e + 1, GR + 8 * k + 2 * e, GR + 8 * k + 2 * e + 1, T + 2 * e, T + 2 * e + 1) for e in range(4)]
            R += ['v_cvt_pk_bf16_f32 v%d, v%d, v%d' % (88 + 4 * k + e, A + 2 * e, A + 2 * e + 1) for e in range(4)]
            R += ['buffer_store_dwordx2 v[%d:%d], v%d, %s, s%d offen%s' % (88 + 4 * k + 2 * q, 89 + 4 * k + 2 * q, [vO, vO2][q], s4(S_A), [sOA, sOB, sOC][k], o.get('outfl', '')) for q in range(2)]
            return R
        L += slot(0) + self.stamp(26) + self.poll_check(9) + self.stamp(27)
        L += ['s_cmp_lt_u32 s%d, 2' % sW, 's_cbranch_scc0 %s' % self.lab('noc')] + pl(2) + [self.lab('noc') + ':'] + pl(1) + slot(1)
        L += ['s_cmp_lt_u32 s%d, 2' % sW, 's_cbranch_scc0 %s' % self.lab('fin')] + slot(2) + [self.lab('fin') + ':']
        return L

    def place_vm2(self, S, lines, g0, sp):
        vg = self.opt.get('vgap', 3)
        def isvm(l):
            t = l[0] if isinstance(l, tuple) else l
            return t.startswith('buffer_')
        def near(g): return any(isvm(l) for y in range(g - vg + 1, g + vg) for l in S.fill.get(y, []))
        g, out, pend = g0, [], []
        for l in lines:
            if isinstance(l, tuple) and isinstance(l[0], int):
                g = max(g, l[0]); l = l[1]
            if not isvm(l):
                pend.append(l); continue
            k = 0
            while near(g) and k < 6: g += 1; k += 1
            if pend:
                S.at(g - 1, pend); pend = []
            S.at(g, l)
            out.append(g); g += sp
        assert not pend
        return out

    def build(self, stats=None):
        o = self.opt
        lazy = o.get('lazy', 8)
        L = self.prologue()
        pre, S = self.gemms()
        L += [('@vmwait', 'dma0'), 's_barrier'] + self.stamp(1) + pre
        L += S.lines()
        L += self.stamp(3)
        L += self.p2_epilogue()
        L += self.stamp(4)
        out, st = process(L, stats=stats, lazy=lazy)
        oa, st = self.attention(st, stats, lazy)
        out += oa
        L = []
        if self.SO: L += ['s_waitcnt vmcnt(0)'] + self.stamp(13) + self.stamp(15, True) + self.stamps_out()
        L += ['s_endpgm']
        out += process(L, st, stats=stats, lazy=lazy)[0]
        for blk in self.ool:
            out += process(blk, stats=stats)[0]
        out += [self.lab('end') + ':']
        return out
```

```python
from asmlib import *
from k1 import srd, half_reduce, layernorm

MF = 'v_mfma_f32_16x16x32_bf16'
MF32 = 'v_mfma_f32_32x32x16_bf16'
WS_KV, WS_XN, WS_H, WS_CTX, WS_W, WS_Q, WS_DBG = 0, 32 << 20, 36 << 20, 44 << 20, 60 << 20, 72 << 20, 128 << 20
WS_FL = 35 << 20

S_A, S_B0, S_B1, S_B2, S_ST, S_FL, S_X = 4, 8, 12, 16, 20, 24, 28
pX, pC, pWQ, pUK, pUV, pWO, pBX, pWG, pWU, pWD, pOUT, pDBG, pWS = [32 + 2 * i for i in range(13)]
sW, sH, sI, sMask, sMB, sMA = 58, 59, 60, 61, 62, 63
sAo = [64, 65, 66, 67]
sBo = [68, 69, 70, 71]
sGo = [72, 73]
sFB, sT0, sT1, sT2, sSO = 74, 75, 76, 77, 78
sSpin = 79
S_W = 80
sStamp = 98
sRot, sInc, sIncB, sIncG, sRot2 = 84, 85, 86, 87, 88
sEp, sBase = 89, 90
vA = [2, 3]; vB = [4, 5]; vG = [6, 7]
vRA1 = [8, 9]; vRA2 = [10, 11]
vRB = list(range(12, 20)); vRG = list(range(20, 24))
vSTK, vSTV, vFL, vPA, vPR, vT0, vT1, vSTAMP = 24, 25, 26, 27, 28, 29, 30, 31
vBASE = 0

def s4(b): return 's[%d:%d]' % (b, b + 3)

def srd_off(d, p, off, nrec):
    o = ['s_add_u32 s%d, s%d, %s' % (d, p, off if isinstance(off, str) else '0x%x' % off), 's_addc_u32 s%d, s%d, 0' % (d + 1, p + 1)]
    o += ['s_mov_b32 s%d, %s' % (d + 2, nrec if isinstance(nrec, str) else '0x%x' % nrec), 's_mov_b32 s%d, 0x00020000' % (d + 3)]
    return o

def flat(x):
    o = []
    for y in x:
        if isinstance(y, list): o += flat(y)
        else: o.append(y)
    return o

class K:
    H16 = False
    def __init__(self, name, opt):
        self.name = name
        self.opt = opt
        self.SO = opt.get('stamps', False)
        self.nlab = 0
        self.ool = []
    def lab(self, s): return '%s_%s' % (self.name, s)
    def stamp(self, i, real=False):
        if not self.SO: return []
        if real:
            return ['s_memrealtime s[%d:%d]' % (sStamp, sStamp + 1), 's_waitcnt lgkmcnt(0)', 'v_writelane_b32 v%d, s%d, %d' % (vSTAMP, sStamp, i)]
        return ['s_memtime s[%d:%d]' % (sStamp, sStamp + 1), 's_memrealtime s[%d:%d]' % (sStamp + 2, sStamp + 3), 's_waitcnt lgkmcnt(0)',
                'v_writelane_b32 v%d, s%d, %d' % (vSTAMP, sStamp, i), 'v_writelane_b32 v%d, s%d, %d' % (vSTAMP, sStamp + 2, 32 + i)]
    def stamps_out(self):
        if not self.SO: return []
        return srd_off(S_X, pWS, WS_DBG, 0x40000) + [
            's_lshl_b32 s3, s2, 2', 's_add_u32 s3, s3, s%d' % sW, 's_lshl_b32 s3, s3, 8',
            'v_lshlrev_b32 v2, 2, v1', 'v_add_u32 v2, s3, v2',
            'buffer_store_dword v%d, v2, %s, 0 offen' % (vSTAMP, s4(S_X))]
    def flag(self, val):
        return ['v_add_u32 v%d, %d, v%d' % (vT0, val, vBASE), 'buffer_store_dword v%d, v%d, %s, 0 offen sc1' % (vT0, vFL, s4(S_FL))]
    def poll_issue(self):
        return ['buffer_load_dword v%d, v%d, %s, 0 offen sc1' % (vPR, vPA, s4(S_FL))]
    MAXF = 5
    def poll_check(self, need):
        self.nlab += 1
        a, b = self.lab('pl%d' % self.nlab), self.lab('pd%d' % self.nlab)
        chk = ['v_sub_u32 v%d, v%d, v%d' % (vPR, vPR, vBASE), 'v_subrev_u32 v%d, %d, v%d' % (vPR, need, vPR), 'v_cmp_ge_u32 vcc, %d, v%d' % (self.MAXF - need, vPR)]
        self.ool.append([a + ':', 's_sleep 2'] + self.poll_issue() + ['s_waitcnt vmcnt(0)'] + chk +
                ['s_add_u32 s%d, s%d, 1' % (sSpin, sSpin), 's_cmp_eq_u64 vcc, -1', 's_cbranch_scc1 %s' % b,
                's_cmp_lt_u32 s%d, 0x8000' % sSpin, 's_cbranch_scc1 %s' % a, 's_branch %s' % b])
        return chk + ['s_mov_b32 s%d, 0' % sSpin, 's_cmp_eq_u64 vcc, -1', 's_cbranch_scc0 %s' % a, b + ':']
    def epoch_out(self):
        return ['s_add_u32 s%d, s%d, 1' % (sEp, sEp), 'v_mov_b32 v%d, s%d' % (vT0, sEp), 'v_add_u32 v%d, 0x8000, v%d' % (vT1, vFL),
                'buffer_store_dword v%d, v%d, %s, 0 offen sc1' % (vT0, vT1, s4(S_FL))]

    def prologue(self):
        L = ['s_cmp_lt_u32 s2, 256', 's_cbranch_scc1 %s' % self.lab('go'), 's_endpgm', self.lab('go') + ':']
        L += ['s_load_dwordx16 s[32:47], s[0:1], 0', 's_load_dwordx8 s[48:55], s[0:1], 64', 's_load_dwordx2 s[56:57], s[0:1], 96']
        L += ['v_and_b32 v1, 63, v0', 'v_lshrrev_b32 v%d, 6, v0' % vT0, 'v_mov_b32 v%d, 0' % vSTAMP,
              'v_readfirstlane_b32 s%d, v%d' % (sW, vT0)]
        L += ['s_and_b32 s%d, s2, 7' % sT0, 's_bfe_u32 s%d, s2, 0x20003' % sT1, 's_lshr_b32 s%d, s2, 5' % sI,
              's_lshl_b32 s%d, s%d, 2' % (sH, sT0), 's_add_u32 s%d, s%d, s%d' % (sH, sH, sT1)]
        L += ['s_mul_i32 s%d, s%d, 3' % (sFB, sT0), 's_add_u32 s%d, s%d, s%d' % (sFB, sFB, sT1),
              's_mul_i32 s%d, s%d, 3' % (sT2, sI), 's_sub_u32 s%d, s%d, s%d' % (sT2, sT0, sT2), 's_and_b32 s%d, s%d, 7' % (sT2, sT2),
              's_add_u32 s%d, s%d, 24' % (sT2, sT2), 's_cmp_eq_u32 s%d, 3' % sT1, 's_cselect_b32 s%d, s%d, s%d' % (sFB, sT2, sFB)]
        L += ['s_lshl_b32 s%d, s%d, 1' % (sRot2, sT1), 's_add_u32 s%d, s%d, s%d' % (sRot2, sRot2, sI)]
        if self.opt.get('norot'): L += ['s_mov_b32 s%d, 0' % sRot2]
        L += ['s_and_b32 s%d, s%d, 7' % (sRot, sRot2), 's_sub_u32 s%d, s%d, 10' % (sInc, sRot2), 's_cselect_b32 s%d, s%d, s%d' % (sRot2, sRot2, sInc)]
        if self.opt.get('rot2') == 0: L += ['s_mov_b32 s%d, 0' % sRot2]
        if self.opt.get('rot2') == 'i': L += ['s_mov_b32 s%d, s%d' % (sRot2, sI)]
        if self.opt.get('rot2') == 'x': L += ['s_mov_b32 s%d, s%d' % (sRot2, sT0)]
        L += ['s_mov_b32 s%d, 0xffff0000' % sMask,
              's_lshl_b32 s%d, s%d, 12' % (sMB, sW), 's_lshl_b32 s%d, s%d, 13' % (sMA, sW), 's_add_u32 s%d, s%d, 0x10000' % (sMA, sMA)]
        L += ['s_lshl_b32 s%d, s%d, 2' % (sT0, sI), 's_add_u32 s%d, s%d, s%d' % (sT0, sT0, sW), 's_lshl_b32 s%d, s%d, 16' % (sAo[0], sT0)]
        for j in range(1, 4):
            L.append('s_add_u32 s%d, s%d, %d' % (sAo[j], sAo[0], j * 16384 - (j & 1) * 2048))
        L += ['s_lshl_b32 s%d, s%d, 17' % (sBo[0], sW), 's_lshl_b32 s%d, s%d, 8' % (sT1, sH), 's_add_u32 s%d, s%d, s%d' % (sBo[0], sBo[0], sT1)]
        for j in range(1, 4):
            L.append('s_add_u32 s%d, s%d, %d' % (sBo[j], sBo[0], j * 32768 - j * 1024))
        L += self.a_dma_addr(1024, sRot)
        t0, t1 = vT0, vT1
        L += ['v_lshrrev_b32 v%d, 4, v1' % t0, 'v_and_b32 v%d, 15, v1' % t1,
              'v_lshlrev_b32 v%d, 1, v%d' % (vB[1], t0), 'v_xor_b32 v%d, v%d, v%d' % (t1, t1, vB[1]),
              'v_lshl_add_u32 v%d, s%d, 6, v%d' % (t0, sRot, t0),
              'v_lshlrev_b32 v%d, 13, v%d' % (t0, t0), 'v_lshl_add_u32 v%d, v%d, 4, v%d' % (vB[0], t1, t0),
              'v_xor_b32 v%d, 0x80, v%d' % (vB[1], vB[0])]
        vLN = 40
        L += ['s_lshl_b32 s%d, s2, 2' % sT2, 's_add_u32 s%d, s%d, s%d' % (sT2, sT2, sW),
              's_lshl_b32 s%d, s%d, 1' % (sT1, sT2),
              'v_lshrrev_b32 v%d, 5, v1' % t0, 'v_add_u32 v%d, s%d, v%d' % (t0, sT1, t0),
              's_movk_i32 s%d, 1280' % sT1, 'v_mul_lo_u32 v%d, v%d, s%d' % (t0, t0, sT1), 'v_and_b32 v%d, 31, v1' % t1,
              'v_lshl_add_u32 v%d, v%d, 4, v%d' % (vLN, t1, t0), 'v_lshl_add_u32 v%d, v%d, 3, v%d' % (vLN + 1, t1, t0)]
        L += ['s_waitcnt lgkmcnt(0)']
        L += srd(S_B0, pUK, pUK + 1, 512 * 8192) + srd(S_B1, pUV, pUV + 1, 512 * 8192) + srd(S_A, pC, pC + 1, 2048 * 1024)
        L += srd(S_X, pX, pX + 1, 2048 * 1280)
        LNL, LNX, LNT = 44, 56, 80
        d0 = self.dma1(0)
        L += flat(d0)
        L += srd_off(S_FL, pWS, WS_FL, 32768 + 4) + ['s_buffer_load_dword s%d, %s, 0x8000' % (sEp, s4(S_FL))]
        L += ['buffer_load_dwordx4 v[%d:%d], v%d, %s, 0 offen' % (LNL, LNL + 3, vLN, s4(S_X)),
              'buffer_load_dwordx4 v[%d:%d], v%d, %s, 0 offen offset:512' % (LNL + 4, LNL + 7, vLN, s4(S_X)),
              'buffer_load_dwordx2 v[%d:%d], v%d, %s, 0 offen offset:1024' % (LNL + 8, LNL + 9, vLN + 1, s4(S_X))]
        L += flat(self.dma1(1))
        L += self.stamp(0) + self.stamp(14, True)
        if self.opt.get('codepf', True):
            L += ['s_getpc_b64 s[%d:%d]' % (S_W, S_W + 1), self.lab('pc') + ':', 'v_lshlrev_b32 v34, 7, v0']
            for i in range(self.opt.get('codepf_n', 2)):
                L += ['v_min_u32 v32, %s-%s-4, v34' % (self.lab('end'), self.lab('pc')), 'v_mov_b32 v33, s%d' % (S_W + 1),
                      'v_add_co_u32 v32, vcc, s%d, v32' % S_W, 'v_addc_co_u32 v33, vcc, 0, v33, vcc',
                      'global_load_dword a%d, v[32:33], off' % (112 + i), 'v_add_u32 v34, 0x8000, v34']
        L += ['s_cmp_lt_u32 s%d, 640' % sT2,
              's_cselect_b32 s%d, s%d, s%d' % (S_W, pWO, pWD), 's_cselect_b32 s%d, s%d, s%d' % (S_W + 1, pWO + 1, pWD + 1),
              's_mov_b32 s%d, 0x%x' % (S_W + 2, 1728 * 1280), 's_cmov_b32 s%d, 0x%x' % (S_W + 2, 4096 * 1280),
              's_cselect_b32 s%d, 0, 640' % sT0, 's_mov_b32 s%d, 0x00020000' % (S_W + 3)]
        L += ['s_sub_u32 s%d, s%d, s%d' % (sT0, sT2, sT0),
              's_mul_i32 s%d, s%d, 52429' % (sT1, sT0), 's_lshr_b32 s%d, s%d, 18' % (sT1, sT1),
              's_mul_i32 s3, s%d, 5' % sT1, 's_sub_u32 s%d, s%d, s3' % (sT0, sT0),
              's_mul_i32 s%d, s%d, %d' % (sT1, sT1, 32 * 1280), 's_lshl_b32 s%d, s%d, 8' % (sT0, sT0),
              's_add_u32 s%d, s%d, s%d' % (sT0, sT0, sT1),
              'v_lshrrev_b32 v36, 4, v1', 's_movk_i32 s3, 1280', 'v_mul_lo_u32 v36, v36, s3', 'v_and_b32 v37, 15, v1',
              'v_lshl_add_u32 v36, v37, 4, v36', 'v_add_u32 v36, s%d, v36' % sT0]
        for j in range(8 if not self.opt.get('now') else 0):
            if j % 4 == 0:
                L.append('s_add_u32 m0, s%d, %d' % (sMA, 0x10000 + j * 1024))
            L += ['s_mov_b32 s3, %d' % (j * 4 * 1280 - (j % 4) * 1024),
                  ('buffer_load_dwordx4 v36, %s, s3 offen offset:%d lds' % (s4(S_W), (j % 4) * 1024), 'wt')]
        L += ['s_lshl_b32 s%d, s%d, 13' % (sT0, sT2), 's_add_u32 s%d, s%d, 0x%x' % (sT0, sT0, WS_W),
              's_cmp_lt_u32 s%d, 910' % sT2, 's_cselect_b32 s%d, 8192, 0' % sT1]
        self.w_srd = srd_off(S_W, pWS, 's%d' % sT0, 's%d' % sT1)
        L += self.w_srd
        L += self.read_addrs()
        L += srd_off(S_ST, pWS, WS_XN, 2048 * 1280)
        L += ['s_mul_i32 s%d, s%d, 0x9e3779b1' % (sBase, sEp), 'v_mov_b32 v%d, s%d' % (vBASE, sBase)]
        L += layernorm(LNL, LNX, LNT, sMask)
        L += ['buffer_store_dwordx4 v[%d:%d], v%d, %s, 0 offen sc1' % (LNL, LNL + 3, vLN, s4(S_ST)),
              'buffer_store_dwordx4 v[%d:%d], v%d, %s, 0 offen offset:512 sc1' % (LNL + 4, LNL + 7, vLN, s4(S_ST)),
              ('buffer_store_dwordx2 v[%d:%d], v%d, %s, 0 offen offset:1024 sc1' % (LNL + 8, LNL + 9, vLN + 1, s4(S_ST)), 'xn')]
        return L

    def a_dma_addr(self, stride, rot):
        t0, t1 = vT0, vT1
        return ['v_lshrrev_b32 v%d, 3, v1' % t0, 's_movk_i32 s3, %d' % stride, 'v_mul_lo_u32 v%d, v%d, s3' % (t0, t0),
                'v_lshl_add_u32 v%d, s%d, 7, v%d' % (t0, rot, t0),
                'v_lshrrev_b32 v%d, 4, v1' % t1, 'v_and_b32 v%d, 7, v1' % vA[1], 'v_xor_b32 v%d, v%d, v%d' % (t1, t1, vA[1]),
                'v_lshl_add_u32 v%d, v%d, 4, v%d' % (vA[0], t1, t0), 'v_xor_b32 v%d, 4, v%d' % (t1, t1),
                'v_lshl_add_u32 v%d, v%d, 4, v%d' % (vA[1], t1, t0), 'v_add_u32 v%d, %d, v%d' % (vA[1], 8 * stride - 1024, vA[1])]

    def read_addrs(self):
        t0, t1 = vT0, vT1
        L = []
        L += ['v_and_b32 v%d, 15, v1' % t0, 'v_lshrrev_b32 v%d, 1, v%d' % (t1, t0), 'v_lshrrev_b32 v%d, 4, v1' % vRA1[0],
              'v_xor_b32 v%d, v%d, v%d' % (t1, t1, vRA1[0]), 'v_lshlrev_b32 v%d, 7, v%d' % (t0, t0),
              'v_lshl_add_u32 v%d, v%d, 4, v%d' % (t0, t1, t0),
              'v_add_u32 v%d, s%d, v%d' % (vRA2[0], sMA, t0), 'v_xor_b32 v%d, 64, v%d' % (vRA2[1], vRA2[0]),
              's_and_b32 s3, s%d, 1' % sW, 's_lshl_b32 s3, s3, 14', 's_add_u32 s3, s3, 0x10000',
              'v_add_u32 v%d, s3, v%d' % (vRA1[0], t0), 'v_xor_b32 v%d, 64, v%d' % (vRA1[1], vRA1[0])]
        L += ['v_lshrrev_b32 v%d, 4, v1' % t0, 'v_lshlrev_b32 v%d, 11, v%d' % (t0, t0),
              'v_bfe_u32 v%d, v1, 2, 2' % t1, 'v_lshl_add_u32 v%d, v%d, 8, v%d' % (t0, t1, t0),
              'v_bfe_u32 v%d, v1, 2, 3' % t1, 'v_lshl_add_u32 v%d, v%d, 5, v%d' % (t0, t1, t0),
              'v_and_b32 v%d, 3, v1' % t1, 'v_lshl_add_u32 v%d, v%d, 3, v%d' % (t0, t1, t0),
              's_lshr_b32 s3, s%d, 1' % sW, 's_lshl_b32 s3, s3, 7', 'v_xor_b32 v%d, s3, v%d' % (vRB[0], t0)]
        for nb in range(1, 8):
            L.append('v_xor_b32 v%d, %d, v%d' % (vRB[nb], nb * 32, vRB[0]))
        L += ['v_lshrrev_b32 v%d, 5, v1' % t0, 'v_lshlrev_b32 v%d, 12, v%d' % (t0, t0),
              'v_bfe_u32 v%d, v1, 4, 1' % t1, 'v_lshl_add_u32 v%d, v%d, 10, v%d' % (t0, t1, t0),
              'v_bfe_u32 v%d, v1, 2, 2' % t1, 'v_lshl_add_u32 v%d, v%d, 7, v%d' % (t0, t1, t0),
              'v_bfe_u32 v%d, v1, 3, 2' % t1, 'v_lshl_add_u32 v%d, v%d, 5, v%d' % (t0, t1, t0),
              'v_and_b32 v%d, 3, v1' % t1, 'v_lshl_add_u32 v%d, v%d, 3, v%d' % (vRG[0], t1, t0)]
        for nb in range(1, 4):
            L.append('v_xor_b32 v%d, %d, v%d' % (vRG[nb], nb * 32, vRG[0]))
        L += ['v_lshrrev_b32 v%d, 3, v1' % t0, 'v_lshl_add_u32 v%d, s%d, 6, v%d' % (t0, sRot2, t0), 's_movk_i32 s3, 3456', 'v_mul_lo_u32 v%d, v%d, s3' % (t0, t0),
              'v_bfe_u32 v%d, v1, 4, 1' % t1, 'v_lshlrev_b32 v%d, 1, v%d' % (t1, t1), 'v_and_b32 v%d, 7, v1' % vG[1],
              'v_xor_b32 v%d, v%d, v%d' % (t1, t1, vG[1]), 'v_lshl_add_u32 v%d, v%d, 4, v%d' % (vG[0], t1, t0),
              'v_xor_b32 v%d, 4, v%d' % (t1, t1), 'v_lshl_add_u32 v%d, v%d, 4, v%d' % (vG[1], t1, t0)]
        L += ['s_mul_i32 s%d, s%d, %d' % (sGo[0], sW, 16 * 3456), 's_lshl_b32 s3, s%d, 7' % sFB,
              's_add_u32 s%d, s%d, s3' % (sGo[0], sGo[0]), 's_add_u32 s%d, s%d, %d' % (sGo[1], sGo[0], 8 * 3456 - 1024)]
        L += ['s_lshr_b32 s3, s%d, 1' % sW, 's_lshl_b32 s3, s3, 11', 'v_lshlrev_b32 v%d, 4, v1' % t0,
              'v_add_u32 v%d, s3, v%d' % (vSTK, t0), 'v_add_u32 v%d, s3, v%d' % (vSTV, vSTK),
              's_lshl_b32 s3, s2, 7', 'v_mov_b32 v%d, s3' % vFL, 'v_mov_b32 v%d, 0x7fff0000' % t0, 'v_cmp_eq_u32 vcc, 0, v0',
              's_nop 1', 'v_cndmask_b32 v%d, v%d, v%d, vcc' % (vFL, t0, vFL)]
        L += ['s_lshl_b32 s%d, s%d, 4' % (sT0, sI), 's_lshl_b32 s3, s%d, 2' % sW, 's_sub_u32 s%d, 240, s%d' % (sT1, sT0),
              's_add_u32 s%d, s%d, s3' % (sT0, sT0), 's_add_u32 s%d, s%d, s3' % (sT1, sT1),
              'v_mov_b32 v%d, s%d' % (t0, sT0), 'v_mov_b32 v%d, s%d' % (t1, sT1), 'v_cmp_lt_u32 vcc, 31, v1',
              'v_and_b32 v%d, 3, v1' % vPA, 's_nop 0', 'v_cndmask_b32 v%d, v%d, v%d, vcc' % (t0, t0, t1), 'v_add_lshl_u32 v%d, v%d, v%d, 7' % (vPA, vPA, t0)]
        return L

    def dmaA(self, t, tag, fl):
        st = t & 1
        A = []
        for p in range(8):
            it = []
            if p % 4 == 0: it.append('s_add_u32 m0, s%d, %d' % (sMA, st * 32768 + (p >> 2) * 4096))
            it.append(('buffer_load_dwordx4 v%d, %s, s%d offen offset:%d%s lds' % (vA[p & 1], s4(S_A), sAo[p >> 1], (p & 3) * 1024, fl), tag))
            A.append(it)
        return A
    def dmaB(self, t, sub, S, tag, fl):
        st = t & 1
        B = []
        for j in range(4):
            it = []
            if j == 0: it.append('s_add_u32 m0, s%d, %d' % (sMB, st * 32768 + sub * 16384))
            it.append(('buffer_load_dwordx4 v%d, %s, s%d offen offset:%d%s lds' % (vB[j >> 1], s4(S), sBo[j], j * 1024, fl), tag))
            B.append(it)
        return B
    def rot_step(self, n):
        return [['s_add_u32 s%d, s%d, 1' % (sRot, sRot), 's_cmp_eq_u32 s%d, %d' % (sRot, n), 's_cselect_b32 s%d, %d, 1' % (sInc, 1 - n), 's_cmov_b32 s%d, 0' % sRot],
                's_lshl_b32 s%d, s%d, 19' % (sIncB, sInc)]
    def dma1(self, t):
        tag = 'dma%d' % t
        it = self.dmaB(t, 0, S_B0, tag, '') + self.dmaA(t, tag, '')[:4] + self.dmaB(t, 1, S_B1, tag, '') + self.dmaA(t, tag, '')[4:]
        it[1] = it[1] + self.rot_step(8)
        it[11] = it[11] + ['v_add_u32 v%d, s%d, v%d' % (vB[0], sIncB, vB[0]), 'v_add_u32 v%d, s%d, v%d' % (vB[1], sIncB, vB[1])]
        if t < 7: it[15] = it[15] + ['v_lshl_add_u32 v%d, s%d, 7, v%d' % (v, sInc, v) for v in vA]
        return it
    def dma2(self, t):
        tag = 'dma%d' % t
        st = t & 1
        G = []
        for j in range(4):
            it = []
            if j % 2 == 0: it.append('s_add_u32 m0, s%d, %d' % (sMB, st * 32768 + 16384 + (j >> 1) * 2048))
            it.append(('buffer_load_dwordx4 v%d, %s, s%d offen offset:%d lds' % (vG[j & 1], s4([S_B1, S_B2][j >> 1]), sGo[j & 1], (j & 1) * 1024), tag))
            G.append(it)
        A = self.dmaA(t, tag, self.opt.get('xnfl', ' sc1'))
        it = G + A[:4] + self.dmaB(t, 0, S_B0, tag, '') + A[4:]
        if t == 17: return it
        it[1] = it[1] + self.rot_step(10) + ['s_mul_i32 s%d, s%d, %d' % (sIncG, sInc, 64 * 3456)]
        it[5] = it[5] + ['v_add_u32 v%d, s%d, v%d' % (v, sIncG, v) for v in vG]
        it[11] = it[11] + ['v_add_u32 v%d, s%d, v%d' % (v, sIncB, v) for v in vB]
        it[15] = it[15] + ['v_lshl_add_u32 v%d, s%d, 7, v%d' % (v, sInc, v) for v in vA]
        return it
    def dmaKV(self, t):
        tag = 'dma%d' % t
        st = t & 1
        it = []
        for half in range(2):
            for p in range(8):
                x = []
                if p % 4 == 0:
                    x.append('s_add_u32 m0, s%d, %d' % (sMA, (half - 1) * 65536 + st * 32768 + (p >> 2) * 4096))
                x.append(('buffer_load_dwordx4 v%d, %s, s%d offen offset:%d sc1 lds' % (vA[p >> 2], s4(S_A), sAo[2 * st + half], (p & 3) * 1024), tag))
                it.append(x)
        return it

    def p1_tile(self, nb, mb):
        if nb < 4: p, b = (nb >> 1) * 8 + mb, nb & 1
        else: p, b = 16 + (nb - 4) * 4 + (mb >> 1), mb & 1
        if p < 28: return ('v', (144 if b else 32) + 4 * p)
        return ('a', 224 + (p - 28) * 8 + 4 * b)
    def p2_tile(self, nb, mb):
        k = nb * 4 + mb
        return ('a', 64 + 4 * k) if k < 40 else ('v', 160 + 4 * (k - 40))

    def gemms(self):
        o = self.opt
        S = Stream()
        subs = []
        for t in range(18):
            for ks in range(2):
                ph = 1 if t < 8 else 2
                base = S.n()
                subs.append((ph, t, ks, base))
                first = ks == 0 and t in (0, 8)
                ng, nm = (8, 8) if ph == 1 else (16, 4)
                for nb in range(ng):
                    for mb in (range(nm) if nb % 2 == 0 else reversed(range(nm))):
                        k, r = self.p1_tile(nb, mb) if ph == 1 else self.p2_tile(nb, mb)
                        d = vr(r, 4, k)
                        a, b = ar(self.fragA(ph, ks, mb), 4), ar(self.fragB(ph, nb), 4)
                        if ph == 2 or nb < 4: a, b = b, a
                        S.add('%s %s, %s, %s, %s' % (MF, d, a, b, '0' if first else d))
        BAR = o.get('bar', 39)
        pre = []
        for si, (ph, t, ks, base) in enumerate(subs):
            ng, nm, ring = (8, 8, 4) if ph == 1 else (16, 4, 8)
            rdA = [self.readA(ph, t, ks, mb) for mb in range(nm)]
            rdB = [self.readB(ph, t, ks, nb) for nb in range(ng)]
            lo = -10 ** 9
            if ks == 0 and t > 0:
                lo = base - 64 + BAR
                S.at(lo, [('@vmwait', 'dma%d' % t), 's_waitcnt lgkmcnt(0)', 's_barrier'])
            items = []
            for nb in range(ng):
                g = base + (nb - ring + 1) * nm - 1
                if t == 8 and ks == 0:
                    g = base - 64 + BAR if nb < 4 else max(g, base - 1)
                items.append((max(g, lo), 0, rdB[nb]))
            for mb in range(nm):
                if ks == 0: g = lo + 1 + 2 * mb
                else: g = base - 64 + 8 + mb * (40 // nm)
                items.append((g, 1, [rdA[mb]]))
            items.sort(key=lambda x: (x[0], x[1]))
            for g, _, ls in items:
                if g < 0: pre += ls
                else:
                    for l in ls:
                        gg = S.flow([(g, l)], g)
                        if ks == 1: assert gg < base + 34, (t, gg - base)
        for t in range(2, 20):
            g0 = (t - 2) * 128 + 64 + BAR
            its = self.dma1(t) if t < 8 else self.dma2(t) if t < 18 else self.dmaKV(t)
            if t == 19:
                S.at(g0, ['s_waitcnt lgkmcnt(0)', 's_barrier'])
            span = o.get('dspan', 64) if t < 19 else 22
            if o.get('nodma'): its = []
            if o.get('noA'): its = [x for x in its if not any(isinstance(y, tuple) and s4(S_A) in y[0] for y in x)]
            if t in (7, 17): span = min(span, 64)
            for k, it in enumerate(its):
                g = g0 + 2 + k * span // 16
                if it[0].startswith('s_add_u32 m0') if isinstance(it[0], str) else False:
                    S.at(g - 1, it[0]); it = it[1:]
                S.at(g, it[0], front=True)
                if len(it) > 1: S.flow(it[1:], g)
        self.extras(S, BAR)
        return pre, S

    def fragA(self, ph, ks, mb): return ks * 32 + mb * 4
    def fragB(self, ph, nb):
        if ph == 1: return 64 + (nb & 3) * 4
        s = nb & 7
        return 16 + s * 4 if s < 4 else 48 + (s - 4) * 4
    def readA(self, ph, t, ks, mb):
        return 'ds_read_b128 %s, v%d offset:%d' % (ar(self.fragA(ph, ks, mb), 4), (vRA1 if ph == 1 else vRA2)[ks], (t & 1) * 32768 + mb * 2048)
    def readB(self, ph, t, ks, nb):
        f = self.fragB(ph, nb)
        st = (t & 1) * 32768
        if ph == 1: v, off, dj = vRB[nb & 3], st + (nb >> 2) * 16384 + ks * 8192, 1024
        elif nb >= 8: v, off, dj = vRB[nb - 8], st + ks * 8192, 1024
        else: v, off, dj = vRG[nb >> 1], st + 16384 + ks * 8192 + (nb & 1) * 2048, 512
        return ['ds_read_b64_tr_b16 %s, v%d offset:%d' % (ar(f + 2 * j, 2), v, off + j * dj) for j in range(2)]

    def extras(self, S, BAR):
        o = self.opt
        bar = lambda t: t * 128 + 64 + BAR
        S.at(bar(1), [('@vmwait', 'xn')], front=True)
        S.flow(self.flag(1), bar(1) + 1)
        rd = ['v_lshrrev_b32 v%d, 2, v1' % vT1, 'v_lshlrev_b32 v%d, 8, v%d' % (vT1, vT1), 'v_and_b32 v%d, 3, v1' % vT0,
              'v_lshl_add_u32 v%d, v%d, 3, v%d' % (vT1, vT0, vT1), 's_add_u32 s3, s%d, 0x10000' % sMA, 'v_add_u32 v%d, s3, v%d' % (vT1, vT1)]
        for q in range(8):
            for j in range(2):
                rd.append('ds_read_b64_tr_b16 %s, v%d offset:%d' % (ar(80 + 4 * q + 2 * j, 2), vT1, q * 32 + j * 4096))
        g = S.flow(rd, 2 * 128 + 44, cap=4)
        stv = ['v_lshlrev_b32 v%d, 4, v1' % vT0, 's_movk_i32 s%d, 4096' % sSO]
        g = S.flow(stv, g + 1)
        for q in range(8 if not o.get('now') else 0):
            S.flow([('buffer_store_dwordx4 %s, v%d, %s, %s offen offset:%d sc1' % (ar(80 + 4 * q, 4), vT0, s4(S_W), '0' if q < 4 else 's%d' % sSO, (q & 3) * 1024), 'kv')],
                   3 * 128 + 44 + q * 7)
        if o.get('wpf'):
            pf = [['s_cmp_eq_u32 s%d, 2' % sW, 's_cselect_b32 s%d, s%d, s%d' % (S_X, pWG, pWU), 's_cselect_b32 s%d, s%d, s%d' % (S_X + 1, pWG + 1, pWU + 1)],
                  ['s_cmp_lt_u32 s%d, 27' % sFB, 's_cselect_b32 s%d, 0x%x, 0' % (S_X + 2, 640 * 3456)],
                  's_lshl_b32 s%d, s%d, 1' % (sT0, sH), 's_add_u32 s%d, s%d, s%d' % (sT0, sT0, sW), 's_movk_i32 s%d, 3456' % sT1,
                  ['s_cmp_lt_u32 s%d, 2' % sW, 's_cmov_b32 s%d, s%d' % (S_X, pWQ), 's_cmov_b32 s%d, s%d' % (S_X + 1, pWQ + 1), 's_cmov_b32 s%d, 0x%x' % (S_X + 2, 640 * 8192),
                   's_cselect_b32 s%d, s%d, s%d' % (sT0, sT0, sFB), 's_cmov_b32 s%d, 8192' % sT1],
                  's_mul_i32 s%d, s%d, 80' % (sT2, sI), 'v_add_u32 v%d, s%d, v1' % (vPR, sT2), 'v_mul_lo_u32 v%d, v%d, s%d' % (vPR, vPR, sT1),
                  's_lshl_b32 s%d, s%d, 7' % (sT0, sT0), 's_lshl_b32 s%d, s%d, 4' % (sT1, sT1), 's_add_u32 s%d, s%d, s%d' % (sT1, sT1, sT0)]
            g = S.flow(pf, o['wpf'] * 128 + 44)
            g = S.flow(['buffer_load_dword a115, v%d, %s, s%d offen' % (vPR, s4(S_X), sT0)], g + 1)
            S.flow(['buffer_load_dword a116, v%d, %s, s%d offen' % (vPR, s4(S_X), sT1)], g + o.get('wpf2', 10))
        S.flow(self.poll_issue(), 5 * 128 + 50)
        gs = 6 * 128 + 44
        su = (srd_off(S_A, pWS, WS_XN, 2048 * 1280) if not o.get('readx') else srd_off(S_A, pX, 0, 2048 * 1280)) + srd(S_B0, pWQ, pWQ + 1, 640 * 8192)
        su += ['s_cmp_lt_u32 s%d, 27' % sFB, 's_cselect_b32 s%d, 0x%x, 0' % (S_B1 + 2, 640 * 3456), 's_mov_b32 s%d, s%d' % (S_B2 + 2, S_B1 + 2),
               's_mov_b32 s%d, s%d' % (S_B1, pWG), 's_mov_b32 s%d, s%d' % (S_B1 + 1, pWG + 1),
               's_mov_b32 s%d, s%d' % (S_B2, pWU), 's_mov_b32 s%d, s%d' % (S_B2 + 1, pWU + 1), 's_mov_b32 s%d, 0x00020000' % (S_B2 + 3)]
        su += ['s_lshl_b32 s%d, s%d, 2' % (sT0, sI), 's_sub_u32 s%d, 60, s%d' % (sT1, sT0),
               's_add_u32 s%d, s%d, s%d' % (sT0, sT0, sW), 's_add_u32 s%d, s%d, s%d' % (sT1, sT1, sW),
               's_mul_i32 s%d, s%d, %d' % (sAo[0], sT0, 32 * 1280), 's_mul_i32 s%d, s%d, %d' % (sAo[2], sT1, 32 * 1280),
               's_add_u32 s%d, s%d, %d' % (sAo[1], sAo[0], 16 * 1280 - 2048), 's_add_u32 s%d, s%d, %d' % (sAo[3], sAo[2], 16 * 1280 - 2048)]
        su += self.a_dma_addr(1280, sRot2)
        su += ['s_sub_u32 s%d, s%d, s%d' % (sInc, sRot2, sRot), 's_mov_b32 s%d, s%d' % (sRot, sRot2), 's_lshl_b32 s%d, s%d, 19' % (sIncG, sInc)]
        su += ['v_add_u32 v%d, s%d, v%d' % (v, sIncG, v) for v in vB]
        su += ['s_lshl_b32 s%d, s%d, 4' % (sT0, sH), 's_lshl_b32 s%d, s%d, 1' % (sT1, sI), 's_add_u32 s%d, s%d, s%d' % (sT0, sT0, sT1),
               's_and_b32 s%d, s%d, 1' % (sT1, sW), 's_add_u32 s%d, s%d, s%d' % (sT0, sT0, sT1), 's_lshl_b32 s%d, s%d, 16' % (sT0, sT0)]
        su += srd_off(S_ST, pWS, 's%d' % sT0, 65536)
        su = self.keep_scc(su)
        g = S.flow(su, gs)
        assert g < bar(6) - 1, g
        S.at(bar(6) - 1, self.stamp(5) + self.poll_check(1) + self.stamp(6))
        fx = ['s_lshr_b32 s3, s%d, 1' % sW, 's_lshl_b32 s3, s3, 7'] + ['v_xor_b32 v%d, s3, v%d' % (v, v) for v in vRB]
        g = S.flow(fx, 7 * 128 + 64 + 34)
        assert g < 8 * 128, g
        b15 = 7 * 128 + 64
        pk = []
        for p in range(28):
            e = b15 + (17 if p < 8 else 33 if p < 16 else 41 + 8 * ((p - 16) >> 2))
            a, b = 32 + 4 * p, 144 + 4 * p
            pk += [(e, 'v_cvt_pk_bf16_f32 v%d, v%d, v%d' % (a, a, a + 1)), 'v_cvt_pk_bf16_f32 v%d, v%d, v%d' % (a + 1, a + 2, a + 3),
                   'v_cvt_pk_bf16_f32 v%d, v%d, v%d' % (a + 2, b, b + 1), 'v_cvt_pk_bf16_f32 v%d, v%d, v%d' % (a + 3, b + 2, b + 3)]
        g = b15
        for p in range(28):
            g = S.flow(pk[4 * p:4 * p + 4], g)
            if p >= 4: assert g < 8 * 128 + 40 + ((p - 4) & ~3) - 1, (p, g)
        for q in range(4):
            for k in range(4):
                g = S.flow(['v_accvgpr_read_b32 v%d, a%d' % (vT0, 224 + 8 * q + 2 * k), 'v_accvgpr_read_b32 v%d, a%d' % (vT1, 225 + 8 * q + 2 * k),
                            'v_cvt_pk_bf16_f32 v%d, v%d, v%d' % (144 + 4 * q + k, vT0, vT1)], max(g, 8 * 128 + 2))
        order = sorted(range(32), key=lambda p: self.kv_off(p)[0])
        g0, g1 = g + 1, o.get('st_end', 13 * 128)
        last = None
        stw = o.get('stw')
        for n, p in enumerate(order):
            off, v = self.kv_off(p)
            gg = g0 + n * (g1 - g0) // 32
            if stw:
                gg = max(g0, bar(stw[0] + n // stw[1]) + 3 + o.get('dspan', 64) + (n % stw[1]) * stw[2])
            it = []
            if off >> 12 != last:
                last = off >> 12
                it.append('s_mov_b32 s%d, %d' % (sSO, off & ~4095))
            if not o.get('nokv'):
                it.append(('buffer_store_dwordx4 v[%d:%d], v%d, %s, s%d offen offset:%d%s' % (32 + 4 * p, 35 + 4 * p, v, s4(S_ST), sSO, off & 4095, o.get('kvfl', ' sc1')), 'kv'))
            gl = S.flow(it, gg)
            if stw: g0 = max(g0, gl)
        tf = o.get('kvflag', 14)
        S.at(bar(tf), [('@vmwait', 'kv')], front=True)
        S.flow(self.flag(2), bar(tf) + 1)
        pa = ['s_and_b32 s3, s2, 31', 'v_and_b32 v%d, 7, v1' % vPA, 'v_lshlrev_b32 v%d, 5, v%d' % (vPA, vPA), 'v_add_lshl_u32 v%d, s3, v%d, 7' % (vPA, vPA)]
        S.flow(pa + self.poll_issue(), 16 * 128 + 10)
        su = ['s_lshl_b32 s%d, s%d, 20' % (sT0, sH)] + srd_off(S_A, pWS, 's%d' % sT0, 1 << 20)
        su += ['s_lshl_b32 s%d, s%d, 13' % (sAo[0], sW), 's_add_u32 s%d, s%d, 0x8000' % (sAo[1], sAo[0]),
               's_lshl_b32 s3, s%d, 16' % sI, 's_add_u32 s%d, s%d, s3' % (sAo[2], sAo[0]),
               's_add_u32 s%d, s%d, 0x18000' % (sAo[2], sAo[2]), 's_add_u32 s%d, s%d, 0x10000' % (sAo[3], sAo[2]),
               'v_lshlrev_b32 v%d, 4, v1' % vA[0], 'v_add_u32 v%d, 0x1000, v%d' % (vA[1], vA[0])]
        g = S.flow(self.keep_scc(su), 16 * 128 + 44)
        assert g < bar(16) - 1
        S.at(bar(16) - 1, self.stamp(10) + self.poll_check(2) + self.stamp(11))
        S.at(10 * 128, self.stamp(7)); S.at(12 * 128, self.stamp(8)); S.at(14 * 128, self.stamp(9))
        if self.SO:
            S.at(8 * 128 - 1, self.stamp(2))
            for t, i in o.get('stepst', []): S.at(t * 128 + 127, self.stamp(i))

    def keep_scc(self, lines):
        out = []
        for l in lines:
            op = l.split()[0]
            if op in ('s_addc_u32', 's_cselect_b32', 's_cmov_b32', 's_cselect_b64'):
                if not isinstance(out[-1], list): out[-1] = [out[-1]]
                out[-1].append(l)
            else: out.append(l)
        return out

    def kv_off(self, p):
        if p < 16:
            mb, dsl = p & 7, p >> 3
            return (mb >> 2) * 32768 + (mb & 3) * 4096 + dsl * 1024, vSTK
        n, mp = (p - 16) >> 2, (p - 16) & 3
        return (mp >> 1) * 32768 + 16384 + (mp & 1) * 8192 + n * 1024, vSTV

    def p2_epilogue(self):
        L = []
        sC = sT0
        L += ['s_mov_b32 s%d, 0x3e0293ee' % sC]
        for ds in (1, 2, 3, 0):
            for qb in range(4):
                dst = 32 + (qb * 4 + ds) * 4
                for hf in range(2):
                    k, r = self.p2_tile(8 + 2 * ds + hf, qb)
                    if k == 'a':
                        t = 96 + (qb * 2 + hf) * 4
                        L += ['v_accvgpr_read_b32 v%d, a%d' % (t + e, r + e) for e in range(4)]
                        r = t
                    L += ['v_mul_f32 v%d, s%d, v%d' % (r + e, sC, r + e) for e in range(4)]
                    L += ['v_cvt_pk_bf16_f32 v%d, v%d, v%d' % (dst + 2 * hf + e, r + 2 * e, r + 2 * e + 1) for e in range(2)]
        L += ['s_add_u32 s3, s%d, 0x10000' % sMA, 'v_add_u32 v%d, s3, v%d' % (vT0, vA[0]), 'v_xor_b32 v%d, 0x2000, v%d' % (vT1, vT0)]
        for f in range(8):
            L.append('ds_write_b128 v%d, v[%d:%d] offset:%d' % (vT0, 64 + 4 * f, 67 + 4 * f, f * 1024))
        L += ['s_cmp_ge_u32 s%d, 27' % sFB, 's_cbranch_scc1 %s' % self.lab('skipgelu')]
        self.ool.append([self.lab('skipgelu') + ':', 's_waitcnt vmcnt(0)', 's_branch %s' % self.lab('nogelu')])
        sL, sHh, c1, c2 = sGo[0], sGo[1], sT1, sT2
        L += srd_off(S_ST, pWS, WS_H, 32 * 54 * 4096)
        if self.H16:
            L += ['s_lshl_b32 s3, s%d, 1' % sW, 's_lshl_b32 s%d, s%d, 3' % (sL, sI), 's_sub_u32 s%d, 120, s%d' % (sHh, sL),
                  's_add_u32 s%d, s%d, s3' % (sL, sL), 's_add_u32 s%d, s%d, s3' % (sHh, sHh),
                  's_mul_i32 s%d, s%d, %d' % (sL, sL, 54 * 1024), 's_mul_i32 s%d, s%d, %d' % (sHh, sHh, 54 * 1024),
                  's_lshl_b32 s3, s%d, 11' % sFB, 's_add_u32 s%d, s%d, s3' % (sL, sL), 's_add_u32 s%d, s%d, s3' % (sHh, sHh),
                  'v_add_u32 v4, %d, v%d' % (54 * 1024, vA[0])]
        else:
            L += ['s_lshr_b32 s3, s%d, 1' % sW, 's_lshl_b32 s%d, s%d, 1' % (sL, sI), 's_sub_u32 s%d, 30, s%d' % (sHh, sL),
                  's_add_u32 s%d, s%d, s3' % (sL, sL), 's_add_u32 s%d, s%d, s3' % (sHh, sHh),
                  's_mul_i32 s%d, s%d, %d' % (sL, sL, 54 * 4096), 's_mul_i32 s%d, s%d, %d' % (sHh, sHh, 54 * 4096),
                  's_lshl_b32 s3, s%d, 13' % sFB, 's_and_b32 s%d, s%d, 1' % (c1, sW), 's_lshl_b32 s%d, s%d, 11' % (c1, c1), 's_add_u32 s3, s3, s%d' % c1,
                  's_add_u32 s%d, s%d, s3' % (sL, sL), 's_add_u32 s%d, s%d, s3' % (sHh, sHh)]
        import struct, math
        f2u = lambda x: struct.unpack('<I', struct.pack('<f', x))[0]
        kk = 2 * math.sqrt(2 / math.pi) * math.log2(math.e)
        L += ['s_mov_b32 s%d, 0x%x' % (c1, f2u(-kk * 0.044715)), 'v_mov_b32 v%d, 0x%x' % (vPR, f2u(-kk))]
        n = 0
        for m in range(2):
            for mb in range(4):
                base = 96 + (n % 2) * 28
                G, U, T, D = base, base + 8, base + 16, base + 24
                n += 1
                for hf in range(2):
                    _, rg = self.p2_tile(2 * (2 * m + hf), mb)
                    _, ru = self.p2_tile(2 * (2 * m + hf) + 1, mb)
                    L += ['v_accvgpr_read_b32 v%d, a%d' % (G + 4 * hf + e, rg + e) for e in range(4)]
                    L += ['v_accvgpr_read_b32 v%d, a%d' % (U + 4 * hf + e, ru + e) for e in range(4)]
                L += ['v_mul_f32 v%d, v%d, v%d' % (T + e, G + e, G + e) for e in range(8)]
                L += ['v_fma_f32 v%d, v%d, s%d, v%d' % (T + e, T + e, c1, vPR) for e in range(8)]
                L += ['v_mul_f32 v%d, v%d, v%d' % (T + e, T + e, G + e) for e in range(8)]
                L += ['v_exp_f32 v%d, v%d' % (T + e, T + e) for e in range(8)]
                L += ['v_mul_f32 v%d, v%d, v%d' % (G + e, G + e, U + e) for e in range(8)]
                L += ['v_add_f32 v%d, 1.0, v%d' % (T + e, T + e) for e in range(8)]
                L += ['v_rcp_f32 v%d, v%d' % (T + e, T + e) for e in range(8)]
                L += ['v_mul_f32 v%d, v%d, v%d' % (G + e, G + e, T + e) for e in range(8)]
                L += ['v_cvt_pk_bf16_f32 v%d, v%d, v%d' % (D + e, G + 2 * e, G + 2 * e + 1) for e in range(4)]
                va, off = ((4 if mb & 1 else vA[0]), m * 1024) if self.H16 else (vA[m], (mb & 1) * 1024)
                L += [('buffer_store_dwordx4 v[%d:%d], v%d, %s, s%d offen offset:%d sc1' % (D, D + 3, va, s4(S_ST), sL if mb < 2 else sHh, off), 'h')]
        L += [self.lab('nogelu') + ':']
        return L

    def dump_q(self):
        L = srd_off(S_X, pWS, WS_Q, 16 << 20)
        L += ['s_lshl_b32 s3, s2, 2', 's_add_u32 s3, s3, s%d' % sW, 's_lshl_b32 s3, s3, 14']
        for f in range(16):
            L += ['buffer_store_dwordx4 v[%d:%d], v%d, %s, s3 offen' % (32 + 4 * f, 35 + 4 * f, vA[0], s4(S_X)), 's_add_u32 s3, s3, 1024']
        return L

    def build(self, stats=None):
        o = self.opt
        L = self.prologue()
        pre, S = self.gemms()
        L += [('@vmwait', 'dma0'), 's_barrier'] + self.stamp(1) + pre
        L += S.lines()
        L += self.stamp(3)
        L += self.p2_epilogue()
        L += self.stamp(4)
        if o.get('stop') == 2:
            L += self.dump_q()
        L += self.epoch_out()
        L += ['s_waitcnt vmcnt(0)'] + self.stamp(13) + self.stamp(15, True) + self.stamps_out()
        L += ['s_endpgm']
        out, st = process(L, stats=stats, lazy=o.get('lazy', 8))
        for blk in self.ool:
            out += process(blk, stats=stats)[0]
        out += [self.lab('end') + ':']
        return out
```

```python
import sys
from final import *
import attn2, attn2_v1
if __name__ == '__main__':
    o = eval(sys.argv[1]); path = sys.argv[2]
    cls = attn2_v1.KB if o.pop('v1', 0) else attn2.KB
    write(dict({'codepf_n': 3, 'dsp': 4, 'rot2': 'i', 'wpf': 1, 'kb': 1}, **o), path, cls)
```

```python
from asmlib import *
from k1 import srd, half_reduce, layernorm

MF = 'v_mfma_f32_16x16x32_bf16'
MF32 = 'v_mfma_f32_32x32x16_bf16'
WS_KV, WS_XN, WS_H, WS_CTX, WS_W, WS_Q, WS_DBG = 0, 32 << 20, 36 << 20, 44 << 20, 60 << 20, 72 << 20, 128 << 20
WS_FL = 35 << 20

S_A, S_B0, S_B1, S_B2, S_ST, S_FL, S_X = 4, 8, 12, 16, 20, 24, 28
pX, pC, pWQ, pUK, pUV, pWO, pBX, pWG, pWU, pWD, pOUT, pDBG, pWS = [32 + 2 * i for i in range(13)]
sW, sH, sI, sMask, sMB, sMA = 58, 59, 60, 61, 62, 63
sAo = [64, 65, 66, 67]
sBo = [68, 69, 70, 71]
sGo = [72, 73]
sFB, sT0, sT1, sT2, sSO = 74, 75, 76, 77, 78
sSpin = 79
S_W = 80
sStamp = 98
sRot, sInc, sIncB, sIncG, sRot2 = 84, 85, 86, 87, 88
sEp, sBase = 89, 90
vA = [2, 3]; vB = [4, 5]; vG = [6, 7]
vRA1 = [8, 9]; vRA2 = [10, 11]
vRB = list(range(12, 20)); vRG = list(range(20, 24))
vSTK, vSTV, vFL, vPA, vPR, vT0, vT1, vSTAMP = 24, 25, 26, 27, 28, 29, 30, 31
vBASE = 0
aTA, aTB, aTW = 118, 119, 120
sTW, sTWs = 91, 97

def s4(b): return 's[%d:%d]' % (b, b + 3)

def srd_off(d, p, off, nrec):
    o = ['s_add_u32 s%d, s%d, %s' % (d, p, off if isinstance(off, str) else '0x%x' % off), 's_addc_u32 s%d, s%d, 0' % (d + 1, p + 1)]
    o += ['s_mov_b32 s%d, %s' % (d + 2, nrec if isinstance(nrec, str) else '0x%x' % nrec), 's_mov_b32 s%d, 0x00020000' % (d + 3)]
    return o

def flat(x):
    o = []
    for y in x:
        if isinstance(y, list): o += flat(y)
        else: o.append(y)
    return o

class K:
    H16 = False
    def __init__(self, name, opt):
        self.name = name
        self.opt = opt
        self.SO = opt.get('stamps', False)
        self.nlab = 0
        self.ool = []
    def lab(self, s): return '%s_%s' % (self.name, s)
    def stamp(self, i, real=False, force=False):
        if not self.SO: return []
        if not force and i in self.opt.get('mute', ()): return []
        if real:
            return ['s_memrealtime s[%d:%d]' % (sStamp, sStamp + 1), 's_waitcnt lgkmcnt(0)', 'v_writelane_b32 v%d, s%d, %d' % (vSTAMP, sStamp, i)]
        return ['s_memtime s[%d:%d]' % (sStamp, sStamp + 1), 's_memrealtime s[%d:%d]' % (sStamp + 2, sStamp + 3), 's_waitcnt lgkmcnt(0)',
                'v_writelane_b32 v%d, s%d, %d' % (vSTAMP, sStamp, i), 'v_writelane_b32 v%d, s%d, %d' % (vSTAMP, sStamp + 2, 32 + i)]
    def stamps_out(self):
        if not self.SO: return []
        return srd_off(S_X, pWS, WS_DBG, 0x40000) + [
            's_lshl_b32 s3, s2, 2', 's_add_u32 s3, s3, s%d' % sW, 's_lshl_b32 s3, s3, 8',
            'v_lshlrev_b32 v2, 2, v1', 'v_add_u32 v2, s3, v2',
            'buffer_store_dword v%d, v2, %s, 0 offen' % (vSTAMP, s4(S_X))]
    def flag(self, val):
        return ['v_add_u32 v%d, %d, v%d' % (vT0, val, vBASE), 'buffer_store_dword v%d, v%d, %s, 0 offen sc1' % (vT0, vFL, s4(S_FL))]
    def poll_issue(self):
        return ['buffer_load_dword v%d, v%d, %s, 0 offen sc1' % (vPR, vPA, s4(S_FL))]
    MAXF = 5
    def poll_check(self, need):
        self.nlab += 1
        a, b = self.lab('pl%d' % self.nlab), self.lab('pd%d' % self.nlab)
        chk = ['v_sub_u32 v%d, v%d, v%d' % (vPR, vPR, vBASE), 'v_subrev_u32 v%d, %d, v%d' % (vPR, need, vPR), 'v_cmp_ge_u32 vcc, %d, v%d' % (self.MAXF - need, vPR)]
        self.ool.append([a + ':', 's_sleep 2'] + self.poll_issue() + ['s_waitcnt vmcnt(0)'] + chk +
                ['s_add_u32 s%d, s%d, 1' % (sSpin, sSpin), 's_cmp_eq_u64 vcc, -1', 's_cbranch_scc1 %s' % b,
                's_cmp_lt_u32 s%d, 0x8000' % sSpin, 's_cbranch_scc1 %s' % a, 's_branch %s' % b])
        return chk + ['s_mov_b32 s%d, 0' % sSpin, 's_cmp_eq_u64 vcc, -1', 's_cbranch_scc0 %s' % a, b + ':']
    def epoch_out(self):
        return ['s_add_u32 s%d, s%d, 1' % (sEp, sEp), 'v_mov_b32 v%d, s%d' % (vT0, sEp), 'v_add_u32 v%d, 0x8000, v%d' % (vT1, vFL),
                'buffer_store_dword v%d, v%d, %s, 0 offen sc1' % (vT0, vT1, s4(S_FL))]

    def prologue(self):
        L = ['s_cmp_lt_u32 s2, 256', 's_cbranch_scc1 %s' % self.lab('go'), 's_endpgm', self.lab('go') + ':']
        if self.SO: L += ['s_memrealtime s[96:97]']
        L += ['s_load_dwordx16 s[32:47], s[0:1], 0', 's_load_dwordx8 s[48:55], s[0:1], 64', 's_load_dwordx2 s[56:57], s[0:1], 96']
        L += ['v_and_b32 v1, 63, v0', 'v_lshrrev_b32 v%d, 6, v0' % vT0, 'v_mov_b32 v%d, 0' % vSTAMP,
              'v_readfirstlane_b32 s%d, v%d' % (sW, vT0)]
        L += ['s_and_b32 s%d, s2, 7' % sT0, 's_bfe_u32 s%d, s2, 0x20003' % sT1, 's_lshr_b32 s%d, s2, 5' % sI,
              's_lshl_b32 s%d, s%d, 2' % (sH, sT0), 's_add_u32 s%d, s%d, s%d' % (sH, sH, sT1)]
        L += ['s_mul_i32 s%d, s%d, 3' % (sFB, sT0), 's_add_u32 s%d, s%d, s%d' % (sFB, sFB, sT1),
              's_mul_i32 s%d, s%d, 3' % (sT2, sI), 's_sub_u32 s%d, s%d, s%d' % (sT2, sT0, sT2), 's_and_b32 s%d, s%d, 7' % (sT2, sT2),
              's_add_u32 s%d, s%d, 24' % (sT2, sT2), 's_cmp_eq_u32 s%d, 3' % sT1, 's_cselect_b32 s%d, s%d, s%d' % (sFB, sT2, sFB)]
        L += ['s_lshl_b32 s%d, s%d, 1' % (sRot2, sT1), 's_add_u32 s%d, s%d, s%d' % (sRot2, sRot2, sI)]
        if self.opt.get('norot'): L += ['s_mov_b32 s%d, 0' % sRot2]
        L += ['s_and_b32 s%d, s%d, 7' % (sRot, sRot2), 's_sub_u32 s%d, s%d, 10' % (sInc, sRot2), 's_cselect_b32 s%d, s%d, s%d' % (sRot2, sRot2, sInc)]
        r1 = self.opt.get('rot1')
        if r1 is not None:
            L += ['s_and_b32 s%d, s%d, %d' % (sRot, sI, r1 - 1), 's_mul_i32 s%d, s%d, %d' % (sRot, sRot, 8 // r1)]
        if self.opt.get('rot2') == 0: L += ['s_mov_b32 s%d, 0' % sRot2]
        if self.opt.get('rot2') == 'i': L += ['s_mov_b32 s%d, s%d' % (sRot2, sI)]
        if self.opt.get('rot2') == 'x': L += ['s_mov_b32 s%d, s%d' % (sRot2, sT0)]
        L += ['s_mov_b32 s%d, 0xffff0000' % sMask,
              's_lshl_b32 s%d, s%d, 12' % (sMB, sW), 's_lshl_b32 s%d, s%d, 13' % (sMA, sW), 's_add_u32 s%d, s%d, 0x10000' % (sMA, sMA)]
        L += ['s_lshl_b32 s%d, s%d, 2' % (sT0, sI), 's_add_u32 s%d, s%d, s%d' % (sT0, sT0, sW), 's_lshl_b32 s%d, s%d, 16' % (sAo[0], sT0)]
        for j in range(1, 4):
            L.append('s_add_u32 s%d, s%d, %d' % (sAo[j], sAo[0], j * 16384 - (j & 1) * 2048))
        L += ['s_lshl_b32 s%d, s%d, 17' % (sBo[0], sW), 's_lshl_b32 s%d, s%d, 8' % (sT1, sH), 's_add_u32 s%d, s%d, s%d' % (sBo[0], sBo[0], sT1)]
        for j in range(1, 4):
            L.append('s_add_u32 s%d, s%d, %d' % (sBo[j], sBo[0], j * 32768 - j * 1024))
        L += self.a_dma_addr(1024, sRot)
        t0, t1 = vT0, vT1
        L += ['v_lshrrev_b32 v%d, 4, v1' % t0, 'v_and_b32 v%d, 15, v1' % t1,
              'v_lshlrev_b32 v%d, 1, v%d' % (vB[1], t0), 'v_xor_b32 v%d, v%d, v%d' % (t1, t1, vB[1]),
              'v_lshl_add_u32 v%d, s%d, 6, v%d' % (t0, sRot, t0),
              'v_lshlrev_b32 v%d, 13, v%d' % (t0, t0), 'v_lshl_add_u32 v%d, v%d, 4, v%d' % (vB[0], t1, t0),
              'v_xor_b32 v%d, 0x80, v%d' % (vB[1], vB[0])]
        vLN = 40 if self.opt.get('np') != 2 else 6
        L += ['s_lshl_b32 s%d, s2, 2' % sT2, 's_add_u32 s%d, s%d, s%d' % (sT2, sT2, sW),
              's_lshl_b32 s%d, s%d, 1' % (sT1, sT2),
              'v_lshrrev_b32 v%d, 5, v1' % t0, 'v_add_u32 v%d, s%d, v%d' % (t0, sT1, t0),
              's_movk_i32 s%d, 1280' % sT1, 'v_mul_lo_u32 v%d, v%d, s%d' % (t0, t0, sT1), 'v_and_b32 v%d, 31, v1' % t1,
              'v_lshl_add_u32 v%d, v%d, 4, v%d' % (vLN, t1, t0), 'v_lshl_add_u32 v%d, v%d, 3, v%d' % (vLN + 1, t1, t0)]
        L += ['s_waitcnt lgkmcnt(0)']
        if self.SO: L += ['s_memrealtime s[94:95]']
        if self.opt.get('np') == 2: return L + self.prologue3()
        if self.opt.get('np'): return L + self.prologue2(vLN)
        L += srd(S_B0, pUK, pUK + 1, 512 * 8192) + srd(S_B1, pUV, pUV + 1, 512 * 8192) + srd(S_A, pC, pC + 1, 2048 * 1024)
        L += srd(S_X, pX, pX + 1, 2048 * 1280)
        LNL, LNX, LNT = 44, 56, 80
        d0 = self.dma1(0)
        L += flat(d0)
        if self.SO: L += ['s_memrealtime s[92:93]']
        L += srd_off(S_FL, pWS, WS_FL, 32768 + 4) + ['s_buffer_load_dword s%d, %s, 0x8000' % (sEp, s4(S_FL))]
        L += ['buffer_load_dwordx4 v[%d:%d], v%d, %s, 0 offen' % (LNL, LNL + 3, vLN, s4(S_X)),
              'buffer_load_dwordx4 v[%d:%d], v%d, %s, 0 offen offset:512' % (LNL + 4, LNL + 7, vLN, s4(S_X)),
              'buffer_load_dwordx2 v[%d:%d], v%d, %s, 0 offen offset:1024' % (LNL + 8, LNL + 9, vLN + 1, s4(S_X))]
        L += flat(self.dma1(1))
        L += self.stamp(0) + self.stamp(14, True)
        if self.SO: L += ['v_writelane_b32 v%d, s96, 46' % vSTAMP, 'v_writelane_b32 v%d, s94, 47' % vSTAMP, 'v_writelane_b32 v%d, s92, 63' % vSTAMP]
        if self.opt.get('codepf', True):
            L += ['s_getpc_b64 s[%d:%d]' % (S_W, S_W + 1), self.lab('pc') + ':', 'v_lshlrev_b32 v34, 7, v0']
            for i in range(self.opt.get('codepf_n', 2)):
                L += ['v_min_u32 v32, %s-%s-4, v34' % (self.lab('end'), self.lab('pc')), 'v_mov_b32 v33, s%d' % (S_W + 1),
                      'v_add_co_u32 v32, vcc, s%d, v32' % S_W, 'v_addc_co_u32 v33, vcc, 0, v33, vcc',
                      'global_load_dword a%d, v[32:33], off' % (112 + i), 'v_add_u32 v34, 0x8000, v34']
        L += ['s_cmp_lt_u32 s%d, 640' % sT2,
              's_cselect_b32 s%d, s%d, s%d' % (S_W, pWO, pWD), 's_cselect_b32 s%d, s%d, s%d' % (S_W + 1, pWO + 1, pWD + 1),
              's_mov_b32 s%d, 0x%x' % (S_W + 2, 1728 * 1280), 's_cmov_b32 s%d, 0x%x' % (S_W + 2, 4096 * 1280),
              's_cselect_b32 s%d, 0, 640' % sT0, 's_mov_b32 s%d, 0x00020000' % (S_W + 3)]
        L += ['s_sub_u32 s%d, s%d, s%d' % (sT0, sT2, sT0),
              's_mul_i32 s%d, s%d, 52429' % (sT1, sT0), 's_lshr_b32 s%d, s%d, 18' % (sT1, sT1),
              's_mul_i32 s3, s%d, 5' % sT1, 's_sub_u32 s%d, s%d, s3' % (sT0, sT0),
              's_mul_i32 s%d, s%d, %d' % (sT1, sT1, 32 * 1280), 's_lshl_b32 s%d, s%d, 8' % (sT0, sT0),
              's_add_u32 s%d, s%d, s%d' % (sT0, sT0, sT1),
              'v_lshrrev_b32 v36, 4, v1', 's_movk_i32 s3, 1280', 'v_mul_lo_u32 v36, v36, s3', 'v_and_b32 v37, 15, v1',
              'v_lshl_add_u32 v36, v37, 4, v36', 'v_add_u32 v36, s%d, v36' % sT0]
        for j in range(8 if not self.opt.get('now') else 0):
            if j % 4 == 0:
                L.append('s_add_u32 m0, s%d, %d' % (sMA, 0x10000 + j * 1024))
            L += ['s_mov_b32 s3, %d' % (j * 4 * 1280 - (j % 4) * 1024),
                  ('buffer_load_dwordx4 v36, %s, s3 offen offset:%d lds' % (s4(S_W), (j % 4) * 1024), 'wt')]
        L += ['s_lshl_b32 s%d, s%d, 13' % (sT0, sT2), 's_add_u32 s%d, s%d, 0x%x' % (sT0, sT0, WS_W),
              's_cmp_lt_u32 s%d, 910' % sT2, 's_cselect_b32 s%d, 8192, 0' % sT1]
        self.w_srd = srd_off(S_W, pWS, 's%d' % sT0, 's%d' % sT1)
        L += self.w_srd
        L += self.read_addrs()
        L += srd_off(S_ST, pWS, WS_XN, 2048 * 1280)
        L += ['s_mul_i32 s%d, s%d, 0x9e3779b1' % (sBase, sEp), 'v_mov_b32 v%d, s%d' % (vBASE, sBase)]
        L += self.stamp(12) + layernorm(LNL, LNX, LNT, sMask) + self.stamp(18)
        L += ['buffer_store_dwordx4 v[%d:%d], v%d, %s, 0 offen sc1' % (LNL, LNL + 3, vLN, s4(S_ST)),
              'buffer_store_dwordx4 v[%d:%d], v%d, %s, 0 offen offset:512 sc1' % (LNL + 4, LNL + 7, vLN, s4(S_ST)),
              ('buffer_store_dwordx2 v[%d:%d], v%d, %s, 0 offen offset:1024 sc1' % (LNL + 8, LNL + 9, vLN + 1, s4(S_ST)), 'xn')]
        return L

    def w_block(self, v, t):
        su = ['s_lshl_b32 s%d, s2, 2' % sT2, 's_add_u32 s%d, s%d, s%d' % (sT2, sT2, sW), 's_mov_b32 s%d, 0x%x' % (S_W + 2, 1728 * 1280), 's_cmp_lt_u32 s%d, 640' % sT2,
              's_cselect_b32 s%d, s%d, s%d' % (S_W, pWO, pWD), 's_cselect_b32 s%d, s%d, s%d' % (S_W + 1, pWO + 1, pWD + 1),
              's_cmov_b32 s%d, 0x%x' % (S_W + 2, 4096 * 1280), 's_cselect_b32 s%d, 0, 640' % sT0, 's_mov_b32 s%d, 0x00020000' % (S_W + 3),
              's_sub_u32 s%d, s%d, s%d' % (sT0, sT2, sT0), 's_mul_i32 s%d, s%d, 52429' % (sT1, sT0), 's_lshr_b32 s%d, s%d, 18' % (sT1, sT1),
              's_mul_i32 s3, s%d, 5' % sT1, 's_sub_u32 s%d, s%d, s3' % (sT0, sT0),
              's_mul_i32 s%d, s%d, %d' % (sT1, sT1, 32 * 1280), 's_lshl_b32 s%d, s%d, 8' % (sT0, sT0), 's_add_u32 s%d, s%d, s%d' % (sT0, sT0, sT1),
              'v_lshrrev_b32 v%d, 4, v1' % v, 'v_mul_u32_u24 v%d, 1280, v%d' % (v, v), 'v_and_b32 v%d, 15, v1' % t,
              'v_lshl_add_u32 v%d, v%d, 4, v%d' % (v, t, v), 'v_add_u32 v%d, s%d, v%d' % (v, sT0, v)]
        ld = []
        for j in range(8):
            it = ['s_add_u32 m0, s%d, %d' % (sMA, 0x10000 + j * 1024)] if j % 4 == 0 else []
            ld.append((it + ['s_mov_b32 s%d, %d' % (sT1, j * 4 * 1280 - (j % 4) * 1024)],
                       ('buffer_load_dwordx4 v%d, %s, s%d offen offset:%d%s lds' % (v, s4(S_W), sT1, (j % 4) * 1024, self.opt.get('wfl', '')), 'wt')))
        sw = ['s_lshl_b32 s%d, s%d, 13' % (sT0, sT2), 's_add_u32 s%d, s%d, 0x%x' % (sT0, sT0, WS_W),
              's_cmp_lt_u32 s%d, 910' % sT2, 's_cselect_b32 s%d, 8192, 0' % sT1] + srd_off(S_W, pWS, 's%d' % sT0, 's%d' % sT1)
        return su, ld, sw
    def touchA(self, v, t, d, dst):
        return ['s_lshr_b32 s3, s2, 3', 's_lshl_b32 s3, s3, 2', 's_add_u32 s3, s3, s%d' % sW, 's_lshl_b32 s3, s3, 14',
                'v_lshrrev_b32 v%d, 4, v1' % v, 'v_add_u32 v%d, s%d, v%d' % (v, sRot, v), 'v_add_u32 v%d, %d, v%d' % (v, d & 7, v), 'v_and_b32 v%d, 7, v%d' % (v, v),
                'v_and_b32 v%d, 15, v1' % t, 'v_lshl_add_u32 v%d, v%d, 3, v%d' % (v, t, v), 'v_lshlrev_b32 v%d, 7, v%d' % (v, v),
                'buffer_load_dword a%d, v%d, %s, s3 offen' % (dst, v, s4(S_A))]
    def touchB(self, v, t, dst):
        R = self.opt.get('rot1', 1)
        L = ['s_cmp_lt_u32 s%d, 2' % sW, 's_cselect_b32 s%d, s%d, s%d' % (S_W, pUK, pUV), 's_cselect_b32 s%d, s%d, s%d' % (S_W + 1, pUK + 1, pUV + 1),
             's_mov_b32 s%d, 0x%x' % (S_W + 2, 512 * 8192), 's_mov_b32 s%d, 0x00020000' % (S_W + 3),
             's_and_b32 s3, s%d, 1' % sW, 's_lshl_b32 s%d, s%d, 1' % (sT0, sI), 's_add_u32 s3, s3, s%d' % sT0, 's_lshl_b32 s3, s3, 7', 's_add_u32 s3, s3, s%d' % sH, 's_lshl_b32 s3, s3, 8']
        L += ['v_lshrrev_b32 v%d, 3, v1' % v, 'v_add_u32 v%d, %d, v%d' % (v, 2 * R, v)]
        if R > 1:
            sh = {2: 1, 4: 2}[R]
            L += ['v_and_b32 v%d, %d, v%d' % (t, R - 1, v), 'v_lshrrev_b32 v%d, %d, v%d' % (v, sh, v), 'v_lshl_add_u32 v%d, v%d, %d, v%d' % (v, t, 3 - sh, v),
                  'v_cmp_gt_u32 vcc, %d, v1' % (64 - 16 * R), 'v_mov_b32 v%d, 8' % t, 'v_cndmask_b32 v%d, v%d, v%d, vcc' % (v, t, v)]
        L += ['v_bfe_u32 v%d, v1, 1, 2' % t, 'v_lshl_add_u32 v%d, v%d, 6, v%d' % (v, v, t), 'v_and_b32 v%d, 1, v1' % t, 'v_lshl_add_u32 v%d, v%d, 6, v%d' % (v, v, t),
              'v_lshlrev_b32 v%d, 7, v%d' % (v, v), 'buffer_load_dword a%d, v%d, %s, s3 offen' % (dst, v, s4(S_W))]
        return L
    def prologue2(self, vLN):
        o = self.opt
        LNL, LNX, LNT = 44, 56, 80
        xl = srd(S_X, pX, pX + 1, 2048 * 1280) + \
             ['buffer_load_dwordx4 v[%d:%d], v%d, %s, 0 offen' % (LNL, LNL + 3, vLN, s4(S_X)),
              'buffer_load_dwordx4 v[%d:%d], v%d, %s, 0 offen offset:512' % (LNL + 4, LNL + 7, vLN, s4(S_X)),
              'buffer_load_dwordx2 v[%d:%d], v%d, %s, 0 offen offset:1024' % (LNL + 8, LNL + 9, vLN + 1, s4(S_X))]
        d0 = srd(S_B0, pUK, pUK + 1, 512 * 8192) + srd(S_B1, pUV, pUV + 1, 512 * 8192) + srd(S_A, pC, pC + 1, 2048 * 1024) + flat(self.dma1(0))
        cp = ['s_getpc_b64 s[%d:%d]' % (S_W, S_W + 1), self.lab('pc') + ':', 's_lshr_b32 s3, s2, 3', 's_lshl_b32 s3, s3, 2', 's_add_u32 s3, s3, s%d' % sW,
              'v_lshl_add_u32 v34, v1, 7, s3', 'v_lshlrev_b32 v34, 7, v34', 'v_mov_b32 v33, s%d' % (S_W + 1),
              'v_cmp_gt_u32 vcc, %s-%s-4, v34' % (self.lab('end'), self.lab('pc')), 's_and_saveexec_b64 s[%d:%d], vcc' % (S_W + 2, S_W + 3),
              'v_add_co_u32 v32, vcc, s%d, v34' % S_W, 'v_addc_co_u32 v33, vcc, 0, v33, vcc',
              'global_load_dword a112, v[32:33], off', 's_mov_b64 exec, -1']
        L = xl + d0 if o.get('xfirst', 1) else d0 + xl
        if self.SO: L += ['s_memrealtime s[92:93]']
        L += srd_off(S_FL, pWS, WS_FL, 32768 + 4) + ['s_buffer_load_dword s%d, %s, 0x8000' % (sEp, s4(S_FL))]
        L += cp
        d1 = self.dma1(1)
        n0, n1 = o.get('d1a', 0), o.get('d1pre', 16)
        L += flat(d1[:n0])
        L += self.read_addrs()
        L += srd_off(S_ST, pWS, WS_XN, 2048 * 1280)
        L += self.stamp(0) + self.stamp(14, True)
        if self.SO: L += ['v_writelane_b32 v%d, s96, 46' % vSTAMP, 'v_writelane_b32 v%d, s94, 47' % vSTAMP, 'v_writelane_b32 v%d, s92, 63' % vSTAMP]
        L += ['s_mul_i32 s%d, s%d, 0x9e3779b1' % (sBase, sEp), 'v_mov_b32 v%d, s%d' % (vBASE, sBase)]
        L += layernorm(LNL, LNX, LNT, sMask) + self.stamp(12)
        L += ['buffer_store_dwordx4 v[%d:%d], v%d, %s, 0 offen sc1' % (LNL, LNL + 3, vLN, s4(S_ST)),
              'buffer_store_dwordx4 v[%d:%d], v%d, %s, 0 offen offset:512 sc1' % (LNL + 4, LNL + 7, vLN, s4(S_ST)),
              ('buffer_store_dwordx2 v[%d:%d], v%d, %s, 0 offen offset:1024 sc1' % (LNL + 8, LNL + 9, vLN + 1, s4(S_ST)), 'xn')]
        L += flat(d1[n0:n1])
        self.d1rest = d1[n1:]
        assert n1 >= 2
        if o.get('tch', 1) == 1:
            if o.get('rot1', 8) < 4: L += self.touchB(100, 101, 113)
            L += self.touchA(102, 103, 0, 114)
        L += self.stamp(18)
        return L

    def code_pf(self):
        return ['s_getpc_b64 s[%d:%d]' % (S_W, S_W + 1), self.lab('pc') + ':', 's_lshr_b32 s3, s2, 3', 's_lshl_b32 s3, s3, 2', 's_add_u32 s3, s3, s%d' % sW,
                'v_lshl_add_u32 v34, v1, 7, s3', 'v_lshlrev_b32 v34, 7, v34', 'v_mov_b32 v33, s%d' % (S_W + 1),
                'v_cmp_gt_u32 vcc, %s-%s-4, v34' % (self.lab('end'), self.lab('pc')), 's_and_saveexec_b64 s[%d:%d], vcc' % (S_W + 2, S_W + 3),
                'v_add_co_u32 v32, vcc, s%d, v34' % S_W, 'v_addc_co_u32 v33, vcc, 0, v33, vcc',
                'global_load_dword a112, v[32:33], off', 's_mov_b64 exec, -1']
    def touch_setup(self):
        R = self.opt.get('rot1', 1)
        sh = {1: 0, 2: 1, 4: 2, 8: 3}[R]
        nw = self.opt.get('twn', 16)
        big = 'v_mov_b32 v39, 0x7fff0000'
        msk = lambda n, a: ['v_cmp_gt_u32 vcc, %d, v1' % n, 's_nop 0', 'v_cndmask_b32 v36, v39, v36, vcc', 'v_accvgpr_write_b32 a%d, v36' % a]
        L = [big, 's_lshr_b32 s3, s2, 3', 's_lshl_b32 s3, s3, 2', 's_add_u32 s3, s3, s%d' % sW, 's_lshl_b32 s3, s3, 4', 'v_add_lshl_u32 v36, s3, v1, 10'] + msk(16, aTA)
        L += ['s_cmp_lt_u32 s%d, 2' % sW, 's_cselect_b32 s%d, s%d, s%d' % (S_W, pUK, pUV), 's_cselect_b32 s%d, s%d, s%d' % (S_W + 1, pUK + 1, pUV + 1),
              's_mov_b32 s%d, 0x%x' % (S_W + 2, 512 * 8192), 's_mov_b32 s%d, 0x00020000' % (S_W + 3),
              's_and_b32 s3, s%d, 1' % sW, 's_lshr_b32 s%d, s%d, %d' % (sT0, sI, sh), 's_lshl_b32 s%d, s%d, 1' % (sT0, sT0), 's_add_u32 s3, s3, s%d' % sT0,
              's_lshl_b32 s3, s3, %d' % (7 + sh), 's_add_u32 s3, s3, s%d' % sH, 's_lshl_b32 s3, s3, 1',
              'v_lshrrev_b32 v36, 1, v1', 'v_and_b32 v37, 1, v1', 'v_lshl_add_u32 v36, v36, 6, v37', 'v_add_lshl_u32 v36, s3, v36, 7'] + msk(8 * R, aTB)
        S = S_B2
        L += ['s_cmp_eq_u32 s%d, 2' % sW, 's_cselect_b32 s%d, s%d, s%d' % (S, pWG, pWU), 's_cselect_b32 s%d, s%d, s%d' % (S + 1, pWG + 1, pWU + 1),
              's_cmp_lt_u32 s%d, 27' % sFB, 's_cselect_b32 s%d, 0x%x, 0' % (S + 2, 640 * 3456), 's_mov_b32 s%d, 0x00020000' % (S + 3),
              's_lshl_b32 s%d, s%d, 1' % (sT0, sH), 's_add_u32 s%d, s%d, s%d' % (sT0, sT0, sW), 's_movk_i32 s%d, 3456' % sTWs,
              's_cmp_lt_u32 s%d, 2' % sW, 's_cmov_b32 s%d, s%d' % (S, pWQ), 's_cmov_b32 s%d, s%d' % (S + 1, pWQ + 1), 's_cmov_b32 s%d, 0x%x' % (S + 2, 640 * 8192),
              's_cselect_b32 s%d, s%d, s%d' % (sT0, sT0, sFB), 's_cmov_b32 s%d, 8192' % sTWs,
              's_mul_i32 s3, s%d, 80' % sI, 'v_add_u32 v36, s3, v1', 'v_mul_lo_u32 v36, v36, s%d' % sTWs,
              's_lshl_b32 s%d, s%d, 7' % (sTW, sT0), 's_mul_i32 s%d, s%d, %d' % (sTWs, sTWs, nw)] + msk(nw, aTW)
        return L
    def touch_ab(self, d, b=True):
        L = ['s_add_u32 s3, s%d, %d' % (sRot, d), 's_and_b32 s3, s3, 7', 's_lshl_b32 s3, s3, 7', 'v_accvgpr_read_b32 v%d, a%d' % (vT0, aTA),
             'buffer_load_dword a113, v%d, %s, s3 offen' % (vT0, s4(S_A))]
        if b: L += ['s_lshl_b32 s3, s3, 12', 'v_accvgpr_read_b32 v%d, a%d' % (vT0, aTB), 'buffer_load_dword a114, v%d, %s, s3 offen' % (vT0, s4(S_W))]
        return [l.replace(' a113,', ' a%d,' % self.dummy()).replace(' a114,', ' a%d,' % self.dummy()) for l in L]
    def touch_w(self):
        return ['v_accvgpr_read_b32 v%d, a%d' % (vT0, aTW), 'buffer_load_dword a%d, v%d, %s, s%d offen' % (self.dummy(), vT0, s4(S_B2), sTW), 's_add_u32 s%d, s%d, s%d' % (sTW, sTW, sTWs)]
    def dummy(self):
        self.ndum = getattr(self, 'ndum', 0) + 1
        return 124 + self.ndum % 96
    def prologue3(self):
        o = self.opt
        R = o.get('rot1', 1)
        d0 = srd(S_B0, pUK, pUK + 1, 512 * 8192) + srd(S_A, pC, pC + 1, 2048 * 1024) + srd(S_B1, pUV, pUV + 1, 512 * 8192)
        dd = self.dma1(0) + self.dma1(1)
        n0, n1 = o.get('d0a', 16), 16 + o.get('d1pre', 16)
        L = d0 + flat(dd[:n0])
        if self.SO: L += ['s_memrealtime s[92:93]']
        L += srd_off(S_FL, pWS, WS_FL, 32768 + 4) + ['s_buffer_load_dword s%d, %s, 0x8000' % (sEp, s4(S_FL))]
        L += self.code_pf()
        ra = self.read_addrs(True)
        L += ra[0] + self.touch_setup()
        self.late_addrs = ra[1:]
        L += srd_off(S_ST, pWS, WS_XN, 2048 * 1280) + srd(S_X, pX, pX + 1, 2048 * 1280)
        L += self.stamp(0) + self.stamp(14, True)
        if self.SO: L += ['v_writelane_b32 v%d, s96, 46' % vSTAMP, 'v_writelane_b32 v%d, s94, 47' % vSTAMP, 'v_writelane_b32 v%d, s92, 63' % vSTAMP]
        L += flat(dd[n0:n1])
        self.d1rest = dd[n1:]
        assert n1 >= 18
        for d in range(o.get('tlead', 1)): L += self.touch_ab(d, 2 + d < 8 // R)
        L += self.stamp(18)
        return L
    def layernorm2(self, L, m, a0, a1, u0, u1):
        un = lambda i, x, y: ['v_lshlrev_b32 v%d, 16, v%d' % (x, L + i), 'v_and_b32 v%d, s%d, v%d' % (y, sMask, L + i)]
        o = un(0, m, a1)
        for i in range(1, 10): o += un(i, u0, u1) + ['v_add_f32 v%d, v%d, v%d' % (m, m, u0), 'v_add_f32 v%d, v%d, v%d' % (a1, a1, u1)]
        o += ['v_add_f32 v%d, v%d, v%d' % (m, m, a1)] + half_reduce(m, a1) + ['v_mul_f32 v%d, 0x3acccccd, v%d' % (m, m)]
        for i in range(10):
            o += un(i, u0, u1) + ['v_sub_f32 v%d, v%d, v%d' % (u, u, m) for u in (u0, u1)]
            o += ['v_%s_f32 v%d, v%d, v%d' % ('fmac' if i else 'mul', a, u, u) for a, u in ((a0, u0), (a1, u1))]
        o += ['v_add_f32 v%d, v%d, v%d' % (a0, a0, a1)] + half_reduce(a0, a1) + ['v_mul_f32 v%d, 0x3acccccd, v%d' % (a0, a0)]
        o += ['v_cvt_pk_bf16_f32 v%d, v%d, v%d' % (a1, m, a0), 'v_lshlrev_b32 v%d, 16, v%d' % (m, a1), 'v_and_b32 v%d, s%d, v%d' % (a0, sMask, a1),
              'v_add_f32 v%d, 0x3727c5ac, v%d' % (a0, a0), 'v_cvt_pk_bf16_f32 v%d, v%d, v%d' % (a0, a0, a0), 'v_lshlrev_b32 v%d, 16, v%d' % (a0, a0),
              'v_sqrt_f32 v%d, v%d' % (a0, a0), 'v_cvt_pk_bf16_f32 v%d, v%d, v%d' % (a0, a0, a0), 'v_lshlrev_b32 v%d, 16, v%d' % (a0, a0), 'v_rcp_f32 v%d, v%d' % (a0, a0)]
        for i in range(10):
            o += un(i, u0, u1) + ['v_sub_f32 v%d, v%d, v%d' % (u, u, m) for u in (u0, u1)] + ['v_cvt_pk_bf16_f32 v%d, v%d, v%d' % (L + i, u0, u1)]
            o += un(i, u0, u1) + ['v_mul_f32 v%d, v%d, v%d' % (u, u, a0) for u in (u0, u1)] + ['v_cvt_pk_bf16_f32 v%d, v%d, v%d' % (L + i, u0, u1)]
        return o
    def extras3(self, S, bar):
        o = self.opt
        R = o.get('rot1', 1)
        tl = o.get('tlead', 1)
        LNL, vLN = 16, 6
        g0 = o.get('tg', 42)
        tw0, nw = o.get('tw0', 1), 80 // o.get('twn', 16)
        xs = o.get('xs', 0)
        gl = {}
        for t in range(7):
            it = []
            if t + 2 + tl < 8: it += self.touch_ab(tl, t + 2 + tl < 8 // R)
            if tw0 <= t < tw0 + nw: it += self.touch_w()
            if t == xs:
                it += ['buffer_load_dwordx4 v[%d:%d], v%d, %s, 0 offen' % (LNL, LNL + 3, vLN, s4(S_X)),
                       'buffer_load_dwordx4 v[%d:%d], v%d, %s, 0 offen offset:512' % (LNL + 4, LNL + 7, vLN, s4(S_X)),
                       'buffer_load_dwordx2 v[%d:%d], v%d, %s, 0 offen offset:1024' % (LNL + 8, LNL + 9, vLN + 1, s4(S_X))]
            g = t * 128 + g0
            for l in it:
                g = S.flow([l], g)
                if l.startswith('buffer'): g += o.get('tsp', 3)
            gl[t] = g
        assert tw0 + nw <= 6
        S.flow(['s_mul_i32 s%d, s%d, 0x9e3779b1' % (sBase, sEp), 'v_mov_b32 v%d, s%d' % (vBASE, sBase)], bar(0) + 1)
        g = S.flow(self.layernorm2(LNL, 10, 11, 27, 28, vT1), bar(xs + 1) + 1)
        for l in ['buffer_store_dwordx4 v[%d:%d], v%d, %s, 0 offen sc1' % (LNL, LNL + 3, vLN, s4(S_ST)),
                  'buffer_store_dwordx4 v[%d:%d], v%d, %s, 0 offen offset:512 sc1' % (LNL + 4, LNL + 7, vLN, s4(S_ST)),
                  ('buffer_store_dwordx2 v[%d:%d], v%d, %s, 0 offen offset:1024 sc1' % (LNL + 8, LNL + 9, vLN + 1, s4(S_ST)), 'xn')]:
            g = S.flow([l], g + 2)
        tf = o.get('xnf', xs + 4)
        if o.get('verbose'): print('xn stores end', divmod(g, 128))
        assert g < bar(tf)
        S.at(bar(tf), [('@vmwait', 'xn')], front=True)
        S.flow([self.flag(1)], bar(tf) + 1)
        t = g // 128 + 1
        g = S.flow(self.keep_vcc(self.late_addrs[0]), gl[t] + 1)
        assert g < bar(t) and t < 5, (t, g)
        wt = o.get('wdma', 5)
        v = vSTK
        su, ld, sw = self.w_block(v, vT0)
        su = su[:-3] + ['v_lshrrev_b32 v%d, 3, v1' % vT0, 'v_xor_b32 v%d, v%d, v1' % (vT0, vT0), 'v_and_b32 v%d, 1, v1' % vT1, 'v_and_or_b32 v%d, v%d, 14, v%d' % (vT0, vT0, vT1)] + su[-2:]
        g = S.flow(self.keep_scc(su), gl[wt] + 1)
        per = o.get('wper', 3)
        for j, (pre, l) in enumerate(ld):
            ts = wt + j // per
            if j % per == 0 and j: g = ts * 128 + g0
            pre = ['s_add_u32 m0, s%d, %d' % (sMA, 0x10000 + (j & 4) * 1024), pre[-1].replace('s%d,' % sT1, 's%d,' % sSO)]
            if j: pre.append('v_xor_b32 v%d, 0x80, v%d' % (v, v))
            g = S.flow(pre, g + 1)
            g = S.flow([(l[0].replace(', s%d offen' % sT1, ', s%d offen' % sSO), l[1])], g + 1)
            assert g < bar(ts), (j, g)
            g += o.get('wdsp', 4)
        assert ts <= 7
        g = S.flow(self.late_addrs[1], max(g, 7 * 128 + g0))
        assert g < bar(7) - 6
        tr = o.get('wtr', 9)
        va, vs = vRA1
        sw = ['s_lshl_b32 s%d, s2, 2' % sT2, 's_add_u32 s%d, s%d, s%d' % (sT2, sT2, sW)] + sw
        rd = self.keep_scc(sw) + ['v_lshrrev_b32 v%d, 2, v1' % va, 'v_lshlrev_b32 v%d, 8, v%d' % (va, va), 'v_and_b32 v%d, 31, v1' % vs,
              'v_lshl_add_u32 v%d, v%d, 3, v%d' % (va, vs, va), 's_add_u32 s3, s%d, 0x10000' % sMA, 'v_add_u32 v%d, s3, v%d' % (va, va), 'v_lshlrev_b32 v%d, 4, v1' % vs, 's_movk_i32 s%d, 4096' % sT0]
        for q in range(8):
            if q: rd.append('v_xor_b32 v%d, %d, v%d' % (va, (q ^ (q - 1)) * 32, va))
            rd += ['ds_read_b64_tr_b16 %s, v%d offset:%d' % (ar(224 + 4 * q + 2 * j, 2), va, j * 4096) for j in range(2)]
        S.flow(rd, tr * 128 + 2)
        self.wstores = [('buffer_store_dwordx4 %s, v%d, %s, %s offen offset:%d sc1' % (ar(224 + 4 * q, 4), vs, s4(S_W), '0' if q < 4 else 's%d' % sT0, (q & 3) * 1024), 'kv') for q in range(8)]
    def keep_vcc(self, lines):
        out = []
        on = False
        for l in lines:
            if l.startswith('v_cmp'): out.append([l]); on = True
            elif on:
                out[-1].append(l)
                if l.startswith('v_cndmask'): on = False
            else: out.append(l)
        return out

    def a_dma_addr(self, stride, rot):
        t0, t1 = vT0, vT1
        return ['v_lshrrev_b32 v%d, 3, v1' % t0, 's_movk_i32 s3, %d' % stride, 'v_mul_lo_u32 v%d, v%d, s3' % (t0, t0),
                'v_lshl_add_u32 v%d, s%d, 7, v%d' % (t0, rot, t0),
                'v_lshrrev_b32 v%d, 4, v1' % t1, 'v_and_b32 v%d, 7, v1' % vA[1], 'v_xor_b32 v%d, v%d, v%d' % (t1, t1, vA[1]),
                'v_lshl_add_u32 v%d, v%d, 4, v%d' % (vA[0], t1, t0), 'v_xor_b32 v%d, 4, v%d' % (t1, t1),
                'v_lshl_add_u32 v%d, v%d, 4, v%d' % (vA[1], t1, t0), 'v_add_u32 v%d, %d, v%d' % (vA[1], 8 * stride - 1024, vA[1])]

    def read_addrs(self, split=False):
        t0, t1 = vT0, vT1
        L = []
        L += ['v_and_b32 v%d, 15, v1' % t0, 'v_lshrrev_b32 v%d, 1, v%d' % (t1, t0), 'v_lshrrev_b32 v%d, 4, v1' % vRA1[0],
              'v_xor_b32 v%d, v%d, v%d' % (t1, t1, vRA1[0]), 'v_lshlrev_b32 v%d, 7, v%d' % (t0, t0),
              'v_lshl_add_u32 v%d, v%d, 4, v%d' % (t0, t1, t0),
              's_and_b32 s3, s%d, 1' % sW, 's_lshl_b32 s3, s3, 14', 's_add_u32 s3, s3, 0x10000',
              'v_add_u32 v%d, s3, v%d' % (vRA1[0], t0), 'v_xor_b32 v%d, 64, v%d' % (vRA1[1], vRA1[0])]
        L += ['v_lshrrev_b32 v%d, 4, v1' % t0, 'v_lshlrev_b32 v%d, 11, v%d' % (t0, t0),
              'v_bfe_u32 v%d, v1, 2, 2' % t1, 'v_lshl_add_u32 v%d, v%d, 8, v%d' % (t0, t1, t0),
              'v_bfe_u32 v%d, v1, 2, 3' % t1, 'v_lshl_add_u32 v%d, v%d, 5, v%d' % (t0, t1, t0),
              'v_and_b32 v%d, 3, v1' % t1, 'v_lshl_add_u32 v%d, v%d, 3, v%d' % (t0, t1, t0),
              's_lshr_b32 s3, s%d, 1' % sW, 's_lshl_b32 s3, s3, 7', 'v_xor_b32 v%d, s3, v%d' % (vRB[0], t0)]
        for nb in range(1, 4):
            L.append('v_xor_b32 v%d, %d, v%d' % (vRB[nb], nb * 32, vRB[0]))
        L += ['s_lshl_b32 s3, s2, 7', 'v_mov_b32 v%d, s3' % vFL, 'v_mov_b32 v%d, 0x7fff0000' % t0, 'v_cmp_eq_u32 vcc, 0, v0',
              's_nop 1', 'v_cndmask_b32 v%d, v%d, v%d, vcc' % (vFL, t0, vFL)]
        L0, L = L, []
        for nb in range(4, 8):
            L.append('v_xor_b32 v%d, %d, v%d' % (vRB[nb], nb * 32, vRB[0]))
        L += ['v_and_b32 v%d, 0x7ff, v%d' % (t0, vRA1[0]), 'v_add_u32 v%d, s%d, v%d' % (vRA2[0], sMA, t0), 'v_xor_b32 v%d, 64, v%d' % (vRA2[1], vRA2[0])]
        L += ['v_lshrrev_b32 v%d, 5, v1' % t0, 'v_lshlrev_b32 v%d, 12, v%d' % (t0, t0),
              'v_bfe_u32 v%d, v1, 4, 1' % t1, 'v_lshl_add_u32 v%d, v%d, 10, v%d' % (t0, t1, t0),
              'v_bfe_u32 v%d, v1, 2, 2' % t1, 'v_lshl_add_u32 v%d, v%d, 7, v%d' % (t0, t1, t0),
              'v_bfe_u32 v%d, v1, 3, 2' % t1, 'v_lshl_add_u32 v%d, v%d, 5, v%d' % (t0, t1, t0),
              'v_and_b32 v%d, 3, v1' % t1, 'v_lshl_add_u32 v%d, v%d, 3, v%d' % (vRG[0], t1, t0)]
        for nb in range(1, 4):
            L.append('v_xor_b32 v%d, %d, v%d' % (vRG[nb], nb * 32, vRG[0]))
        L += ['v_lshrrev_b32 v%d, 3, v1' % t0, 'v_lshl_add_u32 v%d, s%d, 6, v%d' % (t0, sRot2, t0), 's_movk_i32 s3, 3456', 'v_mul_lo_u32 v%d, v%d, s3' % (t0, t0),
              'v_bfe_u32 v%d, v1, 4, 1' % t1, 'v_lshlrev_b32 v%d, 1, v%d' % (t1, t1), 'v_and_b32 v%d, 7, v1' % vG[1],
              'v_xor_b32 v%d, v%d, v%d' % (t1, t1, vG[1]), 'v_lshl_add_u32 v%d, v%d, 4, v%d' % (vG[0], t1, t0),
              'v_xor_b32 v%d, 4, v%d' % (t1, t1), 'v_lshl_add_u32 v%d, v%d, 4, v%d' % (vG[1], t1, t0)]
        L += ['s_mul_i32 s%d, s%d, %d' % (sGo[0], sW, 16 * 3456), 's_lshl_b32 s3, s%d, 7' % sFB,
              's_add_u32 s%d, s%d, s3' % (sGo[0], sGo[0]), 's_add_u32 s%d, s%d, %d' % (sGo[1], sGo[0], 8 * 3456 - 1024)]
        L2 = ['s_lshr_b32 s3, s%d, 1' % sW, 's_lshl_b32 s3, s3, 11', 'v_lshl_add_u32 v%d, v1, 4, s3' % vSTK, 'v_add_u32 v%d, s3, v%d' % (vSTV, vSTK)]
        L += ['s_lshl_b32 s%d, s%d, 4' % (sT0, sI), 's_lshl_b32 s3, s%d, 2' % sW, 's_sub_u32 s%d, 240, s%d' % (sT1, sT0),
              's_add_u32 s%d, s%d, s3' % (sT0, sT0), 's_add_u32 s%d, s%d, s3' % (sT1, sT1),
              'v_mov_b32 v%d, s%d' % (t0, sT0), 'v_mov_b32 v%d, s%d' % (t1, sT1), 'v_cmp_lt_u32 vcc, 31, v1',
              'v_and_b32 v%d, 3, v1' % vPA, 's_nop 0', 'v_cndmask_b32 v%d, v%d, v%d, vcc' % (t0, t0, t1), 'v_add_lshl_u32 v%d, v%d, v%d, 7' % (vPA, vPA, t0)]
        return (L0, L, L2) if split else L0 + L + L2

    def dmaA(self, t, tag, fl):
        st = t & 1
        A = []
        for p in range(8):
            it = []
            if p % 4 == 0: it.append('s_add_u32 m0, s%d, %d' % (sMA, st * 32768 + (p >> 2) * 4096))
            it.append(('buffer_load_dwordx4 v%d, %s, s%d offen offset:%d%s lds' % (vA[p & 1], s4(S_A), sAo[p >> 1], (p & 3) * 1024, fl), tag))
            A.append(it)
        return A
    def dmaB(self, t, sub, S, tag, fl):
        st = t & 1
        B = []
        for j in range(4):
            it = []
            if j == 0: it.append('s_add_u32 m0, s%d, %d' % (sMB, st * 32768 + sub * 16384))
            it.append(('buffer_load_dwordx4 v%d, %s, s%d offen offset:%d%s lds' % (vB[j >> 1], s4(S), sBo[j], j * 1024, fl), tag))
            B.append(it)
        return B
    def rot_step(self, n):
        return [['s_add_u32 s%d, s%d, 1' % (sRot, sRot), 's_cmp_eq_u32 s%d, %d' % (sRot, n), 's_cselect_b32 s%d, %d, 1' % (sInc, 1 - n), 's_cmov_b32 s%d, 0' % sRot],
                's_lshl_b32 s%d, s%d, 19' % (sIncB, sInc)]
    def dma1(self, t):
        tag = 'dma%d' % t
        it = self.dmaB(t, 0, S_B0, tag, '') + self.dmaA(t, tag, '')[:4] + self.dmaB(t, 1, S_B1, tag, '') + self.dmaA(t, tag, '')[4:]
        it[1] = it[1] + self.rot_step(8)
        it[11] = it[11] + ['v_add_u32 v%d, s%d, v%d' % (vB[0], sIncB, vB[0]), 'v_add_u32 v%d, s%d, v%d' % (vB[1], sIncB, vB[1])]
        if t < 7: it[15] = it[15] + ['v_lshl_add_u32 v%d, s%d, 7, v%d' % (v, sInc, v) for v in vA]
        return it
    def dma2(self, t):
        tag = 'dma%d' % t
        st = t & 1
        G = []
        for j in range(4):
            it = []
            if j % 2 == 0: it.append('s_add_u32 m0, s%d, %d' % (sMB, st * 32768 + 16384 + (j >> 1) * 2048))
            it.append(('buffer_load_dwordx4 v%d, %s, s%d offen offset:%d lds' % (vG[j & 1], s4([S_B1, S_B2][j >> 1]), sGo[j & 1], (j & 1) * 1024), tag))
            G.append(it)
        A = self.dmaA(t, tag, self.opt.get('xnfl', ' sc1'))
        it = G + A[:4] + self.dmaB(t, 0, S_B0, tag, '') + A[4:]
        if t == 17: return it
        it[1] = it[1] + self.rot_step(10) + ['s_mul_i32 s%d, s%d, %d' % (sIncG, sInc, 64 * 3456)]
        it[5] = it[5] + ['v_add_u32 v%d, s%d, v%d' % (v, sIncG, v) for v in vG]
        it[11] = it[11] + ['v_add_u32 v%d, s%d, v%d' % (v, sIncB, v) for v in vB]
        it[15] = it[15] + ['v_lshl_add_u32 v%d, s%d, 7, v%d' % (v, sInc, v) for v in vA]
        return it
    def dmaKV(self, t):
        tag = 'dma%d' % t
        st = t & 1
        it = []
        for half in range(2):
            for p in range(8):
                x = []
                if p % 4 == 0:
                    x.append('s_add_u32 m0, s%d, %d' % (sMA, (half - 1) * 65536 + st * 32768 + (p >> 2) * 4096))
                x.append(('buffer_load_dwordx4 v%d, %s, s%d offen offset:%d sc1 lds' % (vA[p >> 2], s4(S_A), sAo[2 * st + half], (p & 3) * 1024), tag))
                it.append(x)
        return it

    def p1_tile(self, nb, mb):
        if nb < 4: p, b = (nb >> 1) * 8 + mb, nb & 1
        else: p, b = 16 + (nb - 4) * 4 + (mb >> 1), mb & 1
        if p < 28: return ('v', (144 if b else 32) + 4 * p)
        return ('a', 224 + (p - 28) * 8 + 4 * b)
    def p2_tile(self, nb, mb):
        k = nb * 4 + mb
        return ('a', 64 + 4 * k) if k < 40 else ('v', 160 + 4 * (k - 40))

    def gemms(self):
        o = self.opt
        S = Stream()
        subs = []
        for t in range(18):
            for ks in range(2):
                ph = 1 if t < 8 else 2
                base = S.n()
                subs.append((ph, t, ks, base))
                first = ks == 0 and t in (0, 8)
                ng, nm = (8, 8) if ph == 1 else (16, 4)
                for nb in range(ng):
                    for mb in (range(nm) if nb % 2 == 0 else reversed(range(nm))):
                        k, r = self.p1_tile(nb, mb) if ph == 1 else self.p2_tile(nb, mb)
                        d = vr(r, 4, k)
                        a, b = ar(self.fragA(ph, ks, mb), 4), ar(self.fragB(ph, nb), 4)
                        if ph == 2 or nb < 4: a, b = b, a
                        S.add('%s %s, %s, %s, %s' % (MF, d, a, b, '0' if first else d))
        BAR = o.get('bar', 39)
        pre = []
        for si, (ph, t, ks, base) in enumerate(subs):
            ng, nm, ring = (8, 8, 4) if ph == 1 else (16, 4, 8)
            rdA = [self.readA(ph, t, ks, mb) for mb in range(nm)]
            rdB = [self.readB(ph, t, ks, nb) for nb in range(ng)]
            lo = -10 ** 9
            if ks == 0 and t > 0:
                lo = base - 64 + BAR
                S.at(lo, [('@vmwait', 'dma%d' % t), 's_waitcnt lgkmcnt(0)', 's_barrier'])
            items = []
            for nb in range(ng):
                g = base + (nb - ring + 1) * nm - 1
                if t == 8 and ks == 0:
                    g = base - 64 + BAR if nb < 4 else max(g, base - 1)
                items.append((max(g, lo), 0, rdB[nb]))
            for mb in range(nm):
                if ks == 0: g = lo + 1 + 2 * mb
                else: g = base - 64 + 8 + mb * (40 // nm)
                items.append((g, 1, [rdA[mb]]))
            items.sort(key=lambda x: (x[0], x[1]))
            for g, _, ls in items:
                if g < 0: pre += ls
                else:
                    for l in ls:
                        gg = S.flow([(g, l)], g)
                        if ks == 1: assert gg < base + 34, (t, gg - base)
        if o.get('np'):
            for k, it in enumerate(self.d1rest):
                g = 1 + k * o.get('d1sp', 3)
                if isinstance(it[0], str) and it[0].startswith('s_add_u32 m0'):
                    S.at(g - 1, it[0]); it = it[1:]
                S.at(g, it[0], front=True)
                if len(it) > 1: S.flow(it[1:], g)
        for t in range(2, 20):
            g0 = (t - 2) * 128 + 64 + BAR
            its = self.dma1(t) if t < 8 else self.dma2(t) if t < 18 else self.dmaKV(t)
            if t == 19:
                S.at(g0, ['s_waitcnt lgkmcnt(0)', 's_barrier'])
            span = o.get('dspan', 64) if t < 19 else 22
            if o.get('nodma'): its = []
            if o.get('noA'): its = [x for x in its if not any(isinstance(y, tuple) and s4(S_A) in y[0] for y in x)]
            if t in (7, 17): span = min(span, 64)
            for k, it in enumerate(its):
                g = g0 + 2 + k * span // 16
                if it[0].startswith('s_add_u32 m0') if isinstance(it[0], str) else False:
                    S.at(g - 1, it[0]); it = it[1:]
                S.at(g, it[0], front=True)
                if len(it) > 1: S.flow(it[1:], g)
        self.extras(S, BAR)
        return pre, S

    def fragA(self, ph, ks, mb): return ks * 32 + mb * 4
    def fragB(self, ph, nb):
        if ph == 1: return 64 + (nb & 3) * 4
        s = nb & 7
        return 16 + s * 4 if s < 4 else 48 + (s - 4) * 4
    def readA(self, ph, t, ks, mb):
        return 'ds_read_b128 %s, v%d offset:%d' % (ar(self.fragA(ph, ks, mb), 4), (vRA1 if ph == 1 else vRA2)[ks], (t & 1) * 32768 + mb * 2048)
    def readB(self, ph, t, ks, nb):
        f = self.fragB(ph, nb)
        st = (t & 1) * 32768
        if ph == 1: v, off, dj = vRB[nb & 3], st + (nb >> 2) * 16384 + ks * 8192, 1024
        elif nb >= 8: v, off, dj = vRB[nb - 8], st + ks * 8192, 1024
        else: v, off, dj = vRG[nb >> 1], st + 16384 + ks * 8192 + (nb & 1) * 2048, 512
        return ['ds_read_b64_tr_b16 %s, v%d offset:%d' % (ar(f + 2 * j, 2), v, off + j * dj) for j in range(2)]

    def extras(self, S, BAR):
        o = self.opt
        bar = lambda t: t * 128 + 64 + BAR
        self.wstores = []
        if o.get('np') == 2: self.extras3(S, bar)
        else: self.extras1(S, bar)
        self.extras2(S, bar)
    def extras1(self, S, bar):
        o = self.opt
        S.at(bar(1), [('@vmwait', 'xn')], front=True)
        S.flow(self.flag(1), bar(1) + 1)
        wt = 0
        if o.get('np'):
            wt = o.get('wdma', 2)
            su, ld, sw = self.w_block(vT1, vT0)
            g = S.flow(self.keep_scc(su), wt * 128 + 42)
            for pre, l in ld:
                g = S.flow(pre, g + 1)
                g = S.flow([l], g + 1) + o.get('wdsp', 2)
            g = S.flow(self.keep_scc(sw), g)
            assert g < bar(wt), g - wt * 128
            if o.get('tch', 1):
                ts = o.get('tA', 1)
                assert ts != wt and ts != o.get('wpf') and ts != wt + 2
                S.flow(self.touchA(vT1, vT0, 6 - ts - 2, 117), ts * 128 + 44)
            if o.get('tch', 1) == 2:
                g = S.flow(self.keep_scc(self.touchB(vT1, vT0, 113)), 44) if o.get('rot1', 8) < 4 else 44
                S.flow(self.touchA(vT1, vT0, 0, 114), g + 1)
        rd = ['v_lshrrev_b32 v%d, 2, v1' % vT1, 'v_lshlrev_b32 v%d, 8, v%d' % (vT1, vT1), 'v_and_b32 v%d, 3, v1' % vT0,
              'v_lshl_add_u32 v%d, v%d, 3, v%d' % (vT1, vT0, vT1), 's_add_u32 s3, s%d, 0x10000' % sMA, 'v_add_u32 v%d, s3, v%d' % (vT1, vT1)]
        for q in range(8):
            for j in range(2):
                rd.append('ds_read_b64_tr_b16 %s, v%d offset:%d' % (ar(80 + 4 * q + 2 * j, 2), vT1, q * 32 + j * 4096))
        g = S.flow(rd, (wt + 2) * 128 + 44, cap=4)
        stv = ['v_lshlrev_b32 v%d, 4, v1' % vT0, 's_movk_i32 s%d, 4096' % sSO]
        g = S.flow(stv, g + 1)
        for q in range(8 if not o.get('now') else 0):
            S.flow([('buffer_store_dwordx4 %s, v%d, %s, %s offen offset:%d sc1' % (ar(80 + 4 * q, 4), vT0, s4(S_W), '0' if q < 4 else 's%d' % sSO, (q & 3) * 1024), 'kv')],
                   (wt + 3) * 128 + 44 + q * 7)
        if o.get('wpf'):
            pf = [['s_cmp_eq_u32 s%d, 2' % sW, 's_cselect_b32 s%d, s%d, s%d' % (S_X, pWG, pWU), 's_cselect_b32 s%d, s%d, s%d' % (S_X + 1, pWG + 1, pWU + 1)],
                  ['s_cmp_lt_u32 s%d, 27' % sFB, 's_cselect_b32 s%d, 0x%x, 0' % (S_X + 2, 640 * 3456)],
                  's_lshl_b32 s%d, s%d, 1' % (sT0, sH), 's_add_u32 s%d, s%d, s%d' % (sT0, sT0, sW), 's_movk_i32 s%d, 3456' % sT1,
                  ['s_cmp_lt_u32 s%d, 2' % sW, 's_cmov_b32 s%d, s%d' % (S_X, pWQ), 's_cmov_b32 s%d, s%d' % (S_X + 1, pWQ + 1), 's_cmov_b32 s%d, 0x%x' % (S_X + 2, 640 * 8192),
                   's_cselect_b32 s%d, s%d, s%d' % (sT0, sT0, sFB), 's_cmov_b32 s%d, 8192' % sT1],
                  's_mul_i32 s%d, s%d, 80' % (sT2, sI), 'v_add_u32 v%d, s%d, v1' % (vPR, sT2), 'v_mul_lo_u32 v%d, v%d, s%d' % (vPR, vPR, sT1),
                  's_lshl_b32 s%d, s%d, 7' % (sT0, sT0), 's_lshl_b32 s%d, s%d, 4' % (sT1, sT1), 's_add_u32 s%d, s%d, s%d' % (sT1, sT1, sT0)]
            g = S.flow(pf, o['wpf'] * 128 + 44)
            g = S.flow(['buffer_load_dword a115, v%d, %s, s%d offen' % (vPR, s4(S_X), sT0)], g + 1)
            S.flow(['buffer_load_dword a116, v%d, %s, s%d offen' % (vPR, s4(S_X), sT1)], g + o.get('wpf2', 10))
    def extras2(self, S, bar):
        o = self.opt
        S.flow(self.poll_issue(), o.get('xpoll', 5 * 128 + 50 if o.get('np') != 2 else 6 * 128 + 41))
        gs = 6 * 128 + 44
        su = (srd_off(S_A, pWS, WS_XN, 2048 * 1280) if not o.get('readx') else srd_off(S_A, pX, 0, 2048 * 1280)) + srd(S_B0, pWQ, pWQ + 1, 640 * 8192)
        su += ['s_cmp_lt_u32 s%d, 27' % sFB, 's_cselect_b32 s%d, 0x%x, 0' % (S_B1 + 2, 640 * 3456), 's_mov_b32 s%d, s%d' % (S_B2 + 2, S_B1 + 2),
               's_mov_b32 s%d, s%d' % (S_B1, pWG), 's_mov_b32 s%d, s%d' % (S_B1 + 1, pWG + 1),
               's_mov_b32 s%d, s%d' % (S_B2, pWU), 's_mov_b32 s%d, s%d' % (S_B2 + 1, pWU + 1), 's_mov_b32 s%d, 0x00020000' % (S_B2 + 3)]
        su += ['s_lshl_b32 s%d, s%d, 2' % (sT0, sI), 's_sub_u32 s%d, 60, s%d' % (sT1, sT0),
               's_add_u32 s%d, s%d, s%d' % (sT0, sT0, sW), 's_add_u32 s%d, s%d, s%d' % (sT1, sT1, sW),
               's_mul_i32 s%d, s%d, %d' % (sAo[0], sT0, 32 * 1280), 's_mul_i32 s%d, s%d, %d' % (sAo[2], sT1, 32 * 1280),
               's_add_u32 s%d, s%d, %d' % (sAo[1], sAo[0], 16 * 1280 - 2048), 's_add_u32 s%d, s%d, %d' % (sAo[3], sAo[2], 16 * 1280 - 2048)]
        su += self.a_dma_addr(1280, sRot2)
        su += ['s_sub_u32 s%d, s%d, s%d' % (sInc, sRot2, sRot), 's_mov_b32 s%d, s%d' % (sRot, sRot2), 's_lshl_b32 s%d, s%d, 19' % (sIncG, sInc)]
        su += ['v_add_u32 v%d, s%d, v%d' % (v, sIncG, v) for v in vB]
        su += ['s_lshl_b32 s%d, s%d, 4' % (sT0, sH), 's_lshl_b32 s%d, s%d, 1' % (sT1, sI), 's_add_u32 s%d, s%d, s%d' % (sT0, sT0, sT1),
               's_and_b32 s%d, s%d, 1' % (sT1, sW), 's_add_u32 s%d, s%d, s%d' % (sT0, sT0, sT1), 's_lshl_b32 s%d, s%d, 16' % (sT0, sT0)]
        su += srd_off(S_ST, pWS, 's%d' % sT0, 65536)
        su = self.keep_scc(su)
        g = S.flow(su, gs)
        assert g < bar(6) - 1, g
        S.at(bar(6) - 1, self.stamp(5) + self.poll_check(1) + self.stamp(6))
        fx = ['s_lshr_b32 s3, s%d, 1' % sW, 's_lshl_b32 s3, s3, 7'] + ['v_xor_b32 v%d, s3, v%d' % (v, v) for v in vRB]
        g = S.flow(fx, 7 * 128 + 64 + 34)
        assert g < 8 * 128, g
        b15 = 7 * 128 + 64
        pk = []
        for p in range(28):
            e = b15 + (17 if p < 8 else 33 if p < 16 else 41 + 8 * ((p - 16) >> 2))
            a, b = 32 + 4 * p, 144 + 4 * p
            pk += [(e, 'v_cvt_pk_bf16_f32 v%d, v%d, v%d' % (a, a, a + 1)), 'v_cvt_pk_bf16_f32 v%d, v%d, v%d' % (a + 1, a + 2, a + 3),
                   'v_cvt_pk_bf16_f32 v%d, v%d, v%d' % (a + 2, b, b + 1), 'v_cvt_pk_bf16_f32 v%d, v%d, v%d' % (a + 3, b + 2, b + 3)]
        g = b15
        for p in range(28):
            g = S.flow(pk[4 * p:4 * p + 4], g)
            if p >= 4: assert g < 8 * 128 + 40 + ((p - 4) & ~3) - 1, (p, g)
        for q in range(4):
            for k in range(4):
                g = S.flow(['v_accvgpr_read_b32 v%d, a%d' % (vT0, 224 + 8 * q + 2 * k), 'v_accvgpr_read_b32 v%d, a%d' % (vT1, 225 + 8 * q + 2 * k),
                            'v_cvt_pk_bf16_f32 v%d, v%d, v%d' % (144 + 4 * q + k, vT0, vT1)], max(g, 8 * 128 + 2))
        order = sorted(range(32), key=lambda p: self.kv_off(p)[0])
        g0, g1 = g + 1, o.get('st_end', 13 * 128)
        last = None
        stw = o.get('stw')
        for n, p in enumerate(order):
            off, v = self.kv_off(p)
            gg = g0 + n * (g1 - g0) // 32
            if stw:
                gg = max(g0, bar(stw[0] + n // stw[1]) + 3 + o.get('dspan', 64) + (n % stw[1]) * stw[2])
            it = []
            if off >> 12 != last:
                last = off >> 12
                it.append('s_mov_b32 s%d, %d' % (sSO, off & ~4095))
            if not o.get('nokv'):
                it.append(('buffer_store_dwordx4 v[%d:%d], v%d, %s, s%d offen offset:%d%s' % (32 + 4 * p, 35 + 4 * p, v, s4(S_ST), sSO, off & 4095, o.get('kvfl', ' sc1')), 'kv'))
            gl = S.flow(it, gg)
            if stw: g0 = max(g0, gl)
        for n, l in enumerate(self.wstores): S.flow([l], o.get('wst', 13 * 128) + n * o.get('wsts', 12))
        tf = o.get('kvflag', 14)
        S.at(bar(tf), [('@vmwait', 'kv')], front=True)
        S.flow(self.flag(2), bar(tf) + 1)
        pa = ['s_and_b32 s3, s2, 31', 'v_and_b32 v%d, 7, v1' % vPA, 'v_lshlrev_b32 v%d, 5, v%d' % (vPA, vPA), 'v_add_lshl_u32 v%d, s3, v%d, 7' % (vPA, vPA)]
        S.flow(pa + self.poll_issue(), 16 * 128 + 10)
        su = ['s_lshl_b32 s%d, s%d, 20' % (sT0, sH)] + srd_off(S_A, pWS, 's%d' % sT0, 1 << 20)
        su += ['s_lshl_b32 s%d, s%d, 13' % (sAo[0], sW), 's_add_u32 s%d, s%d, 0x8000' % (sAo[1], sAo[0]),
               's_lshl_b32 s3, s%d, 16' % sI, 's_add_u32 s%d, s%d, s3' % (sAo[2], sAo[0]),
               's_add_u32 s%d, s%d, 0x18000' % (sAo[2], sAo[2]), 's_add_u32 s%d, s%d, 0x10000' % (sAo[3], sAo[2]),
               'v_lshlrev_b32 v%d, 4, v1' % vA[0], 'v_add_u32 v%d, 0x1000, v%d' % (vA[1], vA[0])]
        g = S.flow(self.keep_scc(su), 16 * 128 + 44)
        assert g < bar(16) - 1
        S.at(bar(16) - 1, self.stamp(10) + self.poll_check(2) + self.stamp(11))
        S.at(10 * 128, self.stamp(7)); S.at(12 * 128, self.stamp(8)); S.at(14 * 128, self.stamp(9))
        if self.SO:
            S.at(8 * 128 - 1, self.stamp(2))
            for t, i in o.get('stepst', []): S.at(t * 128 + 127, self.stamp(i, force=True))

    def keep_scc(self, lines):
        out = []
        for l in lines:
            op = l.split()[0]
            if op in ('s_addc_u32', 's_cselect_b32', 's_cmov_b32', 's_cselect_b64'):
                if not isinstance(out[-1], list): out[-1] = [out[-1]]
                out[-1].append(l)
            else: out.append(l)
        return out

    def kv_off(self, p):
        if p < 16:
            mb, dsl = p & 7, p >> 3
            return (mb >> 2) * 32768 + (mb & 3) * 4096 + dsl * 1024, vSTK
        n, mp = (p - 16) >> 2, (p - 16) & 3
        return (mp >> 1) * 32768 + 16384 + (mp & 1) * 8192 + n * 1024, vSTV

    def p2_epilogue(self):
        L = []
        sC = sT0
        L += ['s_mov_b32 s%d, 0x3e0293ee' % sC]
        for ds in (1, 2, 3, 0):
            for qb in range(4):
                dst = 32 + (qb * 4 + ds) * 4
                for hf in range(2):
                    k, r = self.p2_tile(8 + 2 * ds + hf, qb)
                    if k == 'a':
                        t = 96 + (qb * 2 + hf) * 4
                        L += ['v_accvgpr_read_b32 v%d, a%d' % (t + e, r + e) for e in range(4)]
                        r = t
                    L += ['v_mul_f32 v%d, s%d, v%d' % (r + e, sC, r + e) for e in range(4)]
                    L += ['v_cvt_pk_bf16_f32 v%d, v%d, v%d' % (dst + 2 * hf + e, r + 2 * e, r + 2 * e + 1) for e in range(2)]
        L += ['s_add_u32 s3, s%d, 0x10000' % sMA, 'v_add_u32 v%d, s3, v%d' % (vT0, vA[0]), 'v_xor_b32 v%d, 0x2000, v%d' % (vT1, vT0)]
        for f in range(8):
            L.append('ds_write_b128 v%d, v[%d:%d] offset:%d' % (vT0, 64 + 4 * f, 67 + 4 * f, f * 1024))
        L += ['s_cmp_ge_u32 s%d, 27' % sFB, 's_cbranch_scc1 %s' % self.lab('skipgelu')]
        self.ool.append([self.lab('skipgelu') + ':', 's_waitcnt vmcnt(0)', 's_branch %s' % self.lab('nogelu')])
        sL, sHh, c1, c2 = sGo[0], sGo[1], sT1, sT2
        L += srd_off(S_ST, pWS, WS_H, 32 * 54 * 4096)
        if self.H16:
            L += ['s_lshl_b32 s3, s%d, 1' % sW, 's_lshl_b32 s%d, s%d, 3' % (sL, sI), 's_sub_u32 s%d, 120, s%d' % (sHh, sL),
                  's_add_u32 s%d, s%d, s3' % (sL, sL), 's_add_u32 s%d, s%d, s3' % (sHh, sHh),
                  's_mul_i32 s%d, s%d, %d' % (sL, sL, 54 * 1024), 's_mul_i32 s%d, s%d, %d' % (sHh, sHh, 54 * 1024),
                  's_lshl_b32 s3, s%d, 11' % sFB, 's_add_u32 s%d, s%d, s3' % (sL, sL), 's_add_u32 s%d, s%d, s3' % (sHh, sHh),
                  'v_add_u32 v4, %d, v%d' % (54 * 1024, vA[0])]
        else:
            L += ['s_lshr_b32 s3, s%d, 1' % sW, 's_lshl_b32 s%d, s%d, 1' % (sL, sI), 's_sub_u32 s%d, 30, s%d' % (sHh, sL),
                  's_add_u32 s%d, s%d, s3' % (sL, sL), 's_add_u32 s%d, s%d, s3' % (sHh, sHh),
                  's_mul_i32 s%d, s%d, %d' % (sL, sL, 54 * 4096), 's_mul_i32 s%d, s%d, %d' % (sHh, sHh, 54 * 4096),
                  's_lshl_b32 s3, s%d, 13' % sFB, 's_and_b32 s%d, s%d, 1' % (c1, sW), 's_lshl_b32 s%d, s%d, 11' % (c1, c1), 's_add_u32 s3, s3, s%d' % c1,
                  's_add_u32 s%d, s%d, s3' % (sL, sL), 's_add_u32 s%d, s%d, s3' % (sHh, sHh)]
        import struct, math
        f2u = lambda x: struct.unpack('<I', struct.pack('<f', x))[0]
        kk = 2 * math.sqrt(2 / math.pi) * math.log2(math.e)
        L += ['s_mov_b32 s%d, 0x%x' % (c1, f2u(-kk * 0.044715)), 'v_mov_b32 v%d, 0x%x' % (vPR, f2u(-kk))]
        n = 0
        for m in range(2):
            for mb in range(4):
                base = 96 + (n % 2) * 28
                G, U, T, D = base, base + 8, base + 16, base + 24
                n += 1
                for hf in range(2):
                    _, rg = self.p2_tile(2 * (2 * m + hf), mb)
                    _, ru = self.p2_tile(2 * (2 * m + hf) + 1, mb)
                    L += ['v_accvgpr_read_b32 v%d, a%d' % (G + 4 * hf + e, rg + e) for e in range(4)]
                    L += ['v_accvgpr_read_b32 v%d, a%d' % (U + 4 * hf + e, ru + e) for e in range(4)]
                L += ['v_mul_f32 v%d, v%d, v%d' % (T + e, G + e, G + e) for e in range(8)]
                L += ['v_fma_f32 v%d, v%d, s%d, v%d' % (T + e, T + e, c1, vPR) for e in range(8)]
                L += ['v_mul_f32 v%d, v%d, v%d' % (T + e, T + e, G + e) for e in range(8)]
                L += ['v_exp_f32 v%d, v%d' % (T + e, T + e) for e in range(8)]
                L += ['v_mul_f32 v%d, v%d, v%d' % (G + e, G + e, U + e) for e in range(8)]
                L += ['v_add_f32 v%d, 1.0, v%d' % (T + e, T + e) for e in range(8)]
                L += ['v_rcp_f32 v%d, v%d' % (T + e, T + e) for e in range(8)]
                L += ['v_mul_f32 v%d, v%d, v%d' % (G + e, G + e, T + e) for e in range(8)]
                L += ['v_cvt_pk_bf16_f32 v%d, v%d, v%d' % (D + e, G + 2 * e, G + 2 * e + 1) for e in range(4)]
                va, off = ((4 if mb & 1 else vA[0]), m * 1024) if self.H16 else (vA[m], (mb & 1) * 1024)
                L += [('buffer_store_dwordx4 v[%d:%d], v%d, %s, s%d offen offset:%d sc1' % (D, D + 3, va, s4(S_ST), sL if mb < 2 else sHh, off), 'h')]
        L += [self.lab('nogelu') + ':']
        return L

    def dump_q(self):
        L = srd_off(S_X, pWS, WS_Q, 16 << 20)
        L += ['s_lshl_b32 s3, s2, 2', 's_add_u32 s3, s3, s%d' % sW, 's_lshl_b32 s3, s3, 14']
        for f in range(16):
            L += ['buffer_store_dwordx4 v[%d:%d], v%d, %s, s3 offen' % (32 + 4 * f, 35 + 4 * f, vA[0], s4(S_X)), 's_add_u32 s3, s3, 1024']
        return L

    def build(self, stats=None):
        o = self.opt
        L = self.prologue()
        pre, S = self.gemms()
        L += [('@vmwait', 'dma0'), 's_barrier'] + self.stamp(1) + pre
        L += S.lines()
        L += self.stamp(3)
        L += self.p2_epilogue()
        L += self.stamp(4)
        if o.get('stop') == 2:
            L += self.dump_q()
        L += self.epoch_out()
        L += ['s_waitcnt vmcnt(0)'] + self.stamp(13) + self.stamp(15, True) + self.stamps_out()
        L += ['s_endpgm']
        out, st = process(L, stats=stats, lazy=o.get('lazy', 8))
        for blk in self.ool:
            out += process(blk, stats=stats)[0]
        out += [self.lab('end') + ':']
        return out
```

```python
from asmlib import *
from fused import *
from attn import *

WS_P = 72 << 20
sFA, sFW, sFM, sWO, sRL, sRH, sCB, sP0, sDH = 34, [35, 36, 37, 38], 39, [40, 41, 42, 43], 44, 45, 46, 47, [None, 48, 49, 50]
S_H, S_WD, S_WO, S_P = S_B0, S_B1, S_B2, S_W
FACC, FA, FB = 140, 160, 172
vFW, vFR = 248, 249
V2, P2 = 160, 144
CXL = 32
ACCL = [64 + 8 * n for n in range(10)]
ACCH = [32, 40, 48, 56, 144, 152, 160, 168, 8, 16]
vW1, vW2, v8K, vMW, vMR, vR = 4, 5, 6, 7, 24, [30, 25]
NRING = 16
sM2, sK2 = sTI, sX
sU = [51, 54, 55, 62, 74, 88]
def tmp(lines, k):
    f = lambda l: [f(y) for y in l] if isinstance(l, list) else re.sub(r'\bs3\b', 's%d' % sU[k], l)
    return [f(l) for l in lines]

vTC = 252
AD = ['s_lshl_b32 s%d, s%d, 14' % (sM2, sW), 'v_add_u32 v%d, s%d, v%d' % (vMW, sM2, vA[0]), 'v_xor_b32 v%d, 0x4000, v%d' % (vMR, vMW), 's_xor_b32 s%d, s%d, 0x4000' % (sM2, sM2),
      's_add_u32 s%d, s%d, %d' % (sK2, sK, 144 * 1024), 'v_lshl_add_u32 v250, v1, 2, s%d' % sK2, 'v_xor_b32 v251, 0x1000, v250',
      'v_lshrrev_b32 v%d, 4, v1' % vTC, 'v_and_b32 v253, 15, v1', 'v_lshlrev_b32 v253, 7, v253', 'v_lshl_add_u32 v%d, v%d, 12, v253' % (vTC, vTC)]

class KB(KA):
    H16 = True
    MAXF = 12

    def f_setup(self):
        x, jj = sT0, sT1
        L = ['s_and_b32 s%d, s2, 7' % x, 's_bfe_u32 s%d, s2, 0x20003' % jj,
             's_and_b32 s3, s2, 1', 's_lshl_b32 s%d, s%d, 1' % (sCB, jj), 's_add_u32 s%d, s%d, s3' % (sCB, sCB),
             's_and_b32 s3, s2, 6', 's_lshl_b32 s%d, s%d, 3' % (sRL, sI), 's_sub_u32 s%d, 120, s%d' % (sRH, sRL),
             's_add_u32 s%d, s%d, s3' % (sRL, sRL), 's_xor_b32 s3, s3, 2', 's_add_u32 s%d, s%d, s3' % (sRH, sRH),
             's_cmp_lt_u32 s%d, 2' % sW, 's_cselect_b32 s%d, s%d, s%d' % (sFA, sRL, sRH), 's_and_b32 s3, s%d, 1' % sW,
             's_add_u32 s%d, s%d, s3' % (sFA, sFA), 's_mul_i32 s%d, s%d, %d' % (sFA, sFA, 54 * 1024),
             's_mul_i32 s%d, s%d, 5' % (sT2, sCB), 's_lshl_b32 s3, s%d, 2' % sW, 's_add_u32 s%d, s%d, s3' % (sT2, sT2), 's_mul_i32 s%d, s%d, 52' % (sFM, sW)]
        for k in range(4):
            L += ['s_add_u32 s3, s%d, %d' % (sFM, 13 * k), 's_lshr_b32 s3, s3, 6', 's_mul_i32 s3, s3, 35', 's_add_u32 s3, s3, s%d' % sT2, 's_lshl_b32 s%d, s3, 10' % sFW[k]]
        L += ['s_lshl_b32 s%d, s%d, 12' % (sFM, sW), 's_add_u32 s%d, s%d, 0x20000' % (sFM, sFM),
              'v_mov_b32 v%d, v%d' % (vFW, vA[0]), 'v_add_u32 v%d, 0x20000, v%d' % (vFR, vA[0])]
        L += srd_off(S_H, pWS, WS_H, 128 * 54 * 1024) + srd_off(S_WD, pWS, WS_W + (5 << 20), 54 * 40960)
        return self.keep_scc(L)
    def w_setup(self):
        x, jj = sT0, sT1
        L = ['s_bfe_u32 s%d, s2, 0x20003' % jj,
             's_lshl_b32 s%d, s%d, 2' % (sT2, sH), 's_add_u32 s%d, s%d, s%d' % (sT2, sT2, sW), 's_lshl_b32 s%d, s%d, 2' % (sT2, sT2), 's_add_u32 s%d, s%d, s%d' % (sT2, sT2, jj),
             's_mul_i32 s%d, s%d, 10240' % (sWO[0], sT2)]
        for hr in range(1, 4):
            L += ['s_add_u32 s3, s%d, %d' % (jj, hr), 's_and_b32 s3, s3, 3', 's_sub_u32 s3, s3, s%d' % jj, 's_lshl_b32 s%d, s3, 14' % sDH[hr],
                  's_mul_i32 s3, s%d, 10' % sDH[hr], 's_add_u32 s%d, s%d, s3' % (sWO[hr], sWO[0])]
        L += srd_off(S_WO, pWS, WS_W, 128 * 40960)
        return self.keep_scc(L)
    def p_setup(self):
        L = ['s_andn2_b32 s3, s2, 7', 's_add_u32 s3, s3, s%d' % sW, 's_add_u32 s3, s3, s%d' % sW, 's_mul_i32 s3, s3, 80', 's_and_b32 s%d, s2, 7' % sP0,
             's_add_u32 s3, s3, s%d' % sP0, 's_lshl_b32 s%d, s3, 10' % sP0]
        L += srd_off(S_P, pWS, WS_P, 256 * 81920)
        return self.keep_scc(L)

    def place_vm(self, S, lines, g0, sp, tag=None):
        gp, k, out = g0 - 1, 0, []
        nxt = g0
        for l in lines:
            t = l[0] if isinstance(l, tuple) else l
            if not t.startswith('buffer_'):
                while S.load.get(gp, 0) >= 8: gp += 1
                S.at(gp, l)
                nxt = max(nxt, gp + 1)
            else:
                g = nxt
                c = [y for y in range(g, g + self.opt.get('pairw', 2)) if S.load.get(y, 0) == 4]
                if c: g = c[0]
                while S.load.get(g, 0) > 4: g += 1
                S.at(g, (l, tag) if tag and not isinstance(l, tuple) else l, front=True)
                out.append(g); gp = g; nxt = g + sp
        return out

    def body2(self, mode, kind):
        o = self.opt
        first, second, last, hasf = kind == 'first', kind == 'second', kind == 'last', kind == 'loop'
        base = self.qk(mode, 0) + ([] if first else self.pv()) + self.qk(mode, 1) + self.pv(zero=first)
        b1 = 32 if first else 68
        ins = o.get('fpos', [47 + 6 * k for k in range(15)]) if hasf else []
        S = Stream(); G = {}; fg = []
        for n, l in enumerate(base):
            G[n] = S.n(); S.add(l)
            if n in ins:
                u = len(fg); fg.append(S.n())
                d = ar(FACC + 4 * (u % 5), 4)
                S.add('%s %s, %s, %s, %s' % (MF, d, ar(FB + 4 * (u % 5), 4), ar(FA + 4 * (u // 5), 4), d))
        tag = kind[0] + mode
        for b, u in ((0, 1), (b1, 0)):
            for m in range(8):
                if not (last and b): S.at(G[b + 4 * m + 3], self.kread(u, m & 1, m >> 1))
        BAR = 31 if first else o.get('abar', 39)
        tog = ['v_mov_b32 v%d, v%d' % (vV, vK), 'v_xor_b32 v%d, %s, v%d' % (vK, 's%d' % sX if mode == 'D' else '0x10000', vK)]
        if last: tog = tog[:1]
        e0 = self.exps(0)
        if first:
            S.flow(e0[:3], 28)
            S.at(31, e0[3:27] + tog + self.hookD(tag + '1') + self.hop('f') + ['s_waitcnt vmcnt(0) lgkmcnt(0)', 's_barrier'] + self.flag(3))
            e0 = e0[27:]
            fs = self.f_setup()
            g = S.flow(fs[:-8], 0)
            assert g < 28, g
        else:
            S.at(BAR, [('@vmwait', 'kv'), 's_waitcnt lgkmcnt(0)', 's_barrier'])
            S.load[BAR] = 8
            S.at(G[b1] - 2, tog)
            if mode == 'D':
                S.at(-1, self.hookD(tag + '0'))
                S.at(G[b1] - 1, self.hookD(tag + '1'))
            elif last:
                S.at(G[b1] - 1, ['s_branch %s' % self.lab('hmid'), self.lab('hmidr2') + ':'])
                S.load[G[b1] - 1] = 8
            else:
                S.at(G[b1] - 1, ['s_cmp_lg_u32 s%d, 0' % sEv, 's_cbranch_scc1 %s' % self.lab('hmid'), self.lab('hmidr') + ':'])
            c = self.cvts(1)
            vr_ = [self.vread(1, db) for db in range(8)]
            gfree = S.flow([x for k in range(8) for x in (vr_[k], c[2 * k], c[2 * k + 1])], 0)
        if hasf:
            S.at(S.n() - 1, ['s_sub_u32 s%d, s%d, 1' % (sN, sN), 's_cbranch_scc0 %s' % self.lab('top' + mode)])
            for u in range(15):
                g = BAR + 1 + u if u < 2 else fg[u - 2]
                S.at(g, 'ds_read_b128 %s, v%d offset:%d' % (ar(FB + 4 * (u % 5), 4), vFR, u * 1024))
            S.at(fg[13], 'v_xor_b32 v%d, 0x4000, v%d' % (vFR, vFR))
        fdma = ['s_mov_b32 m0, s%d' % sFM] + ['buffer_load_dwordx4 v%d, %s, s%d offen offset:%d sc1 lds' % (vFW, s4(S_WD), sFW[k], k * 1024) for k in range(4)] + \
               ['s_xor_b32 s%d, s%d, 0x4000' % (sFM, sFM), 'v_add_u32 v%d, %d, v%d' % (vFW, 3 * 40960, vFW)]
        fa = ['buffer_load_dwordx4 %s, v%d, %s, s%d offen offset:%d sc1' % (ar(FA + 4 * t, 4), vA[0], s4(S_H), sFA, t * 1024) for t in range(3)]
        sp = o['dsp'] if mode == 'S' else o.get('dspD', o['dsp'])
        vr0 = [self.vread(0, db) for db in range(8)]
        if first:
            self.place_vm(S, self.kv_dma(mode), 34, sp, 'kv')
            ge = S.flow(e0, 32)
        elif last:
            g = S.flow(self.w_setup() + ['v_add_u32 v%d, 0x2000, v%d' % (v8K, vA[0]), 's_mul_i32 s%d, s%d, 10240' % (sM, sW), 's_lshl_b32 s%d, s%d, 12' % (sK, sW)] + AD, gfree)
            assert g < BAR, g
            dm = []
            for hr in range(3):
                for n in range(10 if hr < 2 else 3):
                    if n % 4 == 0:
                        dm.append('s_add_u32 m0, s%d, %d' % (sM, 0x10000 + hr * 40960 + n * 1024) if hr < 2 else 's_add_u32 m0, s%d, %d' % (sK, 144 * 1024))
                    dm.append((self.wo_dma(hr, n), 'wo%d' % hr))
            gs = self.place_vm(S, dm, BAR + 2, sp)
            k = max(k for k, g in enumerate(gs) if g < G[b1] - 1)
            assert k < 9
            S.fill[gs[k]] = [(l[0], 'pre') if isinstance(l, tuple) and l[0].startswith('buffer_') else l for l in S.fill[gs[k]]]
            ge = S.flow(e0, G[28] + 1)
        else:
            gs = self.place_vm(S, fdma + self.kv_dma(mode), BAR + 2, sp, 'kv')
            g = gs[-1] + sp
            if second:
                S.at(BAR - 1, self.poll_check(2))
                g = o.get('gb', 124)
                S.at(g - 1, self.poll_check(3))
                S.flow(['v_accvgpr_write_b32 a%d, 0' % (FACC + e) for e in range(20)], gfree, gmax=28)
            for t in range(2):
                if hasf: g = max(g, fg[5 * t + 4])
                g = self.place_vm(S, fa[t:t + 1], g, sp)[0] + sp
            if hasf: S.flow([fa[2], 's_add_u32 s%d, s%d, 3072' % (sFA, sFA)], gfree)
            ge = S.flow(e0, G[28] + 1)
        if not last:
            g = S.flow(self.exps(1), G[b1 + 28] + 1)
            assert g < S.n(), g
        c = self.cvts(0)
        g = G[b1 + 30] if not last else G[b1 + 28]
        for l in reversed(c):
            while S.load.get(g, 0) + 4 > 8: g -= 1
            S.at(g, l, front=True)
        assert (g > ge and g >= G[b1]) or first, (g, ge)
        gl = S.flow(vr0, G[b1], gmax=G[b1 + 30])
        if first:
            pa = ['s_lshl_b32 s3, s%d, 6' % sW, 'v_add_lshl_u32 v%d, s3, v1, 7' % vPA]
            S.flow(pa + fs[-8:] + [(o.get('gp2', 90), self.poll_issue())], gl)
        if second:
            pa = ['s_lshl_b32 s3, s%d, 5' % sI, 'v_and_b32 v%d, 31, v1' % vPA, 'v_add_lshl_u32 v%d, s3, v%d, 7' % (vPA, vPA)]
            gg = S.flow(self.epoch_out() + ['s_lshl_b32 s3, s2, 5', 's_add_u32 s3, s3, s%d' % sW, 's_lshl_b32 s3, s3, 2', 's_add_u32 s3, s3, 16',
                                            'v_mov_b32 v%d, 0x7fff0000' % vFL, 'v_writelane_b32 v%d, s3, 0' % vFL] + pa, BAR + 1, gmax=80)
            gg = S.flow(self.poll_issue(), max(gg, o.get('gb', 124) - o.get('gp3', 44)), cap=12)
            assert gg < o.get('gb', 124) - 1
        if last:
            gl = S.flow(['ds_read_b128 %s, v%d offset:%d' % (ar(V2 + db * 4, 4), vV, 16384 + (8 + db) * 1024) for db in range(8)], gl, gmax=G[b1 + 31])
        if o.get('verbose'): print(tag, 'exp0 end', ge - G[b1], 'cvt start', g - G[b1], 'rd end', gl - G[b1], 'over', [(k, v) for k, v in sorted(S.load.items()) if v > 8])
        given = S if last else S.lines()
        return given

    def wo_dma(self, hr, n):
        return 'buffer_load_dwordx4 v%d, %s, s%d offen offset:%d sc1 lds' % ([vA[0], vA[1], v8K][n >> 2], s4(S_WO), sWO[hr], (n & 3) * 1024)
    def wo_lds(self, hr, ds, n):
        if hr < 2: a = 64 + (4 * hr + ds) * 10 + n
        elif hr == 2 and n < 4: a = 144 + ds * 4 + n
        elif hr == 2: a = (ds ^ 1) * 16 + n - 4
        else: a = (ds ^ 1) * 16 + 6 + n
        return [vA[0], vW1, vW2][a >> 6], (a & 63) * 1024

    def check(self, slow, t):
        return ['v_add_f32 v%d, v%d, v%d' % (t, L0, L0 + 4), 'v_cmp_gt_f32 vcc, 0x5f800000, v%d' % t, 's_cmp_eq_u64 vcc, -1',
                's_cbranch_scc0 %s' % self.lab(slow), self.lab(slow + 'r') + ':']
    def finalizeL(self):
        L = self.check('slowL', L0 + 2)
        L += ['v_rcp_f32 v%d, v%d' % (L0, L0), 'v_rcp_f32 v%d, v%d' % (L0 + 4, L0 + 4), 's_mov_b32 s3, s%d' % sCtL]
        for ds in range(4):
            if ds == 2: L.append('s_add_u32 s3, s3, 0x2000')
            for q in range(2):
                b, d = O0 + (ds * 2 + q) * 8, CXL + (ds * 2 + q) * 4
                L += ['v_pk_mul_f32 v[%d:%d], v[%d:%d], v[%d:%d] op_sel_hi:[1,0]' % (b + 2 * e, b + 2 * e + 1, b + 2 * e, b + 2 * e + 1, L0 + 4 * q, L0 + 4 * q + 1) for e in range(4)]
                L += ['v_cvt_pk_bf16_f32 v%d, v%d, v%d' % (d + e, b + 2 * e, b + 2 * e + 1) for e in range(4)]
                L += ['buffer_store_dwordx4 v[%d:%d], v%d, %s, s3 offen offset:%d sc1' % (d, d + 3, vA[ds & 1], s4(S_ST), q * 1024)]
        return L

    def slow2(self, name):
        lb = lambda s: self.lab(name + s)
        hi = name == 'slowH'
        C = 144
        SS, PP, M = (160, 8, 16) if hi else (96, 128, 136)
        Q = (lambda q, ds: ar(QP + (q * 4 + ds) * 4, 4)) if hi else (lambda q, ds: vr(QL + (q * 4 + ds) * 4, 4))
        sO, sJ = sSO, sSpin
        B = [lb('') + ':', 's_waitcnt vmcnt(0) lgkmcnt(0)', 's_lshl_b32 s%d, s%d, 2' % (sRho, sI)]
        if hi: B += ['s_sub_u32 s%d, 60, s%d' % (sRho, sRho), 's_xor_b32 s3, s%d, 1' % sW, 's_add_u32 s%d, s%d, s3' % (sRho, sRho)]
        else: B += ['s_add_u32 s%d, s%d, s%d' % (sRho, sRho, sW)]
        ld = ['buffer_load_dwordx4 %s, v%d, %s, s%d offen offset:%d sc1' % (ar(VF + 4 * f, 4), vA[f >> 2], s4(S_A), sO, (f & 3) * 1024) for f in range(8)]
        def head(n):
            return ['s_mov_b32 s%d, 0' % sJ, lb(n) + ':', 's_lshr_b32 s%d, s%d, 1' % (sO, sJ), 's_lshl_b32 s%d, s%d, 15' % (sO, sO), 's_and_b32 s3, s%d, 1' % sJ,
                    's_lshl_b32 s3, s3, 13', 's_add_u32 s%d, s%d, s3' % (sO, sO)] + ld
        def mask(n):
            return ['s_cmp_eq_u32 s%d, s%d' % (sJ, sRho), 's_cbranch_scc0 %s' % lb(n)] + self.tri(C) + [lb(n) + ':', 's_nop 1']
        qk = []
        for ds in range(4):
            for kb in range(2):
                for q in range(2):
                    d = vr(SS + (q * 2 + kb) * 4, 4)
                    qk.append('%s %s, %s, %s, %s' % (MF, d, ar(VF + (kb * 4 + ds) * 4, 4), Q(q, ds), vr(C + (q * 2 + kb) * 4, 4) if ds == 0 else d))
        def tail(n):
            return ['s_add_u32 s%d, s%d, 1' % (sJ, sJ), 's_cmp_le_u32 s%d, s%d' % (sJ, sRho), 's_nop 7', 's_cbranch_scc1 %s' % lb(n)]
        B += ['s_nop 7', 's_nop 7']
        B += ['v_mov_b32 v%d, 0' % (C + e) for e in range(16)] + ['v_mov_b32 v%d, v%d' % (M + q, vBig) for q in range(2)]
        B += head('1') + mask('1m') + qk
        for q in range(2):
            B += ['v_max3_f32 v%d, v%d, v%d, v%d' % (M + q, M + q, SS + 8 * q + 2 * e, SS + 8 * q + 2 * e + 1) for e in range(4)]
        B += tail('1')
        for q in range(2):
            for sw in ('16', '32'):
                B += ['v_mov_b32 v%d, v%d' % (M + 2, M + q), 'v_permlane%s_swap_b32 v%d, v%d' % (sw, M + q, M + 2), 'v_max_f32 v%d, v%d, v%d' % (M + q, M + q, M + 2)]
            B += ['v_sub_f32 v%d, 0, v%d' % (C + 8 * q + e, M + q) for e in range(8)]
        B += self.zero0()
        if hi:
            B += ['ds_write_b128 v%d, v[%d:%d] offset:%d' % (vMR, O0, O0 + 3, t * 1024) for t in range(16)] + ['s_waitcnt lgkmcnt(0)']
        B += head('2') + mask('2m') + qk + ['s_add_u32 s%d, s%d, 0x4000' % (sO, sO)]
        B += ['v_exp_f32 v%d, v%d' % (SS + e, SS + e) for e in range(16)] + ld
        B += ['v_cvt_pk_bf16_f32 v%d, v%d, v%d' % (PP + e, SS + 2 * e, SS + 2 * e + 1) for e in range(8)]
        B += [l.replace(vr(PB, 4), vr(PP, 4)).replace(vr(PB + 4, 4), vr(PP + 4, 4)) for l in self.pv(qs=(0, 1))]
        B += tail('2') + ['s_nop 7', 's_branch %s' % lb('r')]
        self.ool.append(B)

    def attention(self, st, stats, lazy):
        out = []
        lb = self.lab
        def run(lines, st): return process(lines, st, stats=stats, lazy=lazy)
        def ok(o, *sts):
            for s in sts:
                p = process(o, s, pad=False)[0]
                if p != o:
                    k = next(k for k in range(len(o)) if p[k] != o[k])
                    print('\n'.join(p[max(0, k - 30):k + 5])); print(s.lg, s.vm)
                assert p == o
                assert [t for t, _ in s.vm][-2:] == [None] * 2, s.vm
        def loop(lines, st):
            o1, st1 = process(lines, st, lazy=lazy); o2, st2 = run(lines, st1)
            assert st1.sig() == st2.sig()
            ok(o2, st, st2)
            return o2, st2
        lastD = ['s_mov_b32 s%d, 0x10000' % sTI, 's_mov_b32 s%d, s%d' % (sX, sXe)]
        o, st = run(self.attn_pro() + self.stamp(16) + self.body2('D', 'first') +
                    ['s_cmp_eq_u32 s%d, 0' % sI] + [l.replace('s_mov', 's_cmov') for l in lastD] + self.body2('D', 'second') +
                    ['s_waitcnt lgkmcnt(0)', 's_sub_u32 s%d, s%d, 2' % (sN, sN), 's_cbranch_scc1 %s' % lb('entS')], st); out += o
        st1 = st
        oD, st = loop([lb('topD') + ':'] + self.body2('D', 'loop'), st); out += oD
        post = ['s_cmp_eq_u32 s%d, 0x8000' % sTI] + lastD + ['s_mov_b32 s%d, 0' % sN, 's_cbranch_scc1 %s' % lb('topD')]
        o, st = run(post, st); out += o
        ok(oD, st)
        ent = [lb('entS') + ':'] + self.stamp(17) + ['s_mov_b32 s%d, 1' % sEv, 's_lshl_b32 s3, s%d, 1' % sI, 's_sub_u32 s%d, 13, s3' % sN, 's_cbranch_scc1 %s' % lb('postS')]
        o, st = run(ent, st); out += o
        st1 = process(o, st1)[1]
        stD = st
        oS, st = loop([lb('topS') + ':'] + self.body2('S', 'loop'), st); out += oS
        ok(oS, st1)
        post = [lb('postS') + ':', 's_or_b32 s%d, s%d, 2' % (sEv, sEv), 's_cmp_eq_u32 s%d, 2' % sW, 's_cbranch_scc0 %s' % lb('hs0'), lb('topL') + ':']
        self.ool.append([lb('hs0') + ':',
                         's_cmp_eq_u32 s%d, 1' % sW, 's_cbranch_scc1 %s' % lb('hs0a'),
                         's_cmp_eq_u32 s%d, 3' % sW, 's_cbranch_scc1 %s' % lb('hs0b')] + self.tri(CG[1]) + ['s_nop 0', 's_branch %s' % lb('topL'),
                         lb('hs0a') + ':'] + self.allm(CG[1]) + self.allm(CP) + ['s_nop 0', 's_branch %s' % lb('topL'),
                         lb('hs0b') + ':'] + self.tri(CP) + ['s_nop 0', 's_branch %s' % lb('topL')])
        self.ool.append([lb('hmid') + ':', 's_bitcmp1_b32 s%d, 0' % sEv, 's_cbranch_scc0 %s' % lb('hm1'), 's_nop 7'] + self.finalizeL() + self.zero0() +
                        ['s_bitcmp1_b32 s%d, 1' % sEv, 's_mov_b32 s%d, 0' % sEv, 's_cbranch_scc0 %s' % lb('hmidr'),
                         lb('hm1') + ':', 's_cmp_eq_u32 s%d, 0' % sW, 's_cbranch_scc1 %s' % lb('hm2'),
                         's_cmp_eq_u32 s%d, 3' % sW, 's_cbranch_scc0 %s' % lb('hmidr2')] + self.tri(CG[1]) + self.allm(CP) + ['s_nop 0', 's_branch %s' % lb('hmidr2'),
                         lb('hm2') + ':'] + self.allm(CG[1]) + self.tri(CP) + ['s_nop 0', 's_branch %s' % lb('hmidr2')])
        self.slow2('slowL'); self.slow2('slowH')
        o, st = run(post + self.finish(self.body2('S', 'last')), st); out += o
        if not self.opt.get('abl'): ok(o, stD)
        return out, st

    def areg(self, part, hr, ds, q):
        f = ds * 2 + q
        if hr == 0: return vr(CXL + 4 * f, 4) if part == 0 else vr(O0 + 8 * f, 4)
        if part == 0: return ar([160, 64, 96][hr - 1] + 4 * f, 4)
        return ar([192, 224][hr - 1] + 4 * f, 4) if hr < 3 else vr(O0 + 4 + 8 * f, 4)
    def freg(self, k):
        return ar(64 + 4 * k, 4) if k < 16 else ar(160 + 4 * (k - 16), 4) if k < 24 else vr(O0 + 8 * (k - 24), 4)

    def finish(self, S):
        o = self.opt
        E = S.n()
        sp = o.get('wsp', 5.5)
        for l in self.pv(qs=(2, 3)) + self.pv(qs=(0, 1)):
            for q in range(4): l = l.replace(vr(PB + 4 * q, 4), vr(P2 + 4 * q, 4))
            for db in range(8): l = l.replace(', ' + ar(VF + 4 * db, 4) + ', v', ', ' + ar(V2 + 4 * db, 4) + ', v')
            S.add(l)
        allk = lambda *h: [(hr, ds) for hr in h for ds in range(4)]
        mix = o.get('mix', 'HLLHLLHH')
        seg = [('k', 0, allk(0))] + [('k', int(c == 'H'), [(int(c == 'L'), mix[:k].count(c))]) for k, c in enumerate(mix)]
        seg += [('c', 0, allk(2, 3))] if o.get('lc', 1) == 2 else [('k', 0, allk(2)), ('c', 0, allk(3))]
        hk = o.get('hk', 8)
        seg += [('k', 1, allk(1, 2, 3)[:hk], (0, 1, 2)), ('c', 1, allk(1, 2, 3)[hk:], (0, 1, 2)), ('c', 1, allk(1, 2, 3), (3, 4))]
        uses = []
        needA = {}
        lastA = {}
        done = {}
        seen = set()
        for kind, part, ks, *cs in seg:
            cs = cs[0] if cs else range(5)
            order = [(hr, ds, n) for hr, ds in ks for c in cs for n in (c, 5 + c)] if kind == 'k' else [(hr, ds, n) for c in cs for hr, ds in ks for n in (c, 5 + c)]
            for hr, ds, n in order:
                u = len(uses)
                uses.append((S.n(), hr, ds, n))
                needA.setdefault((part, hr, ds), S.n())
                for q in ((0, 1) if u % 2 == 0 else (1, 0)):
                    d = vr((ACCH if part else ACCL)[n] + 4 * q, 4)
                    S.add('%s %s, %s, %s, %s' % (MF, d, ar(4 * (u % NRING), 4), self.areg(part, hr, ds, q), d if (part, n) in seen else '0'))
                seen.add((part, n))
                done[(part, n)] = lastA[(part, hr, ds)] = S.n() - 1
        assert len(uses) == 320
        F0 = S.n()
        facc = lambda j, n: ar(FACC + 4 * n, 4) if j == 0 else vr(64 + (j - 1) * 20 + 4 * n, 4)
        fdone = {}
        for n in range(5):
            for t in range(3):
                for j in range(4):
                    d = facc(j, n)
                    fdone[(j, n)] = S.n()
                    S.add('%s %s, %s, %s, %s' % (MF, d, self.freg(9 * t + 4 + n), self.freg(9 * t + j), '0' if t == 0 and j else d))
        bar = lambda g, *tags: S.at(g, [('@vmwait', t) for t in tags] + ['s_waitcnt lgkmcnt(0)', 's_barrier'])
        LA = o.get('wla', 16)
        B1 = E - 1
        bar(B1, 'wo0'); S.load[B1] = 8
        first = lambda p: min(g for g, hr, ds, n in uses if p(hr))
        B3, B4a, B4 = [first(lambda h: h == k) - LA - 1 for k in (1, 2, 3)]
        if o.get('lc', 1) == 2: B4 = B4a
        else: S.at(B4a, [('@vmwait', 'wo2'), 's_barrier']); S.load[B4a] = 8
        S.at(B4, [('@vmwait', 'wo3'), 's_barrier']); S.load[B4] = 8
        g6 = E + o.get('g6', 0)
        touch = lambda s: ['buffer_load_dword a%d, v%d, %s, s%d offen sc1' % (135, vTC, s4(S_ST), s)] if o.get('touch', 1) else []
        S.at(g6, [('@vmwait', 'pre')] + self.flag(6))
        wr = []
        gw = E + 6
        for db in range(8):
            for q in range(2):
                t = (db >> 1) * 4 + q * 2 + (db & 1)
                wr.append((max(int(gw), E + 2 + 2 * db + 4), 'ds_write_b128 v%d, %s offset:%d' % (vMW, ar(O1 + 4 * t, 4), t * 1024)))
                gw += o.get('msp', 3.5)
        gmw = S.flow(wr, E + 4)
        gt6 = S.flow(touch(sCtL) + [(E + 9, 'ds_write_b32 v251, a%d offset:3072' % L1), (E + 19, 'ds_write_b32 v251, a%d offset:3328' % (L1 + 4))], E + 6)
        for u, (g, hr, ds, n) in enumerate(uses):
            v, off = self.wo_lds(hr, ds, n)
            S.at(g - LA, 'ds_read_b128 %s, v%d offset:%d' % (ar(4 * (u % NRING), 4), v, off))
        ex = lambda q: ['v_exp_f32 v%d, v%d' % (SB[1] + 8 * q + e, SB[1] + 8 * q + e) for e in range(8)]
        cv = lambda q: ['v_cvt_pk_bf16_f32 v%d, v%d, v%d' % (P2 + e, SB[1] + 2 * e, SB[1] + 2 * e + 1) for e in range(4 * q, 4 * q + 4)]
        g = S.flow(ex(2)[:4] + ex(3) + ex(2)[4:] + cv(3) + cv(2), E - 36 - 3)
        assert g < E - 1, g
        ad = ['v_add_u32 v%d, 0x10000, v%d' % (vW1, vA[0]), 'v_add_u32 v%d, 0x20000, v%d' % (vW2, vA[0])]
        pa = ['s_andn2_b32 s3, s2, 24', 's_lshl_b32 s3, s3, 5', 's_add_u32 s3, s3, s%d' % sW, 's_lshl_b32 s3, s3, 2', 's_add_u32 s3, s3, 16',
              'v_and_b32 v%d, 3, v1' % vPA, 'v_lshl_add_u32 v%d, v%d, 10, s3' % (vPA, vPA)]
        g = S.flow(ex(0) + cv(0) + ex(1) + cv(1), g)
        assert g < E + 18, g - E
        gp = S.flow(ad + tmp(pa, 0), E - 36)
        assert gp < E + 36 - LA - 1, gp - E
        g = gmw
        B2 = max(g + o.get('b2d', 8), E + 37)
        while S.load.get(B2, 0): B2 += 1
        bar(B2, 'wo1')
        assert gt6 <= B2 + 6 and B2 < B3
        S.at(B2, ['ds_read_b32 v%d, v250 offset:%d' % (L0 + 1 + 4 * q, 3072 + q * 256) for q in range(2)])
        g = B2 + 6
        S.at(g, ['v_add_f32 v%d, v%d, v%d' % (L0 + 4 * q, L0 + 4 * q, L0 + 1 + 4 * q) for q in range(2)] + self.check('slowH', L0 + 2))
        X = lambda f: 240 + 8 * (f & 1)
        rdx = lambda f: ['ds_read_b128 v[%d:%d], v%d offset:%d' % (X(f) + 4 * k, X(f) + 4 * k + 3, vMR, (2 * f + k) * 1024) for k in range(2)]
        vTC2 = vMW
        g = S.flow(['v_mov_b32 v%d, v%d' % (vTC2, vTC)] + rdx(1) + ['v_rcp_f32 v%d, v%d' % (vR[q], L0 + 4 * q) for q in range(2)] + rdx(0), g + 1)
        g += 4
        freed = {}
        cap = o.get('fcap', 8)
        for f in (1, 0, 3, 2, 5, 4, 7, 6):
            b, ds, q = O0 + 8 * f, f >> 1, f & 1
            g = S.flow(['v_add_f32 v%d, v%d, v%d' % (b + e, b + e, X(f) + e) for e in range(8)], g, cap=cap)
            freed[f] = g
            it = (rdx(f + 2) if f < 6 else []) + ['v_mul_f32 v%d, v%d, v%d' % (b + e, b + e, vR[q]) for e in range(8)]
            it += ['v_cvt_pk_bf16_f32 v%d, v%d, v%d' % (b + e, b + 2 * e, b + 2 * e + 1) for e in range(4)]
            g = S.flow(it, g, cap=cap)
            assert g < needA[(1, 0, ds)] - 1, (f, g, needA[(1, 0, ds)])
            if f == 5: g = S.flow(['s_add_u32 s%d, s%d, 0x2000' % (sT2, sCtH)], g, cap=cap)
            g = S.flow([('buffer_store_dwordx4 v[%d:%d], v%d, %s, s%d offen offset:%d sc1' % (b, b + 3, vA[ds & 1], s4(S_ST), sCtH if ds < 2 else sT2, q * 1024), 'cx')], g, cap=cap)
        gfin = g
        def aloads(part):
            it = []
            for hr in range(1, 4):
                for ds in range(4):
                    if ds == 0: it.append('s_add_u32 s%d, s%d, s%d' % (sT0, sCtH if part else sCtL, sDH[hr]))
                    if ds == 2: it.append('s_add_u32 s%d, s%d, 0x2000' % (sT0, sT0))
                    it += ['buffer_load_dwordx4 %s, v%d, %s, s%d offen offset:%d sc1' % (self.areg(part, hr, ds, q), vA[ds & 1], s4(S_ST), sT0, q * 1024) for q in range(2)]
            return it
        def chk(gs, part):
            sl = [needA[(part, 1 + k // 8, (k >> 1) & 3)] - g for k, g in enumerate(gs)]
            if o.get('verbose'): print('A slack', part, sl)
            assert min(sl) > 0
        c6 = E + o.get('c6', 60)
        assert gp < c6 - o.get('pd', 30) and c6 >= E + 36
        S.at(c6 - o.get('pd', 30), self.poll_issue())
        S.at(c6, self.stamp(19) + self.hop('c6') + self.poll_check(6) + self.stamp(20))
        al = aloads(0)
        w2, w3 = [], []
        for a in range(16):
            hr, n = (2, 4 + a) if a < 6 else (3, a - 6)
            dm = w2 if a < 6 else w3
            if n % 4 == 0: dm.append('s_add_u32 m0, s%d, %d' % (sM2, a * 1024))
            dm.append((freed[a >> 1] + 1, (self.wo_dma(hr, n), 'wo%d' % hr)))
        q = al[:10] + [(B2 + 8, 's_mov_b32 m0, s%d' % sK2), (self.wo_dma(2, 3), 'wo2')] + al[10:20] + w2 + w3 + al[20:]
        gs = self.place_vm2(S, q, c6 + 1, sp)
        chk(gs[:8] + gs[9:17] + gs[33:], 0)
        if o.get('verbose'): print('E', E, 'B2', B2 - E, 'fin end', gfin - E, 'c6', c6 - E, 'vm', [x - E for x in gs], 'B4', B4a - E, B4 - E, 'F0', F0 - E)
        assert gs[22] < B4a and gs[32] < B4
        gAL, gW3 = gs[-1], gs[32]
        S.flow(tmp(self.p_setup(), 4), gfin + 1)
        g7 = gfin + o.get('g7', 75)
        S.flow([[('@vmwait', 'cx')] + self.flag(7)] + [l.replace('v%d,' % vTC, 'v%d,' % vTC2) for l in touch(sCtH)], g7)
        c7 = E + o.get('c7', 350)
        assert c7 > gAL
        assert g7 < c7 - o.get('pd', 30)
        S.at(c7 - o.get('pd', 30), self.poll_issue())
        S.at(c7, self.stamp(21) + self.hop('c7') + self.poll_check(7) + self.stamp(22))
        gs = self.place_vm2(S, aloads(1), c7 + 1, sp)
        chk(gs, 1)
        gAH = gs[-1]
        gst = {}
        for part in range(2):
            g = 0
            for n in sorted(range(10), key=lambda n: done[(part, n)]):
                b = (ACCH if part else ACCL)[n]
                t = part + (part and n % 5 > 2)
                g = S.flow(['v_cvt_pk_bf16_f32 v%d, v%d, v%d' % (b + e, b + 2 * e, b + 2 * e + 1) for e in range(4)] +
                           ['s_add_u32 s%d, s%d, %d' % (sT1, sP0, (n // 5) * 81920 + (part * 5 + n % 5) * 8192),
                            ('buffer_store_dwordx4 v[%d:%d], v%d, %s, s%d offen sc1' % (b, b + 3, vA[0], s4(S_P), sT1), 'p%d' % t)], max(g, done[(part, n)] + 4))
                gst[t] = g
        assert gst[0] < min(done[(1, n)] for n in range(10))
        g8 = S.flow([[('@vmwait', 'p0')] + self.flag(8)], gst[0] + o.get('g8', 80))
        g9 = S.flow([[('@vmwait', 'p1')] + self.flag(9)], gst[1] + o.get('g9', 75))
        sJ = sFW
        su = ['s_mul_i32 s%d, s%d, 3' % (sFM, sW), 's_add_u32 s%d, s%d, 42' % (sFM, sFM)]
        for j in range(4):
            su += ['s_add_u32 s3, s%d, %d' % (sW, j), 's_bitcmp1_b32 s3, 1', 's_cselect_b32 s%d, s%d, s%d' % (sJ[j], sRH, sRL), 's_and_b32 s3, s3, 1',
                   's_add_u32 s3, s3, s%d' % sJ[j], 's_mul_i32 s3, s3, 54', 's_add_u32 s3, s3, s%d' % sFM, 's_lshl_b32 s%d, s3, 10' % sJ[j]]
        su += ['s_lshl_b32 s%d, s%d, 3' % (sFM, sFM), 's_add_u32 s%d, s%d, s%d' % (sFM, sFM, sCB), 's_mul_i32 s%d, s%d, 5120' % (sFM, sFM)]
        g = S.flow(tmp(self.keep_scc(su), 1), c7 + 2)
        it = []
        for t in range(3):
            it += ['buffer_load_dwordx4 %s, v%d, %s, s%d offen offset:%d sc1' % (self.freg(9 * t + j), vA[0], s4(S_H), sJ[j], t * 1024) for j in range(4)]
            it += ['buffer_load_dwordx4 %s, v%d, %s, s%d offen offset:%d sc1' % (self.freg(9 * t + 4 + n), vA[n >> 2], s4(S_WD), sFM, (n & 3) * 1024) for n in range(5)]
            if t < 2: it.append('s_add_u32 s%d, s%d, 40960' % (sFM, sFM))
        gl = max(max(v for (p, hr, ds), v in lastA.items() if p == 0 or hr == 0) + 1, gAH + sp, g + 1)
        gs = self.place_vm2(S, it, gl, sp)
        if o.get('verbose'): print('g7', g7 - E, 'c7', c7 - E, 'AH end', gAH - E, 'pst', gst[0] - E, gst[1] - E, 'fl', gs[0] - E, gs[-1] - E)
        assert gs[-1] < F0 + 20
        gF = gs[-1]
        sPA, sPB, sOA, sOB = sWO
        vO, vO2 = 6, 24
        su = ['s_mul_i32 s%d, s2, 10' % sPB, 's_add_u32 s%d, s%d, s%d' % (sPA, sPB, sW), 's_lshl_b32 s%d, s%d, 13' % (sPA, sPA),
              's_mul_i32 s3, s%d, 5' % sCB, 's_add_u32 s3, s3, s%d' % sW, 's_lshl_b32 s3, s3, 5', 's_mul_i32 s%d, s%d, 20480' % (sOA, sRL), 's_mul_i32 s%d, s%d, 20480' % (sOB, sRH),
              's_add_u32 s%d, s%d, s3' % (sOA, sOA), 's_add_u32 s%d, s%d, s3' % (sOB, sOB), 's_add_u32 s3, s%d, 32' % sOA,
              's_cmp_eq_u32 s%d, 3' % sW, 's_cselect_b32 s%d, s3, s%d' % (sOB, sOB), 's_cselect_b32 s3, 1, 5', 's_lshl_b32 s3, s3, 13', 's_add_u32 s%d, s%d, s3' % (sPB, sPA),
              'v_and_b32 v%d, 15, v1' % vO, 'v_mul_u32_u24 v%d, 1280, v%d' % (vO, vO), 'v_lshrrev_b32 v%d, 4, v1' % vO2, 'v_lshl_add_u32 v%d, v%d, 3, v%d' % (vO, vO2, vO),
              'v_add_u32 v%d, 20480, v%d' % (vO2, vO)]
        su += srd(S_X, pX, pX + 1, 2048 * 1280) + srd(S_A, pOUT, pOUT + 1, 2048 * 1280)
        g = S.flow(tmp(self.keep_scc(su), 2), gW3 + 1)
        XR = 240
        xl = ['buffer_load_dwordx2 v[%d:%d], v%d, %s, s%d offen offset:%d' % (XR + 4 * k + 2 * q, XR + 4 * k + 2 * q + 1, [vO, vO2][q], s4(S_X), [sOA, sOB, sOB][k], 96 * (k == 2)) for k in range(3) for q in range(2)]
        gs = self.place_vm2(S, xl, max(g + 1, gAL + 4), 4)
        if o.get('verbose'): print('x loads', gs[0] - E, gs[-1] - E)
        SEL = 140
        su = ['s_andn2_b32 s3, s2, 7', 's_lshl_b32 s3, s3, 7', 's_and_b32 s%d, s2, 6' % sT2, 's_lshl_b32 s%d, s%d, 1' % (sT2, sT2), 's_add_u32 s3, s3, s%d' % sT2, 's_add_u32 s3, s3, 16',
              'v_and_b32 v%d, 7, v1' % vPA, 'v_lshl_add_u32 v%d, v%d, 7, s3' % (vPA, vPA)]
        g = S.flow(tmp(su, 5), c7 + 2)
        pd = o.get('pd', 30)
        c8 = max(gF + 4, g8 + 30 + pd)
        assert g < c8 - pd
        pregs = {0: [124, 128, 132] + [O0 + 8 * f for f in range(3, 8)], 1: [32 + 4 * p for p in range(6)] + [152, 156], 2: [192 + 4 * p for p in range(8)]}
        prn = lambda k, p: (ar if k == 2 else vr)(pregs[k][p], 4)
        pl = lambda k: ['buffer_load_dwordx4 %s, v%d, %s, s%d offen offset:%d sc1' % (prn(k, p), vA[p >> 2], s4(S_P), [sPA, sPB, sPA][k], (p & 3) * 1024) for p in range(8)]
        S.at(c8 - pd, self.poll_issue())
        S.at(c8, self.stamp(23) + self.hop('c8') + self.poll_check(8) + self.stamp(24))
        gs = self.place_vm2(S, pl(0), c8 + 1, sp)
        c9 = g9 + o.get('d9', 30) + pd
        assert c9 < S.n() - 2 and c9 - pd > c8, (c9 - F0, c8 - F0)
        S.at(c9 - pd, self.poll_issue())
        S.at(c9, self.stamp(25) + self.hop('c9') + self.poll_check(9) + self.stamp(26))
        n_in = min(8, (S.n() - 2 - c9) // 3)
        self.place_vm2(S, pl(1)[:n_in], c9 + 1, 3)
        S.at(F0 + 1, ['s_barrier'])
        vFJ = [136, 137, 138, 139]
        su = []
        for j in range(4):
            su += ['s_add_u32 s3, s%d, %d' % (sW, j), 's_and_b32 s3, s3, 3', 's_mul_i32 s3, s3, 20', 's_add_u32 s3, s3, s%d' % sW, 's_lshl_b32 s3, s3, 10', 'v_add_u32 v%d, s3, v%d' % (vFJ[j], vA[0])]
        su += ['s_lshl_b32 s3, s%d, 12' % sW, 'v_add_u32 v25, s3, v%d' % vA[0], 's_cmp_eq_u32 s%d, 3' % sW, 's_cselect_b32 s3, 4, 40', 's_lshl_b32 s3, s3, 10', 'v_add_u32 v252, s3, v25']
        X0 = SEL + 2
        su += ['v_lshrrev_b32 v%d, 4, v1' % SEL, 'v_bfe_u32 v%d, v1, 1, 3' % (SEL + 1), 'v_lshlrev_b32 v%d, 1, v%d' % (SEL, SEL), 'v_sub_u32 v%d, v%d, v%d' % (SEL + 1, SEL + 1, SEL),
               'v_and_b32 v%d, 1, v1' % SEL, 'v_lshlrev_b32 v%d, 4, v%d' % (SEL, SEL), 's_movk_i32 s3, 0x3f80', 'v_lshlrev_b32 v%d, v%d, s3' % (SEL, SEL),
               ['v_cmp_eq_u32 vcc, 0, v%d' % (SEL + 1), 'v_cndmask_b32 v%d, 0, v%d, vcc' % (X0, SEL)], ['v_cmp_eq_u32 vcc, 1, v%d' % (SEL + 1), 'v_cndmask_b32 v%d, 0, v%d, vcc' % (X0 + 1, SEL)],
               'v_mov_b64 v[%d:%d], 0' % (SEL, SEL + 1)]
        su = [l for x in su for l in ([x] if isinstance(x, list) else [x])]
        k = next(k for k, l in enumerate(su) if isinstance(l, list))
        g = S.flow(tmp(self.keep_scc(su[:k]) + su[k:], 3), g8 + 1)
        assert g < F0 + 12, g - F0
        fw = sorted(fdone, key=lambda k: fdone[k])
        wl = []
        for k in fw: wl.append((max(fdone[k] + 4, wl[-1][0] + 3 if wl else 0), 'ds_write_b128 v%d, %s offset:%d' % (vFJ[k[0]], facc(*k), k[1] * 4096)))
        nin = sum(1 for e, _ in wl if e < S.n())
        S.flow(wl[:nin], F0 + 2, gmax=S.n() - 1)
        for k, gx in enumerate(o.get('xst', [])): S.at(E + gx, self.stamp([5, 6, 7, 8, 9, 10, 11, 12, 18][k]))
        if o.get('verbose'): print('g8', g8 - E, 'g9', g9 - E, 'c8', c8 - F0, 'c9', c9 - F0, 'nin', n_in, nin, 'over', [(k - E, v) for k, v in sorted(S.load.items()) if v > 8 and k >= E - 40])
        L = S.lines() + pl(1)[n_in:] + [l for _, l in wl[nin:]] + self.stamp(27)
        fl = [('@vmwait', 'p2')] + self.flag(10)
        L += ['s_add_u32 s%d, s%d, %d' % (sPA, sPB, 3 * 8192), 's_mov_b32 s3, 0xbfb8aa3b', 's_waitcnt lgkmcnt(0)', 's_barrier']
        FR = lambda k, q: [64, 80, 96, 160, 176, 8][2 * k + q]
        rd = lambda k: ['ds_read_b128 v[%d:%d], v%d offset:%d' % (FR(k, q) + 4 * ww, FR(k, q) + 4 * ww + 3, 252 if k else 25, 12288 * (k == 2) + q * 20480 + ww * 1024) for q in range(2) for ww in range(4)]
        pk = lambda op, d, x, y: 'v_pk_%s_f32 v[%d:%d], %s, v[%d:%d]' % (op, d, d + 1, x if isinstance(x, str) else 'v[%d:%d]' % (x, x + 1), y, y + 1)
        def silu(k):
            R = []
            for q in range(2):
                b = FR(k, q)
                for x, y in ((0, 4), (8, 12), (0, 8)): R += [pk('add', b + x + e, b + x + e, b + y + e) for e in (0, 2)]
                R += ['v_mul_f32 v%d, s3, v%d' % (b + 4 + e, b + e) for e in range(4)]
                R += ['v_exp_f32 v%d, v%d' % (b + 4 + e, b + 4 + e) for e in range(4)]
                R += ['v_lshlrev_b32 v%d, 16, v%d' % (b + 8 + 2 * e, XR + 4 * k + 2 * q + e) for e in range(2)]
                R += ['v_add_f32 v%d, 1.0, v%d' % (b + 4 + e, b + 4 + e) for e in range(4)]
                R += ['v_rcp_f32 v%d, v%d' % (b + 4 + e, b + 4 + e) for e in range(4)]
                R += ['v_and_b32 v%d, s%d, v%d' % (b + 9 + 2 * e, sMask, XR + 4 * k + 2 * q + e) for e in range(2)]
                R += [pk('mul', b + e, b + e, b + 4 + e) for e in (0, 2)]
            return R
        SUM = lambda k, q: [112, 116, 120, 56, 60, 148][2 * k + q]
        sums = lambda k: ['%s %s, %s, %s, %s' % (MF, vr(SUM(k, q), 4), vr(SEL + 2 - 2 * q, 4), prn(k, p), vr(SUM(k, q), 4) if p else '0') for p in range(8) for q in range(2)]
        def outs(k):
            R = []
            for q in range(2):
                b, d = FR(k, q), SUM(k, q)
                R += ['v_pk_fma_f32 v[%d:%d], v[%d:%d], v[%d:%d], v[%d:%d]' % (d + e, d + e + 1, d + e, d + e + 1, b + e, b + e + 1, b + 8 + e, b + 9 + e) for e in (0, 2)]
            for q in range(2):
                d = SUM(k, q)
                R += ['v_cvt_pk_bf16_f32 v%d, v%d, v%d' % (d + e, d + 2 * e, d + 2 * e + 1) for e in range(2)]
                R += ['buffer_store_dwordx2 v[%d:%d], v%d, %s, s%d offen offset:%d%s' % (d, d + 1, [vO, vO2][q], s4(S_A), [sOA, sOB, sOB][k], 96 * (k == 2), o.get('outfl', ''))]
            return R
        def mixin(a, m):
            R = []
            for k, l in enumerate(a):
                R.append(l)
                if k % 3 == 2 and m: R.append(m.pop(0))
            return R + m
        L += rd(0) + rd(1) + fl + self.stamp(28) + ['v_mov_b64 v[%d:%d], 0' % (SEL + 4, SEL + 5)] + rd(2)
        w = mixin(silu(0), sums(0)) + outs(0) + mixin(silu(1), sums(1)) + outs(1)
        pi = o.get('pi', 60)
        L += w[:pi] + self.poll_issue() + w[pi:]
        L += ['s_cmp_lt_u32 s%d, 2' % sW, 's_cbranch_scc0 %s' % self.lab('fin')] + self.stamp(29) + self.poll_check(10) + self.stamp(30)
        L += pl(2) + silu(2) + sums(2) + outs(2) + [self.lab('fin') + ':']
        pats = {'f': r'load_dwordx4.*(%s|%s)' % (re.escape(s4(S_H)), re.escape(s4(S_WD))), 'A': r'load_dwordx4.*' + re.escape(s4(S_ST)), 'ps': r'store.*' + re.escape(s4(S_P)),
                'pl': r'load.*' + re.escape(s4(S_P)), 'W': r'load.*' + re.escape(s4(S_WO)), 'cs': r'store.*' + re.escape(s4(S_ST)), 'x': r'load.*' + re.escape(s4(S_X))}
        for a in o.get('abl', []): L = [l for l in L if not re.search(pats[a], l[0] if isinstance(l, tuple) else l)]
        return L

    def place_vm2(self, S, lines, g0, sp):
        vg = self.opt.get('vgap', 2)
        def isvm(l):
            t = l[0] if isinstance(l, tuple) else l
            return t.startswith('buffer_')
        def near(g): return any(isvm(l) for y in range(g - vg + 1, g + vg) for l in S.fill.get(y, []))
        g, out, pend, fr = int(g0), [], [], 0
        for l in lines:
            if isinstance(l, tuple) and isinstance(l[0], int):
                g = max(g, l[0]); l = l[1]
            if not isvm(l):
                pend.append(l); continue
            k = 0
            while near(g) and k < 6: g += 1; k += 1
            if pend:
                S.at(g - 1, pend); pend = []
            S.at(g, l)
            out.append(g); fr += sp - int(sp); g += int(sp) + int(fr); fr -= int(fr)
        assert not pend
        return out

    def build(self, stats=None):
        o = self.opt
        lazy = o.get('lazy', 8)
        L = self.prologue()
        pre, S = self.gemms()
        L += self.hop('p') + self.stamp(12)
        L += [('@vmwait', 'dma0'), 's_barrier'] + self.stamp(1) + pre
        L += S.lines()
        L += self.stamp(3)
        L += self.p2_epilogue()
        L += self.stamp(4)
        out, st = process(L, stats=stats, lazy=lazy)
        oa, st = self.attention(st, stats, lazy)
        out += oa
        L = []
        if self.SO: L += ['s_waitcnt vmcnt(0)'] + self.stamp(13) + self.stamp(15, True) + self.stamps_out()
        L += ['s_endpgm ;@stop']
        out += process(L, st, stats=stats, lazy=lazy)[0]
        for blk in self.ool:
            out += process(blk, stats=stats)[0]
        out += [self.lab('end') + ':']
        if o.get('pg'):
            import pg
            out = pg.pads(out, self.lab, sW, True)
        return out
```

```python
from asmlib import *
from fused import *
from attn import *

WS_P = 72 << 20
sFA, sFW, sFM, sWO, sRL, sRH, sCB, sP0, sDH = 34, [35, 36, 37, 38], 39, [40, 41, 42, 43], 44, 45, 46, 47, [None, 48, 49, 50]
S_H, S_WD, S_WO, S_P = S_B0, S_B1, S_B2, S_W
FACC, FA, FB = 140, 160, 172
vFW, vFR = 248, 249
V2, P2 = 160, 144
CXL = 32
ACCL = [64 + 8 * n for n in range(10)]
ACCH = [32, 40, 48, 56, 144, 152, 160, 168, 8, 16]
vW1, vW2, v8K, vMW, vMR, vR = 4, 5, 6, 7, 24, [30, 25]
NRING = 16
sM2, sK2 = sTI, sX
sU = [51, 54, 55, 62, 74, 88]
def tmp(lines, k):
    f = lambda l: [f(y) for y in l] if isinstance(l, list) else re.sub(r'\bs3\b', 's%d' % sU[k], l)
    return [f(l) for l in lines]

class KB(KA):
    H16 = True
    MAXF = 12

    def f_setup(self):
        x, jj = sT0, sT1
        L = ['s_and_b32 s%d, s2, 7' % x, 's_bfe_u32 s%d, s2, 0x20003' % jj,
             's_and_b32 s3, s2, 1', 's_lshl_b32 s%d, s%d, 1' % (sCB, jj), 's_add_u32 s%d, s%d, s3' % (sCB, sCB),
             's_and_b32 s3, s2, 6', 's_lshl_b32 s%d, s%d, 3' % (sRL, sI), 's_sub_u32 s%d, 120, s%d' % (sRH, sRL),
             's_add_u32 s%d, s%d, s3' % (sRL, sRL), 's_xor_b32 s3, s3, 2', 's_add_u32 s%d, s%d, s3' % (sRH, sRH),
             's_cmp_lt_u32 s%d, 2' % sW, 's_cselect_b32 s%d, s%d, s%d' % (sFA, sRL, sRH), 's_and_b32 s3, s%d, 1' % sW,
             's_add_u32 s%d, s%d, s3' % (sFA, sFA), 's_mul_i32 s%d, s%d, %d' % (sFA, sFA, 54 * 1024),
             's_mul_i32 s%d, s%d, 5' % (sT2, sCB), 's_lshl_b32 s3, s%d, 2' % sW, 's_add_u32 s%d, s%d, s3' % (sT2, sT2), 's_mul_i32 s%d, s%d, 52' % (sFM, sW)]
        for k in range(4):
            L += ['s_add_u32 s3, s%d, %d' % (sFM, 13 * k), 's_lshr_b32 s3, s3, 6', 's_mul_i32 s3, s3, 35', 's_add_u32 s3, s3, s%d' % sT2, 's_lshl_b32 s%d, s3, 10' % sFW[k]]
        L += ['s_lshl_b32 s%d, s%d, 12' % (sFM, sW), 's_add_u32 s%d, s%d, 0x20000' % (sFM, sFM),
              'v_mov_b32 v%d, v%d' % (vFW, vA[0]), 'v_add_u32 v%d, 0x20000, v%d' % (vFR, vA[0])]
        L += srd_off(S_H, pWS, WS_H, 128 * 54 * 1024) + srd_off(S_WD, pWS, WS_W + (5 << 20), 54 * 40960)
        return self.keep_scc(L)
    def w_setup(self):
        x, jj = sT0, sT1
        L = ['s_and_b32 s%d, s2, 7' % x, 's_bfe_u32 s%d, s2, 0x20003' % jj,
             's_lshl_b32 s%d, s%d, 2' % (sT2, sH), 's_add_u32 s%d, s%d, s%d' % (sT2, sT2, sW), 's_lshl_b32 s%d, s%d, 2' % (sT2, sT2), 's_add_u32 s%d, s%d, s%d' % (sT2, sT2, jj),
             's_mul_i32 s%d, s%d, 10240' % (sWO[0], sT2)]
        for hr in range(1, 4):
            L += ['s_add_u32 s3, s%d, %d' % (jj, hr), 's_and_b32 s3, s3, 3', 's_sub_u32 s3, s3, s%d' % jj, 's_lshl_b32 s%d, s3, 14' % sDH[hr],
                  's_mul_i32 s3, s%d, 10' % sDH[hr], 's_add_u32 s%d, s%d, s3' % (sWO[hr], sWO[0])]
        L += ['s_andn2_b32 s3, s2, 7', 's_add_u32 s3, s3, s%d' % sW, 's_add_u32 s3, s3, s%d' % sW, 's_mul_i32 s3, s3, 80', 's_add_u32 s3, s3, s%d' % x, 's_lshl_b32 s%d, s3, 10' % sP0]
        L += srd_off(S_WO, pWS, WS_W, 128 * 40960) + srd_off(S_P, pWS, WS_P, 256 * 81920)
        return self.keep_scc(L)

    def place_vm(self, S, lines, g0, sp, tag=None):
        gp, k, out = g0 - 1, 0, []
        nxt = g0
        for l in lines:
            t = l[0] if isinstance(l, tuple) else l
            if not t.startswith('buffer_'):
                while S.load.get(gp, 0) >= 8: gp += 1
                S.at(gp, l)
                nxt = max(nxt, gp + 1)
            else:
                g = nxt
                c = [y for y in range(g, g + self.opt.get('pairw', 2)) if S.load.get(y, 0) == 4]
                if c: g = c[0]
                while S.load.get(g, 0) > 4: g += 1
                S.at(g, (l, tag) if tag and not isinstance(l, tuple) else l, front=True)
                out.append(g); gp = g; nxt = g + sp
        return out

    def body2(self, mode, kind):
        o = self.opt
        first, second, last, hasf = kind == 'first', kind == 'second', kind == 'last', kind == 'loop'
        base = self.qk(mode, 0) + ([] if first else self.pv()) + self.qk(mode, 1) + self.pv(zero=first)
        b1 = 32 if first else 68
        ins = o.get('fpos', [47 + 6 * k for k in range(15)]) if hasf else []
        S = Stream(); G = {}; fg = []
        for n, l in enumerate(base):
            G[n] = S.n(); S.add(l)
            if n in ins:
                u = len(fg); fg.append(S.n())
                d = ar(FACC + 4 * (u % 5), 4)
                S.add('%s %s, %s, %s, %s' % (MF, d, ar(FB + 4 * (u % 5), 4), ar(FA + 4 * (u // 5), 4), d))
        tag = kind[0] + mode
        for b, u in ((0, 1), (b1, 0)):
            for m in range(8):
                if not (last and b): S.at(G[b + 4 * m + 3], self.kread(u, m & 1, m >> 1))
        BAR = 31 if first else o.get('abar', 39)
        tog = ['v_mov_b32 v%d, v%d' % (vV, vK), 'v_xor_b32 v%d, %s, v%d' % (vK, 's%d' % sX if mode == 'D' else '0x10000', vK)]
        if last: tog = tog[:1]
        e0 = self.exps(0)
        if first:
            S.flow(e0[:3], 28)
            S.at(31, e0[3:27] + tog + self.hookD(tag + '1') + self.hop('f') + ['s_waitcnt vmcnt(0) lgkmcnt(0)', 's_barrier'] + self.flag(3))
            e0 = e0[27:]
            fs = self.f_setup()
            g = S.flow(fs[:-8], 0)
            assert g < 28, g
        else:
            S.at(BAR, [('@vmwait', 'kv'), 's_waitcnt lgkmcnt(0)', 's_barrier'])
            S.load[BAR] = 8
            S.at(G[b1] - 2, tog)
            if mode == 'D':
                S.at(-1, self.hookD(tag + '0'))
                S.at(G[b1] - 1, self.hookD(tag + '1'))
            elif last:
                S.at(G[b1] - 1, ['s_branch %s' % self.lab('hmid'), self.lab('hmidr2') + ':'])
                S.load[G[b1] - 1] = 8
            else:
                S.at(G[b1] - 1, ['s_cmp_lg_u32 s%d, 0' % sEv, 's_cbranch_scc1 %s' % self.lab('hmid'), self.lab('hmidr') + ':'])
            c = self.cvts(1)
            vr_ = [self.vread(1, db) for db in range(8)]
            gfree = S.flow([x for k in range(8) for x in (vr_[k], c[2 * k], c[2 * k + 1])], 0)
        if hasf:
            S.at(S.n() - 1, ['s_sub_u32 s%d, s%d, 1' % (sN, sN), 's_cbranch_scc0 %s' % self.lab('top' + mode)])
            for u in range(15):
                g = BAR + 1 + u if u < 2 else fg[u - 2]
                S.at(g, 'ds_read_b128 %s, v%d offset:%d' % (ar(FB + 4 * (u % 5), 4), vFR, u * 1024))
            S.at(fg[13], 'v_xor_b32 v%d, 0x4000, v%d' % (vFR, vFR))
        fdma = ['s_mov_b32 m0, s%d' % sFM] + ['buffer_load_dwordx4 v%d, %s, s%d offen offset:%d sc1 lds' % (vFW, s4(S_WD), sFW[k], k * 1024) for k in range(4)] + \
               ['s_xor_b32 s%d, s%d, 0x4000' % (sFM, sFM), 'v_add_u32 v%d, %d, v%d' % (vFW, 3 * 40960, vFW)]
        fa = ['buffer_load_dwordx4 %s, v%d, %s, s%d offen offset:%d sc1' % (ar(FA + 4 * t, 4), vA[0], s4(S_H), sFA, t * 1024) for t in range(3)]
        sp = o['dsp'] if mode == 'S' else o.get('dspD', o['dsp'])
        vr0 = [self.vread(0, db) for db in range(8)]
        if first:
            self.place_vm(S, self.kv_dma(mode), 34, sp, 'kv')
            ge = S.flow(e0, 32)
        elif last:
            g = S.flow(self.w_setup() + ['v_add_u32 v%d, 0x2000, v%d' % (v8K, vA[0]), 's_mul_i32 s%d, s%d, 10240' % (sM, sW), 's_lshl_b32 s%d, s%d, 12' % (sK, sW)], gfree)
            assert g < BAR, g
            dm = []
            for hr in range(3):
                for n in range(10 if hr < 2 else 3):
                    if n % 4 == 0:
                        dm.append('s_add_u32 m0, s%d, %d' % (sM, 0x10000 + hr * 40960 + n * 1024) if hr < 2 else 's_add_u32 m0, s%d, %d' % (sK, 144 * 1024))
                    dm.append((self.wo_dma(hr, n), 'wo%d' % hr))
            gs = self.place_vm(S, dm, BAR + 2, sp)
            k = max(k for k, g in enumerate(gs) if g < G[b1] - 1)
            assert k < 9
            S.fill[gs[k]] = [(l[0], 'pre') if isinstance(l, tuple) and l[0].startswith('buffer_') else l for l in S.fill[gs[k]]]
            ge = S.flow(e0, G[28] + 1)
        else:
            gs = self.place_vm(S, fdma + self.kv_dma(mode), BAR + 2, sp, 'kv')
            g = gs[-1] + sp
            if second:
                S.at(BAR - 1, self.poll_check(2))
                g = o.get('gb', 124)
                S.at(g - 1, self.poll_check(3))
                S.flow(['v_accvgpr_write_b32 a%d, 0' % (FACC + e) for e in range(20)], gfree, gmax=28)
            for t in range(2):
                if hasf: g = max(g, fg[5 * t + 4])
                g = self.place_vm(S, fa[t:t + 1], g, sp)[0] + sp
            if hasf: S.flow([fa[2], 's_add_u32 s%d, s%d, 3072' % (sFA, sFA)], gfree)
            ge = S.flow(e0, G[28] + 1)
        if not last:
            g = S.flow(self.exps(1), G[b1 + 28] + 1)
            assert g < S.n(), g
        c = self.cvts(0)
        g = G[b1 + 30] if not last else G[b1 + 28]
        for l in reversed(c):
            while S.load.get(g, 0) + 4 > 8: g -= 1
            S.at(g, l, front=True)
        assert (g > ge and g >= G[b1]) or first, (g, ge)
        gl = S.flow(vr0, G[b1], gmax=G[b1 + 30])
        if first:
            pa = ['s_lshl_b32 s3, s%d, 6' % sW, 'v_add_lshl_u32 v%d, s3, v1, 7' % vPA]
            S.flow(pa + fs[-8:] + [(o.get('gp2', 90), self.poll_issue())], gl)
        if second:
            pa = ['s_lshl_b32 s3, s%d, 5' % sI, 'v_and_b32 v%d, 31, v1' % vPA, 'v_add_lshl_u32 v%d, s3, v%d, 7' % (vPA, vPA)]
            gg = S.flow(self.epoch_out() + ['s_lshl_b32 s3, s2, 5', 's_add_u32 s3, s3, s%d' % sW, 's_lshl_b32 s3, s3, 2', 's_add_u32 s3, s3, 16',
                                            'v_mov_b32 v%d, 0x7fff0000' % vFL, 'v_writelane_b32 v%d, s3, 0' % vFL] + pa, BAR + 1, gmax=80)
            gg = S.flow(self.poll_issue(), max(gg, o.get('gb', 124) - o.get('gp3', 44)), cap=12)
            assert gg < o.get('gb', 124) - 1
        if last:
            gl = S.flow(['ds_read_b128 %s, v%d offset:%d' % (ar(V2 + db * 4, 4), vV, 16384 + (8 + db) * 1024) for db in range(8)], gl, gmax=G[b1 + 31])
        if o.get('verbose'): print(tag, 'exp0 end', ge - G[b1], 'cvt start', g - G[b1], 'rd end', gl - G[b1], 'over', [(k, v) for k, v in sorted(S.load.items()) if v > 8])
        given = S if last else S.lines()
        return given

    def wo_dma(self, hr, n):
        return 'buffer_load_dwordx4 v%d, %s, s%d offen offset:%d sc1 lds' % ([vA[0], vA[1], v8K][n >> 2], s4(S_WO), sWO[hr], (n & 3) * 1024)
    def wo_lds(self, hr, ds, n):
        if hr < 2: a = 64 + (4 * hr + ds) * 10 + n
        elif hr == 2 and n < 4: a = 144 + ds * 4 + n
        elif hr == 2: a = (ds ^ 1) * 16 + n - 4
        else: a = (ds ^ 1) * 16 + 6 + n
        return [vA[0], vW1, vW2][a >> 6], (a & 63) * 1024

    def check(self, slow, t):
        return ['v_add_f32 v%d, v%d, v%d' % (t, L0, L0 + 4), 'v_cmp_gt_f32 vcc, 0x5f800000, v%d' % t, 's_cmp_eq_u64 vcc, -1',
                's_cbranch_scc0 %s' % self.lab(slow), self.lab(slow + 'r') + ':']
    def finalizeL(self):
        L = self.check('slowL', L0 + 2)
        L += ['v_rcp_f32 v%d, v%d' % (L0, L0), 'v_rcp_f32 v%d, v%d' % (L0 + 4, L0 + 4), 's_mov_b32 s3, s%d' % sCtL]
        for ds in range(4):
            if ds == 2: L.append('s_add_u32 s3, s3, 0x2000')
            for q in range(2):
                b, d = O0 + (ds * 2 + q) * 8, CXL + (ds * 2 + q) * 4
                L += ['v_pk_mul_f32 v[%d:%d], v[%d:%d], v[%d:%d] op_sel_hi:[1,0]' % (b + 2 * e, b + 2 * e + 1, b + 2 * e, b + 2 * e + 1, L0 + 4 * q, L0 + 4 * q + 1) for e in range(4)]
                L += ['v_cvt_pk_bf16_f32 v%d, v%d, v%d' % (d + e, b + 2 * e, b + 2 * e + 1) for e in range(4)]
                L += ['buffer_store_dwordx4 v[%d:%d], v%d, %s, s3 offen offset:%d sc1' % (d, d + 3, vA[ds & 1], s4(S_ST), q * 1024)]
        return L

    def slow2(self, name):
        lb = lambda s: self.lab(name + s)
        hi = name == 'slowH'
        C = 144
        SS, PP, M = (160, 8, 16) if hi else (96, 128, 136)
        Q = (lambda q, ds: ar(QP + (q * 4 + ds) * 4, 4)) if hi else (lambda q, ds: vr(QL + (q * 4 + ds) * 4, 4))
        sO, sJ = sSO, sSpin
        B = [lb('') + ':', 's_waitcnt vmcnt(0) lgkmcnt(0)', 's_lshl_b32 s%d, s%d, 2' % (sRho, sI)]
        if hi: B += ['s_sub_u32 s%d, 60, s%d' % (sRho, sRho), 's_xor_b32 s3, s%d, 1' % sW, 's_add_u32 s%d, s%d, s3' % (sRho, sRho)]
        else: B += ['s_add_u32 s%d, s%d, s%d' % (sRho, sRho, sW)]
        ld = ['buffer_load_dwordx4 %s, v%d, %s, s%d offen offset:%d sc1' % (ar(VF + 4 * f, 4), vA[f >> 2], s4(S_A), sO, (f & 3) * 1024) for f in range(8)]
        def head(n):
            return ['s_mov_b32 s%d, 0' % sJ, lb(n) + ':', 's_lshr_b32 s%d, s%d, 1' % (sO, sJ), 's_lshl_b32 s%d, s%d, 15' % (sO, sO), 's_and_b32 s3, s%d, 1' % sJ,
                    's_lshl_b32 s3, s3, 13', 's_add_u32 s%d, s%d, s3' % (sO, sO)] + ld
        def mask(n):
            return ['s_cmp_eq_u32 s%d, s%d' % (sJ, sRho), 's_cbranch_scc0 %s' % lb(n)] + self.tri(C) + [lb(n) + ':', 's_nop 1']
        qk = []
        for ds in range(4):
            for kb in range(2):
                for q in range(2):
                    d = vr(SS + (q * 2 + kb) * 4, 4)
                    qk.append('%s %s, %s, %s, %s' % (MF, d, ar(VF + (kb * 4 + ds) * 4, 4), Q(q, ds), vr(C + (q * 2 + kb) * 4, 4) if ds == 0 else d))
        def tail(n):
            return ['s_add_u32 s%d, s%d, 1' % (sJ, sJ), 's_cmp_le_u32 s%d, s%d' % (sJ, sRho), 's_nop 7', 's_cbranch_scc1 %s' % lb(n)]
        B += ['s_nop 7', 's_nop 7']
        B += ['v_mov_b32 v%d, 0' % (C + e) for e in range(16)] + ['v_mov_b32 v%d, v%d' % (M + q, vBig) for q in range(2)]
        B += head('1') + mask('1m') + qk
        for q in range(2):
            B += ['v_max3_f32 v%d, v%d, v%d, v%d' % (M + q, M + q, SS + 8 * q + 2 * e, SS + 8 * q + 2 * e + 1) for e in range(4)]
        B += tail('1')
        for q in range(2):
            for sw in ('16', '32'):
                B += ['v_mov_b32 v%d, v%d' % (M + 2, M + q), 'v_permlane%s_swap_b32 v%d, v%d' % (sw, M + q, M + 2), 'v_max_f32 v%d, v%d, v%d' % (M + q, M + q, M + 2)]
            B += ['v_sub_f32 v%d, 0, v%d' % (C + 8 * q + e, M + q) for e in range(8)]
        B += self.zero0()
        if hi:
            B += ['ds_write_b128 v%d, v[%d:%d] offset:%d' % (vMR, O0, O0 + 3, t * 1024) for t in range(16)] + ['s_waitcnt lgkmcnt(0)']
        B += head('2') + mask('2m') + qk + ['s_add_u32 s%d, s%d, 0x4000' % (sO, sO)]
        B += ['v_exp_f32 v%d, v%d' % (SS + e, SS + e) for e in range(16)] + ld
        B += ['v_cvt_pk_bf16_f32 v%d, v%d, v%d' % (PP + e, SS + 2 * e, SS + 2 * e + 1) for e in range(8)]
        B += [l.replace(vr(PB, 4), vr(PP, 4)).replace(vr(PB + 4, 4), vr(PP + 4, 4)) for l in self.pv(qs=(0, 1))]
        B += tail('2') + ['s_nop 7', 's_branch %s' % lb('r')]
        self.ool.append(B)

    def attention(self, st, stats, lazy):
        out = []
        lb = self.lab
        def run(lines, st): return process(lines, st, stats=stats, lazy=lazy)
        def ok(o, *sts):
            for s in sts:
                p = process(o, s, pad=False)[0]
                if p != o:
                    k = next(k for k in range(len(o)) if p[k] != o[k])
                    print('\n'.join(p[max(0, k - 30):k + 5])); print(s.lg, s.vm)
                assert p == o
                assert [t for t, _ in s.vm][-2:] == [None] * 2, s.vm
        def loop(lines, st):
            o1, st1 = process(lines, st, lazy=lazy); o2, st2 = run(lines, st1)
            assert st1.sig() == st2.sig()
            ok(o2, st, st2)
            return o2, st2
        lastD = ['s_mov_b32 s%d, 0x10000' % sTI, 's_mov_b32 s%d, s%d' % (sX, sXe)]
        o, st = run(self.attn_pro() + self.stamp(16) + self.body2('D', 'first') +
                    ['s_cmp_eq_u32 s%d, 0' % sI] + [l.replace('s_mov', 's_cmov') for l in lastD] + self.body2('D', 'second') +
                    ['s_waitcnt lgkmcnt(0)', 's_sub_u32 s%d, s%d, 2' % (sN, sN), 's_cbranch_scc1 %s' % lb('entS')], st); out += o
        st1 = st
        oD, st = loop([lb('topD') + ':'] + self.body2('D', 'loop'), st); out += oD
        post = ['s_cmp_eq_u32 s%d, 0x8000' % sTI] + lastD + ['s_mov_b32 s%d, 0' % sN, 's_cbranch_scc1 %s' % lb('topD')]
        o, st = run(post, st); out += o
        ok(oD, st)
        ent = [lb('entS') + ':'] + self.stamp(17) + ['s_mov_b32 s%d, 1' % sEv, 's_lshl_b32 s3, s%d, 1' % sI, 's_sub_u32 s%d, 13, s3' % sN, 's_cbranch_scc1 %s' % lb('postS')]
        o, st = run(ent, st); out += o
        st1 = process(o, st1)[1]
        stD = st
        oS, st = loop([lb('topS') + ':'] + self.body2('S', 'loop'), st); out += oS
        ok(oS, st1)
        post = [lb('postS') + ':', 's_or_b32 s%d, s%d, 2' % (sEv, sEv), 's_cmp_eq_u32 s%d, 2' % sW, 's_cbranch_scc0 %s' % lb('hs0'), lb('topL') + ':']
        self.ool.append([lb('hs0') + ':',
                         's_cmp_eq_u32 s%d, 1' % sW, 's_cbranch_scc1 %s' % lb('hs0a'),
                         's_cmp_eq_u32 s%d, 3' % sW, 's_cbranch_scc1 %s' % lb('hs0b')] + self.tri(CG[1]) + ['s_nop 0', 's_branch %s' % lb('topL'),
                         lb('hs0a') + ':'] + self.allm(CG[1]) + self.allm(CP) + ['s_nop 0', 's_branch %s' % lb('topL'),
                         lb('hs0b') + ':'] + self.tri(CP) + ['s_nop 0', 's_branch %s' % lb('topL')])
        self.ool.append([lb('hmid') + ':', 's_bitcmp1_b32 s%d, 0' % sEv, 's_cbranch_scc0 %s' % lb('hm1'), 's_nop 7'] + self.finalizeL() + self.zero0() +
                        ['s_bitcmp1_b32 s%d, 1' % sEv, 's_mov_b32 s%d, 0' % sEv, 's_cbranch_scc0 %s' % lb('hmidr'),
                         lb('hm1') + ':', 's_cmp_eq_u32 s%d, 0' % sW, 's_cbranch_scc1 %s' % lb('hm2'),
                         's_cmp_eq_u32 s%d, 3' % sW, 's_cbranch_scc0 %s' % lb('hmidr2')] + self.tri(CG[1]) + self.allm(CP) + ['s_nop 0', 's_branch %s' % lb('hmidr2'),
                         lb('hm2') + ':'] + self.allm(CG[1]) + self.tri(CP) + ['s_nop 0', 's_branch %s' % lb('hmidr2')])
        self.slow2('slowL'); self.slow2('slowH')
        o, st = run(post + self.finish(self.body2('S', 'last')), st); out += o
        ok(o, stD)
        return out, st

    def areg(self, part, hr, ds, q):
        f = ds * 2 + q
        if hr == 0: return vr(CXL + 4 * f, 4) if part == 0 else vr(O0 + 8 * f, 4)
        if part == 0: return ar([64, 96, 160][hr - 1] + 4 * f, 4)
        return ar([192, 224][hr - 1] + 4 * f, 4) if hr < 3 else vr(O0 + 4 + 8 * f, 4)
    def freg(self, k):
        return ar(64 + 4 * k, 4) if k < 16 else ar(160 + 4 * (k - 16), 4) if k < 24 else vr(O0 + 8 * (k - 24), 4)

    def finish(self, S):
        o = self.opt
        E = S.n()
        sp = o.get('wsp', 4)
        for l in self.pv(qs=(2, 3)) + self.pv(qs=(0, 1)):
            for q in range(4): l = l.replace(vr(PB + 4 * q, 4), vr(P2 + 4 * q, 4))
            for db in range(8): l = l.replace(', ' + ar(VF + 4 * db, 4) + ', v', ', ' + ar(V2 + 4 * db, 4) + ', v')
            S.add(l)
        allk = lambda *h: [(hr, ds) for hr in h for ds in range(4)]
        seg = o.get('seg', [('k', 0, allk(0)), ('k', 1, allk(0)[:2]), ('k', 0, allk(1)), ('k', 1, allk(0)[2:]), ('c', 0, allk(2, 3)), ('k', 1, allk(1)), ('c', 1, allk(2, 3))])
        uses = []
        needA = {}
        lastA = {}
        done = {}
        seen = set()
        for kind, part, ks in seg:
            order = [(hr, ds, n) for hr, ds in ks for n in range(10)] if kind == 'k' else [(hr, ds, n) for c in range(5) for hr, ds in ks for n in (c, 5 + c)]
            for hr, ds, n in order:
                u = len(uses)
                uses.append((S.n(), hr, ds, n))
                needA.setdefault((part, hr, ds), S.n())
                for q in ((0, 1) if u % 2 == 0 else (1, 0)):
                    d = vr((ACCH if part else ACCL)[n] + 4 * q, 4)
                    S.add('%s %s, %s, %s, %s' % (MF, d, ar(4 * (u % NRING), 4), self.areg(part, hr, ds, q), d if (part, n) in seen else '0'))
                seen.add((part, n))
                done[(part, n)] = lastA[(part, hr, ds)] = S.n() - 1
        assert len(uses) == 320
        F0 = S.n()
        facc = lambda j, n: ar(FACC + 4 * n, 4) if j == 0 else vr(64 + (j - 1) * 20 + 4 * n, 4)
        fdone = {}
        for t in range(3):
            for n in range(5):
                for j in (range(4) if n % 2 == 0 else reversed(range(4))):
                    d = facc(j, n)
                    fdone[(j, n)] = S.n()
                    S.add('%s %s, %s, %s, %s' % (MF, d, self.freg(9 * t + 4 + n), self.freg(9 * t + j), '0' if t == 0 and j else d))
        bar = lambda g, *tags: S.at(g, [('@vmwait', t) for t in tags] + ['s_waitcnt lgkmcnt(0)', 's_barrier'])
        LA = o.get('wla', 16)
        B1 = E - 1
        bar(B1, 'wo0'); S.load[B1] = 8
        first = lambda p: min(g for g, hr, ds, n in uses if p(hr))
        B3, B4 = first(lambda h: h == 1) - LA - 1, first(lambda h: h >= 2) - LA - 1
        S.at(B3, [('@vmwait', 'wo1'), 's_barrier']); S.load[B3] = 8
        S.at(B4, [('@vmwait', 'wo3'), 's_barrier']); S.load[B4] = 8
        for u, (g, hr, ds, n) in enumerate(uses):
            v, off = self.wo_lds(hr, ds, n)
            S.at(g - LA, 'ds_read_b128 %s, v%d offset:%d' % (ar(4 * (u % NRING), 4), v, off))
        ex = lambda q: ['v_exp_f32 v%d, v%d' % (SB[1] + 8 * q + e, SB[1] + 8 * q + e) for e in range(8)]
        cv = lambda q: ['v_cvt_pk_bf16_f32 v%d, v%d, v%d' % (P2 + e, SB[1] + 2 * e, SB[1] + 2 * e + 1) for e in range(4 * q, 4 * q + 4)]
        g = S.flow(ex(2)[:4] + ex(3) + ex(2)[4:] + cv(3) + cv(2), E - 36 - 3)
        assert g < E - 1, g
        ad = ['v_add_u32 v%d, 0x10000, v%d' % (vW1, vA[0]), 'v_add_u32 v%d, 0x20000, v%d' % (vW2, vA[0]),
              's_lshl_b32 s%d, s%d, 14' % (sM2, sW), 'v_add_u32 v%d, s%d, v%d' % (vMW, sM2, vA[0]), 'v_xor_b32 v%d, 0x4000, v%d' % (vMR, vMW), 's_xor_b32 s%d, s%d, 0x4000' % (sM2, sM2),
              's_add_u32 s%d, s%d, %d' % (sK2, sK, 144 * 1024), 'v_lshlrev_b32 v250, 2, v1', 'v_add_u32 v250, s%d, v250' % sK2, 'v_xor_b32 v251, 0x1000, v250']
        vTC = 252
        ad6 = ['v_lshrrev_b32 v%d, 4, v1' % vTC, 'v_and_b32 v253, 15, v1', 'v_lshlrev_b32 v253, 7, v253', 'v_lshl_add_u32 v%d, v%d, 12, v253' % (vTC, vTC)]
        g = S.flow(ex(1) + cv(1) + ex(0) + cv(0), g)
        assert g < E + 16, g - E
        ga = S.flow(ad + ad6, E - 36)
        assert ga < E + 36 - LA - 1, ga - E
        g6 = max(ga + 1, E + o.get('g6', 0))
        touch = lambda s: ['buffer_load_dword a%d, v%d, %s, s%d offen sc1' % (135, vTC, s4(S_ST), s)] if o.get('touch', 1) else []
        gt6 = S.flow([[('@vmwait', 'pre')] + self.flag(6)] + touch(sCtL), g6)
        wr = ['ds_write_b32 v251, a%d offset:%d' % (L1 + 4 * q, 3072 + q * 256) for q in range(2)]
        for db in range(8):
            for q in range(2):
                t = (db >> 1) * 4 + q * 2 + (db & 1)
                wr.append((E + 2 + 2 * db + 4, 'ds_write_b128 v%d, %s offset:%d' % (vMW, ar(O1 + 4 * t, 4), t * 1024)))
        g = S.flow(wr, max(ga + 1, E + 4))
        B2 = max(g + o.get('b2d', 8), E + 37)
        while S.load.get(B2, 0): B2 += 1
        bar(B2)
        assert gt6 <= B2 + 6
        S.at(B2, ['ds_read_b32 v%d, v250 offset:%d' % (L0 + 1 + 4 * q, 3072 + q * 256) for q in range(2)])
        g = B2 + 6
        S.at(g, ['v_add_f32 v%d, v%d, v%d' % (L0 + 4 * q, L0 + 4 * q, L0 + 1 + 4 * q) for q in range(2)] + self.check('slowH', L0 + 2))
        X = lambda f: 240 + 8 * (f & 1)
        rdx = lambda f: ['ds_read_b128 v[%d:%d], v%d offset:%d' % (X(f) + 4 * k, X(f) + 4 * k + 3, vMR, (2 * f + k) * 1024) for k in range(2)]
        vTC2 = vMW
        g = S.flow(['v_mov_b32 v%d, v%d' % (vTC2, vTC)] + rdx(1) + ['v_rcp_f32 v%d, v%d' % (vR[q], L0 + 4 * q) for q in range(2)] + rdx(0), g + 1)
        g += 4
        freed = {}
        cap = o.get('fcap', 8)
        for f in (1, 0, 3, 2, 5, 4, 7, 6):
            b, ds, q = O0 + 8 * f, f >> 1, f & 1
            g = S.flow(['v_add_f32 v%d, v%d, v%d' % (b + e, b + e, X(f) + e) for e in range(8)], g, cap=cap)
            freed[f] = g
            it = (rdx(f + 2) if f < 6 else []) + ['v_mul_f32 v%d, v%d, v%d' % (b + e, b + e, vR[q]) for e in range(8)]
            it += ['v_cvt_pk_bf16_f32 v%d, v%d, v%d' % (b + e, b + 2 * e, b + 2 * e + 1) for e in range(4)]
            g = S.flow(it, g, cap=cap)
            assert g < needA[(1, 0, ds)] - 1, (f, g, needA[(1, 0, ds)])
            if f == 5: g = S.flow(['s_add_u32 s%d, s%d, 0x2000' % (sT2, sCtH)], g, cap=cap)
            g = S.flow([('buffer_store_dwordx4 v[%d:%d], v%d, %s, s%d offen offset:%d sc1' % (b, b + 3, vA[ds & 1], s4(S_ST), sCtH if ds < 2 else sT2, q * 1024), 'cx')], g, cap=cap)
        gfin = g
        def aloads(part):
            it = []
            for hr in range(1, 4):
                for ds in range(4):
                    if ds == 0: it.append('s_add_u32 s%d, s%d, s%d' % (sT0, sCtH if part else sCtL, sDH[hr]))
                    if ds == 2: it.append('s_add_u32 s%d, s%d, 0x2000' % (sT0, sT0))
                    it += ['buffer_load_dwordx4 %s, v%d, %s, s%d offen offset:%d sc1' % (self.areg(part, hr, ds, q), vA[ds & 1], s4(S_ST), sT0, q * 1024) for q in range(2)]
            return it
        def chk(gs, part):
            sl = [needA[(part, 1 + k // 8, (k >> 1) & 3)] - g for k, g in enumerate(gs)]
            if o.get('verbose'): print('A slack', part, sl)
            assert min(sl) > 0
        pa = ['s_andn2_b32 s3, s2, 24', 's_lshl_b32 s3, s3, 5', 's_add_u32 s3, s3, s%d' % sW, 's_lshl_b32 s3, s3, 2', 's_add_u32 s3, s3, 16',
              'v_and_b32 v%d, 3, v1' % vPA, 'v_lshlrev_b32 v%d, 10, v%d' % (vPA, vPA), 'v_add_u32 v%d, s3, v%d' % (vPA, vPA)]
        gp = S.flow(tmp(pa, 0), g6 + 1)
        c6 = needA[(0, 1, 0)] - o.get('c6', 44)
        assert gp < c6 - 30 and c6 > B2
        S.at(c6 - o.get('pd', 30), self.poll_issue())
        S.at(c6, self.stamp(19) + self.hop('c6') + self.poll_check(6) + self.stamp(20))
        gs = self.place_vm2(S, aloads(0), c6 + 1, o.get('asp', 4))
        chk(gs, 0)
        dm = [(B2 + 8, 's_mov_b32 m0, s%d' % sK2), (self.wo_dma(2, 3), 'wo3')]
        for a in range(16):
            hr, n = (2, 4 + a) if a < 6 else (3, a - 6)
            if n % 4 == 0: dm.append('s_add_u32 m0, s%d, %d' % (sM2, a * 1024))
            dm.append((freed[a >> 1] + 1, (self.wo_dma(hr, n), 'wo3')))
        gs = self.place_vm2(S, dm, o.get('gw', B2 + 8), sp)
        if o.get('verbose'): print('E', E, 'B2', B2 - E, 'fin end', gfin - E, 'c6', c6 - E, 'B3', B3 - E, 'wo3', [x - E for x in gs], 'B4', B4 - E, 'F0', F0 - E)
        assert gs[-1] < B4
        g7 = gfin + o.get('g7', 64)
        S.flow([[('@vmwait', 'cx')] + self.flag(7)] + [l.replace('v%d,' % vTC, 'v%d,' % vTC2) for l in touch(sCtH)], g7)
        c7 = needA[(1, 1, 0)] - o.get('c7', 44)
        assert g7 < c7 - 30
        S.at(c7 - o.get('pd', 30), self.poll_issue())
        S.at(c7, self.stamp(21) + self.hop('c7') + self.poll_check(7) + self.stamp(22))
        gs = self.place_vm2(S, aloads(1), c7 + 1, o.get('asp', 4))
        chk(gs, 1)
        gAH = gs[-1]
        gst = {}
        for part in range(2):
            g = 0
            for n in sorted(range(10), key=lambda n: done[(part, n)]):
                b = (ACCH if part else ACCL)[n]
                g = S.flow(['v_cvt_pk_bf16_f32 v%d, v%d, v%d' % (b + e, b + 2 * e, b + 2 * e + 1) for e in range(4)] +
                           ['s_add_u32 s%d, s%d, %d' % (sT1, sP0, (n // 5) * 81920 + (part * 5 + n % 5) * 8192)], max(g, done[(part, n)] + 4))
                g = self.place_vm2(S, [('buffer_store_dwordx4 v[%d:%d], v%d, %s, s%d offen sc1' % (b, b + 3, vA[0], s4(S_P), sT1), 'p%d' % part)], g, 1)[0]
            gst[part] = g
        assert gst[0] < min(done[(1, n)] for n in range(10))
        g8 = gst[0] + o.get('g8', 80)
        S.flow([[('@vmwait', 'p0')] + self.flag(8)], g8)
        sJ = sFW
        su = ['s_mul_i32 s%d, s%d, 3' % (sFM, sW), 's_add_u32 s%d, s%d, 42' % (sFM, sFM)]
        for j in range(4):
            su += ['s_add_u32 s3, s%d, %d' % (sW, j), 's_bitcmp1_b32 s3, 1', 's_cselect_b32 s%d, s%d, s%d' % (sJ[j], sRH, sRL), 's_and_b32 s3, s3, 1',
                   's_add_u32 s3, s3, s%d' % sJ[j], 's_mul_i32 s3, s3, 54', 's_add_u32 s3, s3, s%d' % sFM, 's_lshl_b32 s%d, s3, 10' % sJ[j]]
        su += ['s_lshl_b32 s%d, s%d, 3' % (sFM, sFM), 's_add_u32 s%d, s%d, s%d' % (sFM, sFM, sCB), 's_mul_i32 s%d, s%d, 5120' % (sFM, sFM)]
        g = S.flow(tmp(self.keep_scc(su), 1), c7 + 2)
        it = []
        for t in range(3):
            it += ['buffer_load_dwordx4 %s, v%d, %s, s%d offen offset:%d sc1' % (self.freg(9 * t + j), vA[0], s4(S_H), sJ[j], t * 1024) for j in range(4)]
            it += ['buffer_load_dwordx4 %s, v%d, %s, s%d offen offset:%d sc1' % (self.freg(9 * t + 4 + n), vA[n >> 2], s4(S_WD), sFM, (n & 3) * 1024) for n in range(5)]
            if t < 2: it.append('s_add_u32 s%d, s%d, 40960' % (sFM, sFM))
        gl = max(max(v for (p, hr, ds), v in lastA.items() if p == 0 or hr == 0) + 1, gAH + sp, g + 1)
        gs = self.place_vm2(S, it, gl, sp)
        if o.get('verbose'): print('g7', g7 - E, 'c7', c7 - E, 'AH end', gAH - E, 'pst', gst[0] - E, gst[1] - E, 'fl', gs[0] - E, gs[-1] - E)
        assert gs[-1] < F0 + 20
        sPA, sPC, sOA, sOB, sOC = sWO[0], sWO[1], sWO[2], sWO[3], sDH[1]
        vO, vO2 = 6, 24
        su = ['s_mul_i32 s%d, s2, 10' % sPC, 's_add_u32 s%d, s%d, s%d' % (sPA, sPC, sW), 's_lshl_b32 s%d, s%d, 13' % (sPA, sPA),
              's_and_b32 s3, s%d, 1' % sW, 's_mul_i32 s3, s3, 5', 's_add_u32 s%d, s%d, s3' % (sPC, sPC), 's_add_u32 s%d, s%d, 4' % (sPC, sPC), 's_lshl_b32 s%d, s%d, 13' % (sPC, sPC),
              's_mul_i32 s3, s%d, 160' % sCB, 's_mul_i32 s%d, s%d, 20480' % (sOA, sRL), 's_mul_i32 s%d, s%d, 20480' % (sOB, sRH),
              's_add_u32 s%d, s%d, s3' % (sOA, sOA), 's_add_u32 s%d, s%d, s3' % (sOB, sOB),
              's_bitcmp1_b32 s%d, 0' % sW, 's_cselect_b32 s%d, s%d, s%d' % (sOC, sOB, sOA), 's_add_u32 s%d, s%d, 128' % (sOC, sOC),
              's_lshl_b32 s3, s%d, 5' % sW, 's_add_u32 s%d, s%d, s3' % (sOA, sOA), 's_add_u32 s%d, s%d, s3' % (sOB, sOB),
              'v_and_b32 v%d, 15, v1' % vO, 'v_mul_u32_u24 v%d, 1280, v%d' % (vO, vO), 'v_lshrrev_b32 v%d, 4, v1' % vO2, 'v_lshl_add_u32 v%d, v%d, 3, v%d' % (vO, vO2, vO),
              'v_add_u32 v%d, 20480, v%d' % (vO2, vO)]
        su += srd(S_X, pX, pX + 1, 2048 * 1280) + srd(S_A, pOUT, pOUT + 1, 2048 * 1280)
        su += ['s_andn2_b32 s3, s2, 7', 's_lshl_b32 s3, s3, 7', 's_and_b32 s%d, s2, 6' % sT2, 's_lshl_b32 s%d, s%d, 1' % (sT2, sT2), 's_add_u32 s3, s3, s%d' % sT2, 's_add_u32 s3, s3, 16',
               'v_and_b32 v%d, 7, v1' % vPA, 'v_lshlrev_b32 v%d, 7, v%d' % (vPA, vPA), 'v_add_u32 v%d, s3, v%d' % (vPA, vPA)]
        g = S.flow(tmp(self.keep_scc(su), 2), max(gAH + 1, B4 + 1, g + 1))
        XR = 240
        xl = ['buffer_load_dwordx2 v[%d:%d], v%d, %s, s%d offen' % (XR + 4 * k + 2 * q, XR + 4 * k + 2 * q + 1, [vO, vO2][q], s4(S_X), [sOA, sOB, sOC][k]) for k in range(3) for q in range(2)]
        gs = self.place_vm2(S, xl + self.poll_issue(), max(g + 1, gs[-1] + sp, g8 + 30), sp)
        c8 = max(gs[-1] + o.get('pd', 30), gst[1] + 2)
        assert c8 >= F0
        pregs = {0: [200 + 4 * p for p in range(8)], 1: [32 + 4 * p for p in range(8)], 2: [144 + 4 * p for p in range(8)]}
        pl = lambda k: ['buffer_load_dwordx4 v[%d:%d], v%d, %s, s%d offen offset:%d sc1' % (pregs[k][p], pregs[k][p] + 3, vA[p >> 2], s4(S_P), [sPA, sPA, sPC][k], (p & 3) * 1024) for p in range(8)]
        assert c8 < S.n() - 2, c8 - F0
        S.at(c8, self.stamp(23) + self.poll_check(8))
        n_in = min(8, (S.n() - 2 - c8) // 3)
        self.place_vm2(S, pl(0)[:n_in], c8 + 1, 3)
        S.at(F0 + 42, ['s_barrier'])
        vFJ = [4, 5, 7, 30]
        su = []
        for j in range(4):
            su += ['s_add_u32 s3, s%d, %d' % (sW, j), 's_and_b32 s3, s3, 3', 's_mul_i32 s3, s3, 20', 's_add_u32 s3, s3, s%d' % sW, 's_lshl_b32 s3, s3, 10', 'v_add_u32 v%d, s3, v%d' % (vFJ[j], vA[0])]
        su += ['s_lshl_b32 s3, s%d, 12' % sW, 'v_add_u32 v25, s3, v%d' % vA[0], 's_and_b32 s3, s%d, 1' % sW, 's_mul_i32 s3, s3, 40960', 's_add_u32 s3, s3, 16384', 'v_add_u32 v252, s3, v%d' % vA[0]]
        g = S.flow(tmp(su, 3), F0 + 2)
        assert g < F0 + 44, g - F0
        fw = sorted(fdone, key=lambda k: fdone[k])
        wl = [(fdone[k] + 4, 'ds_write_b128 v%d, %s offset:%d' % (vFJ[k[0]], facc(*k), k[1] * 4096)) for k in fw]
        nin = sum(1 for e, _ in wl if e < S.n())
        S.flow(wl[:nin], F0 + 44, gmax=S.n() - 1)
        for k, gx in enumerate(o.get('xst', [])): S.at(E + gx, self.stamp([5, 6, 7, 8, 9, 10, 11, 12, 18, 28, 29, 30, 31][k]))
        if o.get('verbose'): print('c8', c8 - F0, 'over', [(k - E, v) for k, v in sorted(S.load.items()) if v > 8 and k >= E - 40])
        L = S.lines() + self.stamp(24) + pl(0)[n_in:] + [l for _, l in wl[nin:]]
        L += [('@vmwait', 'p1')] + self.flag(9) + self.stamp(25) + ['s_add_u32 s%d, s%d, 40960' % (sPA, sPA), 's_waitcnt lgkmcnt(0)', 's_barrier']
        GR, FR = 176, 64
        L += ['s_mov_b32 s3, 0xbfb8aa3b']
        for k in range(3):
            for q in range(2):
                b = FR + q * 16 + (k & 1) * 32 if k < 2 else 8 if q == 0 else 32
                L += ['ds_read_b128 v[%d:%d], v%d offset:%d' % (b + 4 * ww, b + 4 * ww + 3, 252 if k == 2 else 25, k % 2 * 40960 * (k < 2) + q * 20480 + ww * 1024) for ww in range(4)]
        assert FR + 64 <= 128
        L += self.poll_issue()
        for k in range(3):
            for q in range(2):
                b = FR + q * 16 + (k & 1) * 32 if k < 2 else 8 if q == 0 else 32
                for x, y in ((0, 4), (8, 12), (0, 8)):
                    L += ['v_pk_add_f32 v[%d:%d], v[%d:%d], v[%d:%d]' % (b + x + e, b + x + e + 1, b + x + e, b + x + e + 1, b + y + e, b + y + e + 1) for e in (0, 2)]
                L += ['v_mul_f32 v%d, s3, v%d' % (b + 4 + e, b + e) for e in range(4)]
                L += ['v_exp_f32 v%d, v%d' % (b + 4 + e, b + 4 + e) for e in range(4)]
                L += ['v_add_f32 v%d, 1.0, v%d' % (b + 4 + e, b + 4 + e) for e in range(4)]
                L += ['v_rcp_f32 v%d, v%d' % (b + 4 + e, b + 4 + e) for e in range(4)]
                L += ['v_mul_f32 v%d, v%d, v%d' % (GR + 8 * k + 4 * q + e, b + e, b + 4 + e) for e in range(4)]
        def slot(k):
            A, T = 64, 72
            R = []
            for p in range(8):
                r = pregs[k][p]
                d = A if p == 0 else T + 8 * (p & 1)
                for e in range(4):
                    R += ['v_lshlrev_b32 v%d, 16, v%d' % (d + 2 * e, r + e), 'v_and_b32 v%d, s%d, v%d' % (d + 2 * e + 1, sMask, r + e)]
                if p: R += ['v_pk_add_f32 v[%d:%d], v[%d:%d], v[%d:%d]' % (A + 2 * e, A + 2 * e + 1, A + 2 * e, A + 2 * e + 1, d + 2 * e, d + 2 * e + 1) for e in range(4)]
            for e in range(4):
                R += ['v_lshlrev_b32 v%d, 16, v%d' % (T + 2 * e, XR + 4 * k + e), 'v_and_b32 v%d, s%d, v%d' % (T + 2 * e + 1, sMask, XR + 4 * k + e)]
            R += ['v_pk_fma_f32 v[%d:%d], v[%d:%d], v[%d:%d], v[%d:%d]' % (A + 2 * e, A + 2 * e + 1, A + 2 * e, A + 2 * e + 1, GR + 8 * k + 2 * e, GR + 8 * k + 2 * e + 1, T + 2 * e, T + 2 * e + 1) for e in range(4)]
            R += ['v_cvt_pk_bf16_f32 v%d, v%d, v%d' % (88 + 4 * k + e, A + 2 * e, A + 2 * e + 1) for e in range(4)]
            R += ['buffer_store_dwordx2 v[%d:%d], v%d, %s, s%d offen%s' % (88 + 4 * k + 2 * q, 89 + 4 * k + 2 * q, [vO, vO2][q], s4(S_A), [sOA, sOB, sOC][k], o.get('outfl', '')) for q in range(2)]
            return R
        L += slot(0) + self.stamp(26) + self.hop('c9') + self.poll_check(9) + self.stamp(27)
        L += ['s_cmp_lt_u32 s%d, 2' % sW, 's_cbranch_scc0 %s' % self.lab('noc')] + pl(2) + [self.lab('noc') + ':'] + pl(1) + slot(1)
        L += ['s_cmp_lt_u32 s%d, 2' % sW, 's_cbranch_scc0 %s' % self.lab('fin')] + slot(2) + [self.lab('fin') + ':']
        return L

    def place_vm2(self, S, lines, g0, sp):
        vg = self.opt.get('vgap', 3)
        def isvm(l):
            t = l[0] if isinstance(l, tuple) else l
            return t.startswith('buffer_')
        def near(g): return any(isvm(l) for y in range(g - vg + 1, g + vg) for l in S.fill.get(y, []))
        g, out, pend = g0, [], []
        for l in lines:
            if isinstance(l, tuple) and isinstance(l[0], int):
                g = max(g, l[0]); l = l[1]
            if not isvm(l):
                pend.append(l); continue
            k = 0
            while near(g) and k < 6: g += 1; k += 1
            if pend:
                S.at(g - 1, pend); pend = []
            S.at(g, l)
            out.append(g); g += sp
        assert not pend
        return out

    def build(self, stats=None):
        o = self.opt
        lazy = o.get('lazy', 8)
        L = self.prologue()
        pre, S = self.gemms()
        L += self.hop('p') + self.stamp(12)
        L += [('@vmwait', 'dma0'), 's_barrier'] + self.stamp(1) + pre
        L += S.lines()
        L += self.stamp(3)
        L += self.p2_epilogue()
        L += self.stamp(4)
        out, st = process(L, stats=stats, lazy=lazy)
        oa, st = self.attention(st, stats, lazy)
        out += oa
        L = []
        if self.SO: L += ['s_waitcnt vmcnt(0)'] + self.stamp(13) + self.stamp(15, True) + self.stamps_out()
        L += ['s_endpgm ;@stop']
        out += process(L, st, stats=stats, lazy=lazy)[0]
        for blk in self.ool:
            out += process(blk, stats=stats)[0]
        out += [self.lab('end') + ':']
        if o.get('pg'):
            import pg
            out = pg.pads(out, self.lab, sW, True)
        return out
```

```python
from asmlib import *
from k1 import srd, half_reduce, layernorm

MF = 'v_mfma_f32_16x16x32_bf16'
MF32 = 'v_mfma_f32_32x32x16_bf16'
WS_KV, WS_XN, WS_H, WS_CTX, WS_W, WS_Q, WS_DBG = 0, 32 << 20, 36 << 20, 44 << 20, 60 << 20, 72 << 20, 128 << 20
WS_FL = 35 << 20

S_A, S_B0, S_B1, S_B2, S_ST, S_FL, S_X = 4, 8, 12, 16, 20, 24, 28
pX, pC, pWQ, pUK, pUV, pWO, pBX, pWG, pWU, pWD, pOUT, pDBG, pWS = [32 + 2 * i for i in range(13)]
sW, sH, sI, sMask, sMB, sMA = 58, 59, 60, 61, 62, 63
sAo = [64, 65, 66, 67]
sBo = [68, 69, 70, 71]
sGo = [72, 73]
sFB, sT0, sT1, sT2, sSO = 74, 75, 76, 77, 78
sSpin = 79
S_W = 80
sStamp = 98
sRot, sInc, sIncB, sIncG, sRot2 = 84, 85, 86, 87, 88
sEp, sBase = 89, 90
vA = [2, 3]; vB = [4, 5]; vG = [6, 7]
vRA1 = [8, 9]; vRA2 = [10, 11]
vRB = list(range(12, 20)); vRG = list(range(20, 24))
vSTK, vSTV, vFL, vPA, vPR, vT0, vT1, vSTAMP = 24, 25, 26, 27, 28, 29, 30, 31
vBASE = 0
aTA, aTB, aTW = 118, 119, 120
sTW, sTWs = 91, 97

def s4(b): return 's[%d:%d]' % (b, b + 3)

def srd_off(d, p, off, nrec):
    o = ['s_add_u32 s%d, s%d, %s' % (d, p, off if isinstance(off, str) else '0x%x' % off), 's_addc_u32 s%d, s%d, 0' % (d + 1, p + 1)]
    o += ['s_mov_b32 s%d, %s' % (d + 2, nrec if isinstance(nrec, str) else '0x%x' % nrec), 's_mov_b32 s%d, 0x00020000' % (d + 3)]
    return o

def flat(x):
    o = []
    for y in x:
        if isinstance(y, list): o += flat(y)
        else: o.append(y)
    return o

class K:
    H16 = False
    def __init__(self, name, opt):
        self.name = name
        self.opt = opt
        self.SO = opt.get('stamps', False)
        self.nlab = 0
        self.ool = []
    def lab(self, s): return '%s_%s' % (self.name, s)
    def stamp(self, i, real=False, force=False):
        if not self.SO: return []
        if not force and i in self.opt.get('mute', ()): return []
        if real:
            return ['s_memrealtime s[%d:%d]' % (sStamp, sStamp + 1), 's_waitcnt lgkmcnt(0)', 'v_writelane_b32 v%d, s%d, %d' % (vSTAMP, sStamp, i)]
        return ['s_memtime s[%d:%d]' % (sStamp, sStamp + 1), 's_memrealtime s[%d:%d]' % (sStamp + 2, sStamp + 3), 's_waitcnt lgkmcnt(0)',
                'v_writelane_b32 v%d, s%d, %d' % (vSTAMP, sStamp, i), 'v_writelane_b32 v%d, s%d, %d' % (vSTAMP, sStamp + 2, 32 + i)]
    def stamps_out(self):
        if not self.SO: return []
        return srd_off(S_X, pWS, WS_DBG, 0x40000) + [
            's_lshl_b32 s3, s2, 2', 's_add_u32 s3, s3, s%d' % sW, 's_lshl_b32 s3, s3, 8',
            'v_lshlrev_b32 v2, 2, v1', 'v_add_u32 v2, s3, v2',
            'buffer_store_dword v%d, v2, %s, 0 offen' % (vSTAMP, s4(S_X))]
    def hop(self, k): return ['s_nop 0 ;@hop'] if k in self.opt.get('pg', []) else []
    def flag(self, val):
        return ['v_add_u32 v%d, %d, v%d' % (vT0, val, vBASE), 'buffer_store_dword v%d, v%d, %s, 0 offen sc1' % (vT0, vFL, s4(S_FL))]
    def poll_issue(self):
        return ['buffer_load_dword v%d, v%d, %s, 0 offen sc1' % (vPR, vPA, s4(S_FL))]
    MAXF = 5
    def poll_check(self, need):
        self.nlab += 1
        a, b = self.lab('pl%d' % self.nlab), self.lab('pd%d' % self.nlab)
        chk = ['v_sub_u32 v%d, v%d, v%d' % (vPR, vPR, vBASE), 'v_subrev_u32 v%d, %d, v%d' % (vPR, need, vPR), 'v_cmp_ge_u32 vcc, %d, v%d' % (self.MAXF - need, vPR)]
        self.ool.append([a + ':', 's_sleep 2'] + self.poll_issue() + ['s_waitcnt vmcnt(0)'] + chk +
                ['s_add_u32 s%d, s%d, 1' % (sSpin, sSpin), 's_cmp_eq_u64 vcc, -1', 's_cbranch_scc1 %s' % b,
                's_cmp_lt_u32 s%d, 0x8000' % sSpin, 's_cbranch_scc1 %s' % a, 's_branch %s' % b])
        return chk + ['s_mov_b32 s%d, 0' % sSpin, 's_cmp_eq_u64 vcc, -1', 's_cbranch_scc0 %s' % a, b + ':']
    def epoch_out(self):
        return ['s_add_u32 s%d, s%d, 1' % (sEp, sEp), 'v_mov_b32 v%d, s%d' % (vT0, sEp), 'v_add_u32 v%d, 0x8000, v%d' % (vT1, vFL),
                'buffer_store_dword v%d, v%d, %s, 0 offen sc1' % (vT0, vT1, s4(S_FL))]

    def prologue(self):
        L = ['s_cmp_lt_u32 s2, 256', 's_cbranch_scc1 %s' % self.lab('go'), 's_endpgm', self.lab('go') + ':']
        if self.SO: L += ['s_memrealtime s[96:97]']
        L += ['s_load_dwordx16 s[32:47], s[0:1], 0', 's_load_dwordx8 s[48:55], s[0:1], 64', 's_load_dwordx2 s[56:57], s[0:1], 96']
        L += ['v_and_b32 v1, 63, v0', 'v_lshrrev_b32 v%d, 6, v0' % vT0, 'v_mov_b32 v%d, 0' % vSTAMP,
              'v_readfirstlane_b32 s%d, v%d' % (sW, vT0)]
        L += ['s_and_b32 s%d, s2, 7' % sT0, 's_bfe_u32 s%d, s2, 0x20003' % sT1, 's_lshr_b32 s%d, s2, 5' % sI,
              's_lshl_b32 s%d, s%d, 2' % (sH, sT0), 's_add_u32 s%d, s%d, s%d' % (sH, sH, sT1)]
        L += ['s_mul_i32 s%d, s%d, 3' % (sFB, sT0), 's_add_u32 s%d, s%d, s%d' % (sFB, sFB, sT1),
              's_mul_i32 s%d, s%d, 3' % (sT2, sI), 's_sub_u32 s%d, s%d, s%d' % (sT2, sT0, sT2), 's_and_b32 s%d, s%d, 7' % (sT2, sT2),
              's_add_u32 s%d, s%d, 24' % (sT2, sT2), 's_cmp_eq_u32 s%d, 3' % sT1, 's_cselect_b32 s%d, s%d, s%d' % (sFB, sT2, sFB)]
        L += ['s_lshl_b32 s%d, s%d, 1' % (sRot2, sT1), 's_add_u32 s%d, s%d, s%d' % (sRot2, sRot2, sI)]
        if self.opt.get('norot'): L += ['s_mov_b32 s%d, 0' % sRot2]
        L += ['s_and_b32 s%d, s%d, 7' % (sRot, sRot2), 's_sub_u32 s%d, s%d, 10' % (sInc, sRot2), 's_cselect_b32 s%d, s%d, s%d' % (sRot2, sRot2, sInc)]
        r1 = self.opt.get('rot1')
        if r1 is not None:
            L += ['s_and_b32 s%d, s%d, %d' % (sRot, sI, r1 - 1), 's_mul_i32 s%d, s%d, %d' % (sRot, sRot, 8 // r1)]
        if self.opt.get('rot2') == 0: L += ['s_mov_b32 s%d, 0' % sRot2]
        if self.opt.get('rot2') == 'i': L += ['s_mov_b32 s%d, s%d' % (sRot2, sI)]
        if self.opt.get('rot2') == 'x': L += ['s_mov_b32 s%d, s%d' % (sRot2, sT0)]
        L += ['s_mov_b32 s%d, 0xffff0000' % sMask,
              's_lshl_b32 s%d, s%d, 12' % (sMB, sW), 's_lshl_b32 s%d, s%d, 13' % (sMA, sW), 's_add_u32 s%d, s%d, 0x10000' % (sMA, sMA)]
        L += ['s_lshl_b32 s%d, s%d, 2' % (sT0, sI), 's_add_u32 s%d, s%d, s%d' % (sT0, sT0, sW), 's_lshl_b32 s%d, s%d, 16' % (sAo[0], sT0)]
        for j in range(1, 4):
            L.append('s_add_u32 s%d, s%d, %d' % (sAo[j], sAo[0], j * 16384 - (j & 1) * 2048))
        L += ['s_lshl_b32 s%d, s%d, 17' % (sBo[0], sW), 's_lshl_b32 s%d, s%d, 8' % (sT1, sH), 's_add_u32 s%d, s%d, s%d' % (sBo[0], sBo[0], sT1)]
        for j in range(1, 4):
            L.append('s_add_u32 s%d, s%d, %d' % (sBo[j], sBo[0], j * 32768 - j * 1024))
        L += self.a_dma_addr(1024, sRot)
        t0, t1 = vT0, vT1
        L += ['v_lshrrev_b32 v%d, 4, v1' % t0, 'v_and_b32 v%d, 15, v1' % t1,
              'v_lshlrev_b32 v%d, 1, v%d' % (vB[1], t0), 'v_xor_b32 v%d, v%d, v%d' % (t1, t1, vB[1]),
              'v_lshl_add_u32 v%d, s%d, 6, v%d' % (t0, sRot, t0),
              'v_lshlrev_b32 v%d, 13, v%d' % (t0, t0), 'v_lshl_add_u32 v%d, v%d, 4, v%d' % (vB[0], t1, t0),
              'v_xor_b32 v%d, 0x80, v%d' % (vB[1], vB[0])]
        vLN = 40 if self.opt.get('np') != 2 else 6
        L += ['s_lshl_b32 s%d, s2, 2' % sT2, 's_add_u32 s%d, s%d, s%d' % (sT2, sT2, sW),
              's_lshl_b32 s%d, s%d, 1' % (sT1, sT2),
              'v_lshrrev_b32 v%d, 5, v1' % t0, 'v_add_u32 v%d, s%d, v%d' % (t0, sT1, t0),
              's_movk_i32 s%d, 1280' % sT1, 'v_mul_lo_u32 v%d, v%d, s%d' % (t0, t0, sT1), 'v_and_b32 v%d, 31, v1' % t1,
              'v_lshl_add_u32 v%d, v%d, 4, v%d' % (vLN, t1, t0), 'v_lshl_add_u32 v%d, v%d, 3, v%d' % (vLN + 1, t1, t0)]
        L += ['s_waitcnt lgkmcnt(0)']
        if self.SO: L += ['s_memrealtime s[94:95]']
        if self.opt.get('np') == 2: return L + self.prologue3()
        if self.opt.get('np'): return L + self.prologue2(vLN)
        L += srd(S_B0, pUK, pUK + 1, 512 * 8192) + srd(S_B1, pUV, pUV + 1, 512 * 8192) + srd(S_A, pC, pC + 1, 2048 * 1024)
        L += srd(S_X, pX, pX + 1, 2048 * 1280)
        LNL, LNX, LNT = 44, 56, 80
        d0 = self.dma1(0)
        L += flat(d0)
        if self.SO: L += ['s_memrealtime s[92:93]']
        L += srd_off(S_FL, pWS, WS_FL, 32768 + 4) + ['s_buffer_load_dword s%d, %s, 0x8000' % (sEp, s4(S_FL))]
        L += ['buffer_load_dwordx4 v[%d:%d], v%d, %s, 0 offen' % (LNL, LNL + 3, vLN, s4(S_X)),
              'buffer_load_dwordx4 v[%d:%d], v%d, %s, 0 offen offset:512' % (LNL + 4, LNL + 7, vLN, s4(S_X)),
              'buffer_load_dwordx2 v[%d:%d], v%d, %s, 0 offen offset:1024' % (LNL + 8, LNL + 9, vLN + 1, s4(S_X))]
        L += flat(self.dma1(1))
        L += self.stamp(0) + self.stamp(14, True)
        if self.SO: L += ['v_writelane_b32 v%d, s96, 46' % vSTAMP, 'v_writelane_b32 v%d, s94, 47' % vSTAMP, 'v_writelane_b32 v%d, s92, 63' % vSTAMP]
        if self.opt.get('codepf', True):
            L += ['s_getpc_b64 s[%d:%d]' % (S_W, S_W + 1), self.lab('pc') + ':', 'v_lshlrev_b32 v34, 7, v0']
            for i in range(self.opt.get('codepf_n', 2)):
                L += ['v_min_u32 v32, %s-%s-4, v34' % (self.lab('end'), self.lab('pc')), 'v_mov_b32 v33, s%d' % (S_W + 1),
                      'v_add_co_u32 v32, vcc, s%d, v32' % S_W, 'v_addc_co_u32 v33, vcc, 0, v33, vcc',
                      'global_load_dword a%d, v[32:33], off' % (112 + i), 'v_add_u32 v34, 0x8000, v34']
        L += ['s_cmp_lt_u32 s%d, 640' % sT2,
              's_cselect_b32 s%d, s%d, s%d' % (S_W, pWO, pWD), 's_cselect_b32 s%d, s%d, s%d' % (S_W + 1, pWO + 1, pWD + 1),
              's_mov_b32 s%d, 0x%x' % (S_W + 2, 1728 * 1280), 's_cmov_b32 s%d, 0x%x' % (S_W + 2, 4096 * 1280),
              's_cselect_b32 s%d, 0, 640' % sT0, 's_mov_b32 s%d, 0x00020000' % (S_W + 3)]
        L += ['s_sub_u32 s%d, s%d, s%d' % (sT0, sT2, sT0),
              's_mul_i32 s%d, s%d, 52429' % (sT1, sT0), 's_lshr_b32 s%d, s%d, 18' % (sT1, sT1),
              's_mul_i32 s3, s%d, 5' % sT1, 's_sub_u32 s%d, s%d, s3' % (sT0, sT0),
              's_mul_i32 s%d, s%d, %d' % (sT1, sT1, 32 * 1280), 's_lshl_b32 s%d, s%d, 8' % (sT0, sT0),
              's_add_u32 s%d, s%d, s%d' % (sT0, sT0, sT1),
              'v_lshrrev_b32 v36, 4, v1', 's_movk_i32 s3, 1280', 'v_mul_lo_u32 v36, v36, s3', 'v_and_b32 v37, 15, v1',
              'v_lshl_add_u32 v36, v37, 4, v36', 'v_add_u32 v36, s%d, v36' % sT0]
        for j in range(8 if not self.opt.get('now') else 0):
            if j % 4 == 0:
                L.append('s_add_u32 m0, s%d, %d' % (sMA, 0x10000 + j * 1024))
            L += ['s_mov_b32 s3, %d' % (j * 4 * 1280 - (j % 4) * 1024),
                  ('buffer_load_dwordx4 v36, %s, s3 offen offset:%d lds' % (s4(S_W), (j % 4) * 1024), 'wt')]
        L += ['s_lshl_b32 s%d, s%d, 13' % (sT0, sT2), 's_add_u32 s%d, s%d, 0x%x' % (sT0, sT0, WS_W),
              's_cmp_lt_u32 s%d, 910' % sT2, 's_cselect_b32 s%d, 8192, 0' % sT1]
        self.w_srd = srd_off(S_W, pWS, 's%d' % sT0, 's%d' % sT1)
        L += self.w_srd
        L += self.read_addrs()
        L += srd_off(S_ST, pWS, WS_XN, 2048 * 1280)
        L += ['s_mul_i32 s%d, s%d, 0x9e3779b1' % (sBase, sEp), 'v_mov_b32 v%d, s%d' % (vBASE, sBase)]
        L += self.stamp(12) + layernorm(LNL, LNX, LNT, sMask) + self.stamp(18)
        L += ['buffer_store_dwordx4 v[%d:%d], v%d, %s, 0 offen sc1' % (LNL, LNL + 3, vLN, s4(S_ST)),
              'buffer_store_dwordx4 v[%d:%d], v%d, %s, 0 offen offset:512 sc1' % (LNL + 4, LNL + 7, vLN, s4(S_ST)),
              ('buffer_store_dwordx2 v[%d:%d], v%d, %s, 0 offen offset:1024 sc1' % (LNL + 8, LNL + 9, vLN + 1, s4(S_ST)), 'xn')]
        return L

    def w_block(self, v, t):
        su = ['s_lshl_b32 s%d, s2, 2' % sT2, 's_add_u32 s%d, s%d, s%d' % (sT2, sT2, sW), 's_mov_b32 s%d, 0x%x' % (S_W + 2, 1728 * 1280), 's_cmp_lt_u32 s%d, 640' % sT2,
              's_cselect_b32 s%d, s%d, s%d' % (S_W, pWO, pWD), 's_cselect_b32 s%d, s%d, s%d' % (S_W + 1, pWO + 1, pWD + 1),
              's_cmov_b32 s%d, 0x%x' % (S_W + 2, 4096 * 1280), 's_cselect_b32 s%d, 0, 640' % sT0, 's_mov_b32 s%d, 0x00020000' % (S_W + 3),
              's_sub_u32 s%d, s%d, s%d' % (sT0, sT2, sT0), 's_mul_i32 s%d, s%d, 52429' % (sT1, sT0), 's_lshr_b32 s%d, s%d, 18' % (sT1, sT1),
              's_mul_i32 s3, s%d, 5' % sT1, 's_sub_u32 s%d, s%d, s3' % (sT0, sT0),
              's_mul_i32 s%d, s%d, %d' % (sT1, sT1, 32 * 1280), 's_lshl_b32 s%d, s%d, 8' % (sT0, sT0), 's_add_u32 s%d, s%d, s%d' % (sT0, sT0, sT1),
              'v_lshrrev_b32 v%d, 4, v1' % v, 'v_mul_u32_u24 v%d, 1280, v%d' % (v, v), 'v_and_b32 v%d, 15, v1' % t,
              'v_lshl_add_u32 v%d, v%d, 4, v%d' % (v, t, v), 'v_add_u32 v%d, s%d, v%d' % (v, sT0, v)]
        ld = []
        for j in range(8):
            it = ['s_add_u32 m0, s%d, %d' % (sMA, 0x10000 + j * 1024)] if j % 4 == 0 else []
            ld.append((it + ['s_mov_b32 s%d, %d' % (sT1, j * 4 * 1280 - (j % 4) * 1024)],
                       ('buffer_load_dwordx4 v%d, %s, s%d offen offset:%d%s lds' % (v, s4(S_W), sT1, (j % 4) * 1024, self.opt.get('wfl', '')), 'wt')))
        sw = ['s_lshl_b32 s%d, s%d, 13' % (sT0, sT2), 's_add_u32 s%d, s%d, 0x%x' % (sT0, sT0, WS_W),
              's_cmp_lt_u32 s%d, 910' % sT2, 's_cselect_b32 s%d, 8192, 0' % sT1] + srd_off(S_W, pWS, 's%d' % sT0, 's%d' % sT1)
        return su, ld, sw
    def touchA(self, v, t, d, dst):
        return ['s_lshr_b32 s3, s2, 3', 's_lshl_b32 s3, s3, 2', 's_add_u32 s3, s3, s%d' % sW, 's_lshl_b32 s3, s3, 14',
                'v_lshrrev_b32 v%d, 4, v1' % v, 'v_add_u32 v%d, s%d, v%d' % (v, sRot, v), 'v_add_u32 v%d, %d, v%d' % (v, d & 7, v), 'v_and_b32 v%d, 7, v%d' % (v, v),
                'v_and_b32 v%d, 15, v1' % t, 'v_lshl_add_u32 v%d, v%d, 3, v%d' % (v, t, v), 'v_lshlrev_b32 v%d, 7, v%d' % (v, v),
                'buffer_load_dword a%d, v%d, %s, s3 offen' % (dst, v, s4(S_A))]
    def touchB(self, v, t, dst):
        R = self.opt.get('rot1', 1)
        L = ['s_cmp_lt_u32 s%d, 2' % sW, 's_cselect_b32 s%d, s%d, s%d' % (S_W, pUK, pUV), 's_cselect_b32 s%d, s%d, s%d' % (S_W + 1, pUK + 1, pUV + 1),
             's_mov_b32 s%d, 0x%x' % (S_W + 2, 512 * 8192), 's_mov_b32 s%d, 0x00020000' % (S_W + 3),
             's_and_b32 s3, s%d, 1' % sW, 's_lshl_b32 s%d, s%d, 1' % (sT0, sI), 's_add_u32 s3, s3, s%d' % sT0, 's_lshl_b32 s3, s3, 7', 's_add_u32 s3, s3, s%d' % sH, 's_lshl_b32 s3, s3, 8']
        L += ['v_lshrrev_b32 v%d, 3, v1' % v, 'v_add_u32 v%d, %d, v%d' % (v, 2 * R, v)]
        if R > 1:
            sh = {2: 1, 4: 2}[R]
            L += ['v_and_b32 v%d, %d, v%d' % (t, R - 1, v), 'v_lshrrev_b32 v%d, %d, v%d' % (v, sh, v), 'v_lshl_add_u32 v%d, v%d, %d, v%d' % (v, t, 3 - sh, v),
                  'v_cmp_gt_u32 vcc, %d, v1' % (64 - 16 * R), 'v_mov_b32 v%d, 8' % t, 'v_cndmask_b32 v%d, v%d, v%d, vcc' % (v, t, v)]
        L += ['v_bfe_u32 v%d, v1, 1, 2' % t, 'v_lshl_add_u32 v%d, v%d, 6, v%d' % (v, v, t), 'v_and_b32 v%d, 1, v1' % t, 'v_lshl_add_u32 v%d, v%d, 6, v%d' % (v, v, t),
              'v_lshlrev_b32 v%d, 7, v%d' % (v, v), 'buffer_load_dword a%d, v%d, %s, s3 offen' % (dst, v, s4(S_W))]
        return L
    def prologue2(self, vLN):
        o = self.opt
        LNL, LNX, LNT = 44, 56, 80
        xl = srd(S_X, pX, pX + 1, 2048 * 1280) + \
             ['buffer_load_dwordx4 v[%d:%d], v%d, %s, 0 offen' % (LNL, LNL + 3, vLN, s4(S_X)),
              'buffer_load_dwordx4 v[%d:%d], v%d, %s, 0 offen offset:512' % (LNL + 4, LNL + 7, vLN, s4(S_X)),
              'buffer_load_dwordx2 v[%d:%d], v%d, %s, 0 offen offset:1024' % (LNL + 8, LNL + 9, vLN + 1, s4(S_X))]
        d0 = srd(S_B0, pUK, pUK + 1, 512 * 8192) + srd(S_B1, pUV, pUV + 1, 512 * 8192) + srd(S_A, pC, pC + 1, 2048 * 1024) + flat(self.dma1(0))
        cp = ['s_getpc_b64 s[%d:%d]' % (S_W, S_W + 1), self.lab('pc') + ':', 's_lshr_b32 s3, s2, 3', 's_lshl_b32 s3, s3, 2', 's_add_u32 s3, s3, s%d' % sW,
              'v_lshl_add_u32 v34, v1, 7, s3', 'v_lshlrev_b32 v34, 7, v34', 'v_mov_b32 v33, s%d' % (S_W + 1),
              'v_cmp_gt_u32 vcc, %s-%s-4, v34' % (self.lab('end'), self.lab('pc')), 's_and_saveexec_b64 s[%d:%d], vcc' % (S_W + 2, S_W + 3),
              'v_add_co_u32 v32, vcc, s%d, v34' % S_W, 'v_addc_co_u32 v33, vcc, 0, v33, vcc',
              'global_load_dword a112, v[32:33], off', 's_mov_b64 exec, -1']
        L = xl + d0 if o.get('xfirst', 1) else d0 + xl
        if self.SO: L += ['s_memrealtime s[92:93]']
        L += srd_off(S_FL, pWS, WS_FL, 32768 + 4) + ['s_buffer_load_dword s%d, %s, 0x8000' % (sEp, s4(S_FL))]
        L += cp
        d1 = self.dma1(1)
        n0, n1 = o.get('d1a', 0), o.get('d1pre', 16)
        L += flat(d1[:n0])
        L += self.read_addrs()
        L += srd_off(S_ST, pWS, WS_XN, 2048 * 1280)
        L += self.stamp(0) + self.stamp(14, True)
        if self.SO: L += ['v_writelane_b32 v%d, s96, 46' % vSTAMP, 'v_writelane_b32 v%d, s94, 47' % vSTAMP, 'v_writelane_b32 v%d, s92, 63' % vSTAMP]
        L += ['s_mul_i32 s%d, s%d, 0x9e3779b1' % (sBase, sEp), 'v_mov_b32 v%d, s%d' % (vBASE, sBase)]
        L += layernorm(LNL, LNX, LNT, sMask) + self.stamp(12)
        L += ['buffer_store_dwordx4 v[%d:%d], v%d, %s, 0 offen sc1' % (LNL, LNL + 3, vLN, s4(S_ST)),
              'buffer_store_dwordx4 v[%d:%d], v%d, %s, 0 offen offset:512 sc1' % (LNL + 4, LNL + 7, vLN, s4(S_ST)),
              ('buffer_store_dwordx2 v[%d:%d], v%d, %s, 0 offen offset:1024 sc1' % (LNL + 8, LNL + 9, vLN + 1, s4(S_ST)), 'xn')]
        L += flat(d1[n0:n1])
        self.d1rest = d1[n1:]
        assert n1 >= 2
        if o.get('tch', 1) == 1:
            if o.get('rot1', 8) < 4: L += self.touchB(100, 101, 113)
            L += self.touchA(102, 103, 0, 114)
        L += self.stamp(18)
        return L

    def code_pf(self):
        return ['s_getpc_b64 s[%d:%d]' % (S_W, S_W + 1), self.lab('pc') + ':', 's_lshr_b32 s3, s2, 3', 's_lshl_b32 s3, s3, 2', 's_add_u32 s3, s3, s%d' % sW,
                'v_lshl_add_u32 v34, v1, 7, s3', 'v_lshlrev_b32 v34, 7, v34', 'v_mov_b32 v33, s%d' % (S_W + 1),
                'v_cmp_gt_u32 vcc, %s-%s-4, v34' % (self.lab('end'), self.lab('pc')), 's_and_saveexec_b64 s[%d:%d], vcc' % (S_W + 2, S_W + 3),
                'v_add_co_u32 v32, vcc, s%d, v34' % S_W, 'v_addc_co_u32 v33, vcc, 0, v33, vcc',
                'global_load_dword a112, v[32:33], off', 's_mov_b64 exec, -1']
    def touch_setup(self):
        R = self.opt.get('rot1', 1)
        sh = {1: 0, 2: 1, 4: 2, 8: 3}[R]
        nw = self.opt.get('twn', 16)
        big = 'v_mov_b32 v39, 0x7fff0000'
        msk = lambda n, a: ['v_cmp_gt_u32 vcc, %d, v1' % n, 's_nop 0', 'v_cndmask_b32 v36, v39, v36, vcc', 'v_accvgpr_write_b32 a%d, v36' % a]
        L = [big, 's_lshr_b32 s3, s2, 3', 's_lshl_b32 s3, s3, 2', 's_add_u32 s3, s3, s%d' % sW, 's_lshl_b32 s3, s3, 4', 'v_add_lshl_u32 v36, s3, v1, 10'] + msk(16, aTA)
        L += ['s_cmp_lt_u32 s%d, 2' % sW, 's_cselect_b32 s%d, s%d, s%d' % (S_W, pUK, pUV), 's_cselect_b32 s%d, s%d, s%d' % (S_W + 1, pUK + 1, pUV + 1),
              's_mov_b32 s%d, 0x%x' % (S_W + 2, 512 * 8192), 's_mov_b32 s%d, 0x00020000' % (S_W + 3),
              's_and_b32 s3, s%d, 1' % sW, 's_lshr_b32 s%d, s%d, %d' % (sT0, sI, sh), 's_lshl_b32 s%d, s%d, 1' % (sT0, sT0), 's_add_u32 s3, s3, s%d' % sT0,
              's_lshl_b32 s3, s3, %d' % (7 + sh), 's_add_u32 s3, s3, s%d' % sH, 's_lshl_b32 s3, s3, 1',
              'v_lshrrev_b32 v36, 1, v1', 'v_and_b32 v37, 1, v1', 'v_lshl_add_u32 v36, v36, 6, v37', 'v_add_lshl_u32 v36, s3, v36, 7'] + msk(8 * R, aTB)
        S = S_B2
        L += ['s_cmp_eq_u32 s%d, 2' % sW, 's_cselect_b32 s%d, s%d, s%d' % (S, pWG, pWU), 's_cselect_b32 s%d, s%d, s%d' % (S + 1, pWG + 1, pWU + 1),
              's_cmp_lt_u32 s%d, 27' % sFB, 's_cselect_b32 s%d, 0x%x, 0' % (S + 2, 640 * 3456), 's_mov_b32 s%d, 0x00020000' % (S + 3),
              's_lshl_b32 s%d, s%d, 1' % (sT0, sH), 's_add_u32 s%d, s%d, s%d' % (sT0, sT0, sW), 's_movk_i32 s%d, 3456' % sTWs,
              's_cmp_lt_u32 s%d, 2' % sW, 's_cmov_b32 s%d, s%d' % (S, pWQ), 's_cmov_b32 s%d, s%d' % (S + 1, pWQ + 1), 's_cmov_b32 s%d, 0x%x' % (S + 2, 640 * 8192),
              's_cselect_b32 s%d, s%d, s%d' % (sT0, sT0, sFB), 's_cmov_b32 s%d, 8192' % sTWs,
              's_mul_i32 s3, s%d, 80' % sI, 'v_add_u32 v36, s3, v1', 'v_mul_lo_u32 v36, v36, s%d' % sTWs,
              's_lshl_b32 s%d, s%d, 7' % (sTW, sT0), 's_mul_i32 s%d, s%d, %d' % (sTWs, sTWs, nw)] + msk(nw, aTW)
        return L
    def touch_ab(self, d, b=True):
        L = ['s_add_u32 s3, s%d, %d' % (sRot, d), 's_and_b32 s3, s3, 7', 's_lshl_b32 s3, s3, 7', 'v_accvgpr_read_b32 v%d, a%d' % (vT0, aTA),
             'buffer_load_dword a113, v%d, %s, s3 offen' % (vT0, s4(S_A))]
        if b: L += ['s_lshl_b32 s3, s3, 12', 'v_accvgpr_read_b32 v%d, a%d' % (vT0, aTB), 'buffer_load_dword a114, v%d, %s, s3 offen' % (vT0, s4(S_W))]
        return [l.replace(' a113,', ' a%d,' % self.dummy()).replace(' a114,', ' a%d,' % self.dummy()) for l in L]
    def touch_w(self):
        return ['v_accvgpr_read_b32 v%d, a%d' % (vT0, aTW), 'buffer_load_dword a%d, v%d, %s, s%d offen' % (self.dummy(), vT0, s4(S_B2), sTW), 's_add_u32 s%d, s%d, s%d' % (sTW, sTW, sTWs)]
    def dummy(self):
        self.ndum = getattr(self, 'ndum', 0) + 1
        return 124 + self.ndum % 96
    def prologue3(self):
        o = self.opt
        R = o.get('rot1', 1)
        d0 = srd(S_B0, pUK, pUK + 1, 512 * 8192) + srd(S_A, pC, pC + 1, 2048 * 1024) + srd(S_B1, pUV, pUV + 1, 512 * 8192)
        dd = self.dma1(0) + self.dma1(1)
        n0, n1 = o.get('d0a', 16), 16 + o.get('d1pre', 16)
        L = d0 + flat(dd[:n0])
        if self.SO: L += ['s_memrealtime s[92:93]']
        L += srd_off(S_FL, pWS, WS_FL, 32768 + 4) + ['s_buffer_load_dword s%d, %s, 0x8000' % (sEp, s4(S_FL))]
        L += self.code_pf()
        ra = self.read_addrs(True)
        L += ra[0] + self.touch_setup()
        self.late_addrs = ra[1:]
        L += srd_off(S_ST, pWS, WS_XN, 2048 * 1280) + srd(S_X, pX, pX + 1, 2048 * 1280)
        L += self.stamp(0) + self.stamp(14, True)
        if self.SO: L += ['v_writelane_b32 v%d, s96, 46' % vSTAMP, 'v_writelane_b32 v%d, s94, 47' % vSTAMP, 'v_writelane_b32 v%d, s92, 63' % vSTAMP]
        L += flat(dd[n0:n1])
        self.d1rest = dd[n1:]
        assert n1 >= 18
        for d in range(o.get('tlead', 1)): L += self.touch_ab(d, 2 + d < 8 // R)
        L += self.stamp(18)
        return L
    def layernorm2(self, L, m, a0, a1, u0, u1):
        un = lambda i, x, y: ['v_lshlrev_b32 v%d, 16, v%d' % (x, L + i), 'v_and_b32 v%d, s%d, v%d' % (y, sMask, L + i)]
        o = un(0, m, a1)
        for i in range(1, 10): o += un(i, u0, u1) + ['v_add_f32 v%d, v%d, v%d' % (m, m, u0), 'v_add_f32 v%d, v%d, v%d' % (a1, a1, u1)]
        o += ['v_add_f32 v%d, v%d, v%d' % (m, m, a1)] + half_reduce(m, a1) + ['v_mul_f32 v%d, 0x3acccccd, v%d' % (m, m)]
        for i in range(10):
            o += un(i, u0, u1) + ['v_sub_f32 v%d, v%d, v%d' % (u, u, m) for u in (u0, u1)]
            o += ['v_%s_f32 v%d, v%d, v%d' % ('fmac' if i else 'mul', a, u, u) for a, u in ((a0, u0), (a1, u1))]
        o += ['v_add_f32 v%d, v%d, v%d' % (a0, a0, a1)] + half_reduce(a0, a1) + ['v_mul_f32 v%d, 0x3acccccd, v%d' % (a0, a0)]
        o += ['v_cvt_pk_bf16_f32 v%d, v%d, v%d' % (a1, m, a0), 'v_lshlrev_b32 v%d, 16, v%d' % (m, a1), 'v_and_b32 v%d, s%d, v%d' % (a0, sMask, a1),
              'v_add_f32 v%d, 0x3727c5ac, v%d' % (a0, a0), 'v_cvt_pk_bf16_f32 v%d, v%d, v%d' % (a0, a0, a0), 'v_lshlrev_b32 v%d, 16, v%d' % (a0, a0),
              'v_sqrt_f32 v%d, v%d' % (a0, a0), 'v_cvt_pk_bf16_f32 v%d, v%d, v%d' % (a0, a0, a0), 'v_lshlrev_b32 v%d, 16, v%d' % (a0, a0), 'v_rcp_f32 v%d, v%d' % (a0, a0)]
        for i in range(10):
            o += un(i, u0, u1) + ['v_sub_f32 v%d, v%d, v%d' % (u, u, m) for u in (u0, u1)] + ['v_cvt_pk_bf16_f32 v%d, v%d, v%d' % (L + i, u0, u1)]
            o += un(i, u0, u1) + ['v_mul_f32 v%d, v%d, v%d' % (u, u, a0) for u in (u0, u1)] + ['v_cvt_pk_bf16_f32 v%d, v%d, v%d' % (L + i, u0, u1)]
        return o
    def extras3(self, S, bar):
        o = self.opt
        R = o.get('rot1', 1)
        tl = o.get('tlead', 1)
        LNL, vLN = 16, 6
        g0 = o.get('tg', 42)
        tw0, nw = o.get('tw0', 1), 80 // o.get('twn', 16)
        xs = o.get('xs', 0)
        gl = {}
        for t in range(7):
            it = []
            if t + 2 + tl < 8: it += self.touch_ab(tl, t + 2 + tl < 8 // R)
            if tw0 <= t < tw0 + nw: it += self.touch_w()
            if t == xs:
                it += ['buffer_load_dwordx4 v[%d:%d], v%d, %s, 0 offen' % (LNL, LNL + 3, vLN, s4(S_X)),
                       'buffer_load_dwordx4 v[%d:%d], v%d, %s, 0 offen offset:512' % (LNL + 4, LNL + 7, vLN, s4(S_X)),
                       'buffer_load_dwordx2 v[%d:%d], v%d, %s, 0 offen offset:1024' % (LNL + 8, LNL + 9, vLN + 1, s4(S_X))]
            g = t * 128 + g0
            for l in it:
                g = S.flow([l], g)
                if l.startswith('buffer'): g += o.get('tsp', 3)
            gl[t] = g
        assert tw0 + nw <= 6
        S.flow(['s_mul_i32 s%d, s%d, 0x9e3779b1' % (sBase, sEp), 'v_mov_b32 v%d, s%d' % (vBASE, sBase)], bar(0) + 1)
        g = S.flow(self.layernorm2(LNL, 10, 11, 27, 28, vT1), bar(xs + 1) + 1)
        for l in ['buffer_store_dwordx4 v[%d:%d], v%d, %s, 0 offen sc1' % (LNL, LNL + 3, vLN, s4(S_ST)),
                  'buffer_store_dwordx4 v[%d:%d], v%d, %s, 0 offen offset:512 sc1' % (LNL + 4, LNL + 7, vLN, s4(S_ST)),
                  ('buffer_store_dwordx2 v[%d:%d], v%d, %s, 0 offen offset:1024 sc1' % (LNL + 8, LNL + 9, vLN + 1, s4(S_ST)), 'xn')]:
            g = S.flow([l], g + 2)
        tf = o.get('xnf', xs + 4)
        if o.get('verbose'): print('xn stores end', divmod(g, 128))
        assert g < bar(tf)
        S.at(bar(tf), [('@vmwait', 'xn')], front=True)
        S.flow([self.flag(1)], bar(tf) + 1)
        t = g // 128 + 1
        g = S.flow(self.keep_vcc(self.late_addrs[0]), gl[t] + 1)
        assert g < bar(t) and t < 5, (t, g)
        wt = o.get('wdma', 5)
        v = vSTK
        su, ld, sw = self.w_block(v, vT0)
        su = su[:-3] + ['v_lshrrev_b32 v%d, 3, v1' % vT0, 'v_xor_b32 v%d, v%d, v1' % (vT0, vT0), 'v_and_b32 v%d, 1, v1' % vT1, 'v_and_or_b32 v%d, v%d, 14, v%d' % (vT0, vT0, vT1)] + su[-2:]
        g = S.flow(self.keep_scc(su), gl[wt] + 1)
        per = o.get('wper', 3)
        for j, (pre, l) in enumerate(ld):
            ts = wt + j // per
            if j % per == 0 and j: g = ts * 128 + g0
            pre = ['s_add_u32 m0, s%d, %d' % (sMA, 0x10000 + (j & 4) * 1024), pre[-1].replace('s%d,' % sT1, 's%d,' % sSO)]
            if j: pre.append('v_xor_b32 v%d, 0x80, v%d' % (v, v))
            g = S.flow(pre, g + 1)
            g = S.flow([(l[0].replace(', s%d offen' % sT1, ', s%d offen' % sSO), l[1])], g + 1)
            assert g < bar(ts), (j, g)
            g += o.get('wdsp', 4)
        assert ts <= 7
        g = S.flow(self.late_addrs[1], max(g, 7 * 128 + g0))
        assert g < bar(7) - 6
        tr = o.get('wtr', 9)
        va, vs = vRA1
        sw = ['s_lshl_b32 s%d, s2, 2' % sT2, 's_add_u32 s%d, s%d, s%d' % (sT2, sT2, sW)] + sw
        rd = self.keep_scc(sw) + ['v_lshrrev_b32 v%d, 2, v1' % va, 'v_lshlrev_b32 v%d, 8, v%d' % (va, va), 'v_and_b32 v%d, 31, v1' % vs,
              'v_lshl_add_u32 v%d, v%d, 3, v%d' % (va, vs, va), 's_add_u32 s3, s%d, 0x10000' % sMA, 'v_add_u32 v%d, s3, v%d' % (va, va), 'v_lshlrev_b32 v%d, 4, v1' % vs, 's_movk_i32 s%d, 4096' % sT0]
        for q in range(8):
            if q: rd.append('v_xor_b32 v%d, %d, v%d' % (va, (q ^ (q - 1)) * 32, va))
            rd += ['ds_read_b64_tr_b16 %s, v%d offset:%d' % (ar(224 + 4 * q + 2 * j, 2), va, j * 4096) for j in range(2)]
        S.flow(rd, tr * 128 + 2)
        self.wstores = [('buffer_store_dwordx4 %s, v%d, %s, %s offen offset:%d sc1' % (ar(224 + 4 * q, 4), vs, s4(S_W), '0' if q < 4 else 's%d' % sT0, (q & 3) * 1024), 'kv') for q in range(8)]
    def keep_vcc(self, lines):
        out = []
        on = False
        for l in lines:
            if l.startswith('v_cmp'): out.append([l]); on = True
            elif on:
                out[-1].append(l)
                if l.startswith('v_cndmask'): on = False
            else: out.append(l)
        return out

    def a_dma_addr(self, stride, rot):
        t0, t1 = vT0, vT1
        return ['v_lshrrev_b32 v%d, 3, v1' % t0, 's_movk_i32 s3, %d' % stride, 'v_mul_lo_u32 v%d, v%d, s3' % (t0, t0),
                'v_lshl_add_u32 v%d, s%d, 7, v%d' % (t0, rot, t0),
                'v_lshrrev_b32 v%d, 4, v1' % t1, 'v_and_b32 v%d, 7, v1' % vA[1], 'v_xor_b32 v%d, v%d, v%d' % (t1, t1, vA[1]),
                'v_lshl_add_u32 v%d, v%d, 4, v%d' % (vA[0], t1, t0), 'v_xor_b32 v%d, 4, v%d' % (t1, t1),
                'v_lshl_add_u32 v%d, v%d, 4, v%d' % (vA[1], t1, t0), 'v_add_u32 v%d, %d, v%d' % (vA[1], 8 * stride - 1024, vA[1])]

    def read_addrs(self, split=False):
        t0, t1 = vT0, vT1
        L = []
        L += ['v_and_b32 v%d, 15, v1' % t0, 'v_lshrrev_b32 v%d, 1, v%d' % (t1, t0), 'v_lshrrev_b32 v%d, 4, v1' % vRA1[0],
              'v_xor_b32 v%d, v%d, v%d' % (t1, t1, vRA1[0]), 'v_lshlrev_b32 v%d, 7, v%d' % (t0, t0),
              'v_lshl_add_u32 v%d, v%d, 4, v%d' % (t0, t1, t0),
              's_and_b32 s3, s%d, 1' % sW, 's_lshl_b32 s3, s3, 14', 's_add_u32 s3, s3, 0x10000',
              'v_add_u32 v%d, s3, v%d' % (vRA1[0], t0), 'v_xor_b32 v%d, 64, v%d' % (vRA1[1], vRA1[0])]
        L += ['v_lshrrev_b32 v%d, 4, v1' % t0, 'v_lshlrev_b32 v%d, 11, v%d' % (t0, t0),
              'v_bfe_u32 v%d, v1, 2, 2' % t1, 'v_lshl_add_u32 v%d, v%d, 8, v%d' % (t0, t1, t0),
              'v_bfe_u32 v%d, v1, 2, 3' % t1, 'v_lshl_add_u32 v%d, v%d, 5, v%d' % (t0, t1, t0),
              'v_and_b32 v%d, 3, v1' % t1, 'v_lshl_add_u32 v%d, v%d, 3, v%d' % (t0, t1, t0),
              's_lshr_b32 s3, s%d, 1' % sW, 's_lshl_b32 s3, s3, 7', 'v_xor_b32 v%d, s3, v%d' % (vRB[0], t0)]
        for nb in range(1, 4):
            L.append('v_xor_b32 v%d, %d, v%d' % (vRB[nb], nb * 32, vRB[0]))
        L += ['s_lshl_b32 s3, s2, 7', 'v_mov_b32 v%d, s3' % vFL, 'v_mov_b32 v%d, 0x7fff0000' % t0, 'v_cmp_eq_u32 vcc, 0, v0',
              's_nop 1', 'v_cndmask_b32 v%d, v%d, v%d, vcc' % (vFL, t0, vFL)]
        L0, L = L, []
        for nb in range(4, 8):
            L.append('v_xor_b32 v%d, %d, v%d' % (vRB[nb], nb * 32, vRB[0]))
        L += ['v_and_b32 v%d, 0x7ff, v%d' % (t0, vRA1[0]), 'v_add_u32 v%d, s%d, v%d' % (vRA2[0], sMA, t0), 'v_xor_b32 v%d, 64, v%d' % (vRA2[1], vRA2[0])]
        L += ['v_lshrrev_b32 v%d, 5, v1' % t0, 'v_lshlrev_b32 v%d, 12, v%d' % (t0, t0),
              'v_bfe_u32 v%d, v1, 4, 1' % t1, 'v_lshl_add_u32 v%d, v%d, 10, v%d' % (t0, t1, t0),
              'v_bfe_u32 v%d, v1, 2, 2' % t1, 'v_lshl_add_u32 v%d, v%d, 7, v%d' % (t0, t1, t0),
              'v_bfe_u32 v%d, v1, 3, 2' % t1, 'v_lshl_add_u32 v%d, v%d, 5, v%d' % (t0, t1, t0),
              'v_and_b32 v%d, 3, v1' % t1, 'v_lshl_add_u32 v%d, v%d, 3, v%d' % (vRG[0], t1, t0)]
        for nb in range(1, 4):
            L.append('v_xor_b32 v%d, %d, v%d' % (vRG[nb], nb * 32, vRG[0]))
        L += ['v_lshrrev_b32 v%d, 3, v1' % t0, 'v_lshl_add_u32 v%d, s%d, 6, v%d' % (t0, sRot2, t0), 's_movk_i32 s3, 3456', 'v_mul_lo_u32 v%d, v%d, s3' % (t0, t0),
              'v_bfe_u32 v%d, v1, 4, 1' % t1, 'v_lshlrev_b32 v%d, 1, v%d' % (t1, t1), 'v_and_b32 v%d, 7, v1' % vG[1],
              'v_xor_b32 v%d, v%d, v%d' % (t1, t1, vG[1]), 'v_lshl_add_u32 v%d, v%d, 4, v%d' % (vG[0], t1, t0),
              'v_xor_b32 v%d, 4, v%d' % (t1, t1), 'v_lshl_add_u32 v%d, v%d, 4, v%d' % (vG[1], t1, t0)]
        L += ['s_mul_i32 s%d, s%d, %d' % (sGo[0], sW, 16 * 3456), 's_lshl_b32 s3, s%d, 7' % sFB,
              's_add_u32 s%d, s%d, s3' % (sGo[0], sGo[0]), 's_add_u32 s%d, s%d, %d' % (sGo[1], sGo[0], 8 * 3456 - 1024)]
        L2 = ['s_lshr_b32 s3, s%d, 1' % sW, 's_lshl_b32 s3, s3, 11', 'v_lshl_add_u32 v%d, v1, 4, s3' % vSTK, 'v_add_u32 v%d, s3, v%d' % (vSTV, vSTK)]
        L += ['s_lshl_b32 s%d, s%d, 4' % (sT0, sI), 's_lshl_b32 s3, s%d, 2' % sW, 's_sub_u32 s%d, 240, s%d' % (sT1, sT0),
              's_add_u32 s%d, s%d, s3' % (sT0, sT0), 's_add_u32 s%d, s%d, s3' % (sT1, sT1),
              'v_mov_b32 v%d, s%d' % (t0, sT0), 'v_mov_b32 v%d, s%d' % (t1, sT1), 'v_cmp_lt_u32 vcc, 31, v1',
              'v_and_b32 v%d, 3, v1' % vPA, 's_nop 0', 'v_cndmask_b32 v%d, v%d, v%d, vcc' % (t0, t0, t1), 'v_add_lshl_u32 v%d, v%d, v%d, 7' % (vPA, vPA, t0)]
        return (L0, L, L2) if split else L0 + L + L2

    def dmaA(self, t, tag, fl):
        st = t & 1
        A = []
        for p in range(8):
            it = []
            if p % 4 == 0: it.append('s_add_u32 m0, s%d, %d' % (sMA, st * 32768 + (p >> 2) * 4096))
            it.append(('buffer_load_dwordx4 v%d, %s, s%d offen offset:%d%s lds' % (vA[p & 1], s4(S_A), sAo[p >> 1], (p & 3) * 1024, fl), tag))
            A.append(it)
        return A
    def dmaB(self, t, sub, S, tag, fl):
        st = t & 1
        B = []
        for j in range(4):
            it = []
            if j == 0: it.append('s_add_u32 m0, s%d, %d' % (sMB, st * 32768 + sub * 16384))
            it.append(('buffer_load_dwordx4 v%d, %s, s%d offen offset:%d%s lds' % (vB[j >> 1], s4(S), sBo[j], j * 1024, fl), tag))
            B.append(it)
        return B
    def rot_step(self, n):
        return [['s_add_u32 s%d, s%d, 1' % (sRot, sRot), 's_cmp_eq_u32 s%d, %d' % (sRot, n), 's_cselect_b32 s%d, %d, 1' % (sInc, 1 - n), 's_cmov_b32 s%d, 0' % sRot],
                's_lshl_b32 s%d, s%d, 19' % (sIncB, sInc)]
    def dma1(self, t):
        tag = 'dma%d' % t
        it = self.dmaB(t, 0, S_B0, tag, '') + self.dmaA(t, tag, '')[:4] + self.dmaB(t, 1, S_B1, tag, '') + self.dmaA(t, tag, '')[4:]
        it[1] = it[1] + self.rot_step(8)
        it[11] = it[11] + ['v_add_u32 v%d, s%d, v%d' % (vB[0], sIncB, vB[0]), 'v_add_u32 v%d, s%d, v%d' % (vB[1], sIncB, vB[1])]
        if t < 7: it[15] = it[15] + ['v_lshl_add_u32 v%d, s%d, 7, v%d' % (v, sInc, v) for v in vA]
        return it
    def dma2(self, t):
        tag = 'dma%d' % t
        st = t & 1
        G = []
        for j in range(4):
            it = []
            if j % 2 == 0: it.append('s_add_u32 m0, s%d, %d' % (sMB, st * 32768 + 16384 + (j >> 1) * 2048))
            it.append(('buffer_load_dwordx4 v%d, %s, s%d offen offset:%d lds' % (vG[j & 1], s4([S_B1, S_B2][j >> 1]), sGo[j & 1], (j & 1) * 1024), tag))
            G.append(it)
        A = self.dmaA(t, tag, self.opt.get('xnfl', ' sc1'))
        it = G + A[:4] + self.dmaB(t, 0, S_B0, tag, '') + A[4:]
        if t == 17: return it
        it[1] = it[1] + self.rot_step(10) + ['s_mul_i32 s%d, s%d, %d' % (sIncG, sInc, 64 * 3456)]
        it[5] = it[5] + ['v_add_u32 v%d, s%d, v%d' % (v, sIncG, v) for v in vG]
        it[11] = it[11] + ['v_add_u32 v%d, s%d, v%d' % (v, sIncB, v) for v in vB]
        it[15] = it[15] + ['v_lshl_add_u32 v%d, s%d, 7, v%d' % (v, sInc, v) for v in vA]
        return it
    def dmaKV(self, t):
        tag = 'dma%d' % t
        st = t & 1
        it = []
        for half in range(2):
            for p in range(8):
                x = []
                if p % 4 == 0:
                    x.append('s_add_u32 m0, s%d, %d' % (sMA, (half - 1) * 65536 + st * 32768 + (p >> 2) * 4096))
                x.append(('buffer_load_dwordx4 v%d, %s, s%d offen offset:%d sc1 lds' % (vA[p >> 2], s4(S_A), sAo[2 * st + half], (p & 3) * 1024), tag))
                it.append(x)
        return it

    def p1_tile(self, nb, mb):
        if nb < 4: p, b = (nb >> 1) * 8 + mb, nb & 1
        else: p, b = 16 + (nb - 4) * 4 + (mb >> 1), mb & 1
        if p < 28: return ('v', (144 if b else 32) + 4 * p)
        return ('a', 224 + (p - 28) * 8 + 4 * b)
    def p2_tile(self, nb, mb):
        k = nb * 4 + mb
        return ('a', 64 + 4 * k) if k < 40 else ('v', 160 + 4 * (k - 40))

    def gemms(self):
        o = self.opt
        S = Stream()
        subs = []
        for t in range(18):
            for ks in range(2):
                ph = 1 if t < 8 else 2
                base = S.n()
                subs.append((ph, t, ks, base))
                first = ks == 0 and t in (0, 8)
                ng, nm = (8, 8) if ph == 1 else (16, 4)
                for nb in range(ng):
                    for mb in (range(nm) if nb % 2 == 0 else reversed(range(nm))):
                        k, r = self.p1_tile(nb, mb) if ph == 1 else self.p2_tile(nb, mb)
                        d = vr(r, 4, k)
                        a, b = ar(self.fragA(ph, ks, mb), 4), ar(self.fragB(ph, nb), 4)
                        if ph == 2 or nb < 4: a, b = b, a
                        S.add('%s %s, %s, %s, %s' % (MF, d, a, b, '0' if first else d))
        BAR = o.get('bar', 39)
        pre = []
        self.sg, holes = [], set()
        if o.get('hole'):
            se, h0, hs, hn, H = o['hole']
            self.sg = [g for t in range(8, 17) for g in range(t * 128 + h0, t * 128 + h0 + hs * hn, hs) if g >= se][:40]
            holes = {g + k for g in self.sg for k in range(H + 1)}
        for si, (ph, t, ks, base) in enumerate(subs):
            ng, nm, ring = (8, 8, 4) if ph == 1 else (16, 4, 8)
            rdA = [self.readA(ph, t, ks, mb) for mb in range(nm)]
            rdB = [self.readB(ph, t, ks, nb) for nb in range(ng)]
            lo = -10 ** 9
            if ks == 0 and t > 0:
                lo = base - 64 + BAR
                S.at(lo, self.hop(t - 1) + [('@vmwait', 'dma%d' % t), 's_waitcnt lgkmcnt(0)', 's_barrier'])
            items = []
            for nb in range(ng):
                g = base + (nb - ring + 1) * nm - 1
                if t == 8 and ks == 0:
                    g = base - 64 + BAR if nb < 4 else max(g, base - 1)
                items.append((max(g, lo), 0, rdB[nb]))
            for mb in range(nm):
                if ks == 0: g = lo + 1 + 2 * mb
                else: g = base - 64 + 8 + mb * (40 // nm)
                items.append((g, 1, [rdA[mb]]))
            items.sort(key=lambda x: (x[0], x[1]))
            for g, _, ls in items:
                if g < 0: pre += ls
                else:
                    for l in ls:
                        while g in holes or S.load.get(g, 0) > 4: g += 1
                        gg = S.flow([(g, l)], g)
                        if ks == 1: assert gg < base + (34 if t < 8 else 36), (t, gg - base)
        if o.get('np'):
            for k, it in enumerate(self.d1rest):
                g = 1 + k * o.get('d1sp', 3)
                if isinstance(it[0], str) and it[0].startswith('s_add_u32 m0'):
                    S.at(g - 1, it[0]); it = it[1:]
                S.at(g, it[0], front=True)
                if len(it) > 1: S.flow(it[1:], g)
        for t in range(2, 20):
            g0 = (t - 2) * 128 + 64 + BAR
            its = self.dma1(t) if t < 8 else self.dma2(t) if t < 18 else self.dmaKV(t)
            if t == 19:
                S.at(g0, ['s_waitcnt lgkmcnt(0)', 's_barrier'])
            span = o.get('dspan', 64) if t < 19 else 22
            if o.get('nodma'): its = []
            if o.get('noA'): its = [x for x in its if not any(isinstance(y, tuple) and s4(S_A) in y[0] for y in x)]
            if t in (7, 17): span = min(span, 64)
            for k, it in enumerate(its):
                g = g0 + 2 + k * span // 16
                if it[0].startswith('s_add_u32 m0') if isinstance(it[0], str) else False:
                    S.at(g - 1, it[0]); it = it[1:]
                S.at(g, it[0], front=True)
                if len(it) > 1: S.flow(it[1:], g)
        self.extras(S, BAR)
        return pre, S

    def fragA(self, ph, ks, mb): return ks * 32 + mb * 4
    def fragB(self, ph, nb):
        if ph == 1: return 64 + (nb & 3) * 4
        s = nb & 7
        return 16 + s * 4 if s < 4 else 48 + (s - 4) * 4
    def readA(self, ph, t, ks, mb):
        return 'ds_read_b128 %s, v%d offset:%d' % (ar(self.fragA(ph, ks, mb), 4), (vRA1 if ph == 1 else vRA2)[ks], (t & 1) * 32768 + mb * 2048)
    def readB(self, ph, t, ks, nb):
        f = self.fragB(ph, nb)
        st = (t & 1) * 32768
        if ph == 1: v, off, dj = vRB[nb & 3], st + (nb >> 2) * 16384 + ks * 8192, 1024
        elif nb >= 8: v, off, dj = vRB[nb - 8], st + ks * 8192, 1024
        else: v, off, dj = vRG[nb >> 1], st + 16384 + ks * 8192 + (nb & 1) * 2048, 512
        return ['ds_read_b64_tr_b16 %s, v%d offset:%d' % (ar(f + 2 * j, 2), v, off + j * dj) for j in range(2)]

    def extras(self, S, BAR):
        o = self.opt
        bar = lambda t: t * 128 + 64 + BAR
        self.wstores = []
        if o.get('np') == 2: self.extras3(S, bar)
        else: self.extras1(S, bar)
        self.extras2(S, bar)
    def extras1(self, S, bar):
        o = self.opt
        S.at(bar(1), [('@vmwait', 'xn')], front=True)
        S.flow(self.flag(1), bar(1) + 1)
        wt = 0
        if o.get('np'):
            wt = o.get('wdma', 2)
            su, ld, sw = self.w_block(vT1, vT0)
            g = S.flow(self.keep_scc(su), wt * 128 + 42)
            for pre, l in ld:
                g = S.flow(pre, g + 1)
                g = S.flow([l], g + 1) + o.get('wdsp', 2)
            g = S.flow(self.keep_scc(sw), g)
            assert g < bar(wt), g - wt * 128
            if o.get('tch', 1):
                ts = o.get('tA', 1)
                assert ts != wt and ts != o.get('wpf') and ts != wt + 2
                S.flow(self.touchA(vT1, vT0, 6 - ts - 2, 117), ts * 128 + 44)
            if o.get('tch', 1) == 2:
                g = S.flow(self.keep_scc(self.touchB(vT1, vT0, 113)), 44) if o.get('rot1', 8) < 4 else 44
                S.flow(self.touchA(vT1, vT0, 0, 114), g + 1)
        rd = ['v_lshrrev_b32 v%d, 2, v1' % vT1, 'v_lshlrev_b32 v%d, 8, v%d' % (vT1, vT1), 'v_and_b32 v%d, 3, v1' % vT0,
              'v_lshl_add_u32 v%d, v%d, 3, v%d' % (vT1, vT0, vT1), 's_add_u32 s3, s%d, 0x10000' % sMA, 'v_add_u32 v%d, s3, v%d' % (vT1, vT1)]
        for q in range(8):
            for j in range(2):
                rd.append('ds_read_b64_tr_b16 %s, v%d offset:%d' % (ar(80 + 4 * q + 2 * j, 2), vT1, q * 32 + j * 4096))
        g = S.flow(rd, (wt + 2) * 128 + 44, cap=4)
        stv = ['v_lshlrev_b32 v%d, 4, v1' % vT0, 's_movk_i32 s%d, 4096' % sSO]
        g = S.flow(stv, g + 1)
        for q in range(8 if not o.get('now') else 0):
            S.flow([('buffer_store_dwordx4 %s, v%d, %s, %s offen offset:%d sc1' % (ar(80 + 4 * q, 4), vT0, s4(S_W), '0' if q < 4 else 's%d' % sSO, (q & 3) * 1024), 'kv')],
                   (wt + 3) * 128 + 44 + q * 7)
        if o.get('wpf'):
            pf = [['s_cmp_eq_u32 s%d, 2' % sW, 's_cselect_b32 s%d, s%d, s%d' % (S_X, pWG, pWU), 's_cselect_b32 s%d, s%d, s%d' % (S_X + 1, pWG + 1, pWU + 1)],
                  ['s_cmp_lt_u32 s%d, 27' % sFB, 's_cselect_b32 s%d, 0x%x, 0' % (S_X + 2, 640 * 3456)],
                  's_lshl_b32 s%d, s%d, 1' % (sT0, sH), 's_add_u32 s%d, s%d, s%d' % (sT0, sT0, sW), 's_movk_i32 s%d, 3456' % sT1,
                  ['s_cmp_lt_u32 s%d, 2' % sW, 's_cmov_b32 s%d, s%d' % (S_X, pWQ), 's_cmov_b32 s%d, s%d' % (S_X + 1, pWQ + 1), 's_cmov_b32 s%d, 0x%x' % (S_X + 2, 640 * 8192),
                   's_cselect_b32 s%d, s%d, s%d' % (sT0, sT0, sFB), 's_cmov_b32 s%d, 8192' % sT1],
                  's_mul_i32 s%d, s%d, 80' % (sT2, sI), 'v_add_u32 v%d, s%d, v1' % (vPR, sT2), 'v_mul_lo_u32 v%d, v%d, s%d' % (vPR, vPR, sT1),
                  's_lshl_b32 s%d, s%d, 7' % (sT0, sT0), 's_lshl_b32 s%d, s%d, 4' % (sT1, sT1), 's_add_u32 s%d, s%d, s%d' % (sT1, sT1, sT0)]
            g = S.flow(pf, o['wpf'] * 128 + 44)
            g = S.flow(['buffer_load_dword a115, v%d, %s, s%d offen' % (vPR, s4(S_X), sT0)], g + 1)
            S.flow(['buffer_load_dword a116, v%d, %s, s%d offen' % (vPR, s4(S_X), sT1)], g + o.get('wpf2', 10))
    def extras2(self, S, bar):
        o = self.opt
        S.flow(self.poll_issue(), o.get('xpoll', 5 * 128 + 50 if o.get('np') != 2 else 6 * 128 + 41))
        gs = 6 * 128 + 44
        su = (srd_off(S_A, pWS, WS_XN, 2048 * 1280) if not o.get('readx') else srd_off(S_A, pX, 0, 2048 * 1280)) + srd(S_B0, pWQ, pWQ + 1, 640 * 8192)
        su += ['s_cmp_lt_u32 s%d, 27' % sFB, 's_cselect_b32 s%d, 0x%x, 0' % (S_B1 + 2, 640 * 3456), 's_mov_b32 s%d, s%d' % (S_B2 + 2, S_B1 + 2),
               's_mov_b32 s%d, s%d' % (S_B1, pWG), 's_mov_b32 s%d, s%d' % (S_B1 + 1, pWG + 1),
               's_mov_b32 s%d, s%d' % (S_B2, pWU), 's_mov_b32 s%d, s%d' % (S_B2 + 1, pWU + 1), 's_mov_b32 s%d, 0x00020000' % (S_B2 + 3)]
        su += ['s_lshl_b32 s%d, s%d, 2' % (sT0, sI), 's_sub_u32 s%d, 60, s%d' % (sT1, sT0),
               's_add_u32 s%d, s%d, s%d' % (sT0, sT0, sW), 's_add_u32 s%d, s%d, s%d' % (sT1, sT1, sW),
               's_mul_i32 s%d, s%d, %d' % (sAo[0], sT0, 32 * 1280), 's_mul_i32 s%d, s%d, %d' % (sAo[2], sT1, 32 * 1280),
               's_add_u32 s%d, s%d, %d' % (sAo[1], sAo[0], 16 * 1280 - 2048), 's_add_u32 s%d, s%d, %d' % (sAo[3], sAo[2], 16 * 1280 - 2048)]
        su += self.a_dma_addr(1280, sRot2)
        su += ['s_sub_u32 s%d, s%d, s%d' % (sInc, sRot2, sRot), 's_mov_b32 s%d, s%d' % (sRot, sRot2), 's_lshl_b32 s%d, s%d, 19' % (sIncG, sInc)]
        su += ['v_add_u32 v%d, s%d, v%d' % (v, sIncG, v) for v in vB]
        su += ['s_lshl_b32 s%d, s%d, 4' % (sT0, sH), 's_lshl_b32 s%d, s%d, 1' % (sT1, sI), 's_add_u32 s%d, s%d, s%d' % (sT0, sT0, sT1),
               's_and_b32 s%d, s%d, 1' % (sT1, sW), 's_add_u32 s%d, s%d, s%d' % (sT0, sT0, sT1), 's_lshl_b32 s%d, s%d, 16' % (sT0, sT0)]
        su += srd_off(S_ST, pWS, 's%d' % sT0, 65536)
        su = self.keep_scc(su)
        g = S.flow(su, gs)
        assert g < bar(6) - 1, g
        S.at(bar(6) - 1, self.stamp(5) + self.hop('c1') + self.poll_check(1) + self.stamp(6))
        fx = ['s_lshr_b32 s3, s%d, 1' % sW, 's_lshl_b32 s3, s3, 7'] + ['v_xor_b32 v%d, s3, v%d' % (v, v) for v in vRB]
        g = S.flow(fx, 7 * 128 + 64 + 34)
        assert g < 8 * 128, g
        b15 = 7 * 128 + 64
        pk = []
        for p in range(28):
            e = b15 + (17 if p < 8 else 33 if p < 16 else 41 + 8 * ((p - 16) >> 2))
            a, b = 32 + 4 * p, 144 + 4 * p
            pk += [(e, 'v_cvt_pk_bf16_f32 v%d, v%d, v%d' % (a, a, a + 1)), 'v_cvt_pk_bf16_f32 v%d, v%d, v%d' % (a + 1, a + 2, a + 3),
                   'v_cvt_pk_bf16_f32 v%d, v%d, v%d' % (a + 2, b, b + 1), 'v_cvt_pk_bf16_f32 v%d, v%d, v%d' % (a + 3, b + 2, b + 3)]
        g = b15
        pg = {}
        for p in range(28):
            g = pg[p] = S.flow(pk[4 * p:4 * p + 4], g)
            if p >= 4: assert g < 8 * 128 + 40 + ((p - 4) & ~3) - 1, (p, g)
        for q in range(4):
            for k in range(4):
                g = S.flow(['v_accvgpr_read_b32 v%d, a%d' % (vT0, 224 + 8 * q + 2 * k), 'v_accvgpr_read_b32 v%d, a%d' % (vT1, 225 + 8 * q + 2 * k),
                            'v_cvt_pk_bf16_f32 v%d, v%d, v%d' % (144 + 4 * q + k, vT0, vT1)], max(g, 8 * 128 + 2))
            pg[28 + q] = g
        order = sorted(range(32), key=lambda p: self.kv_off(p)[0])
        g0, g1 = g + 1, o.get('st_end', 13 * 128)
        last = None
        stw = o.get('stw')
        for n, p in enumerate(order):
            off, v = self.kv_off(p)
            gg = g0 + n * (g1 - g0) // 32
            if stw:
                gg = max(g0, bar(stw[0] + n // stw[1]) + 3 + o.get('dspan', 64) + (n % stw[1]) * stw[2])
            it = []
            if off >> 12 != last:
                last = off >> 12
                it.append('s_mov_b32 s%d, %d' % (sSO, off & ~4095))
            if not o.get('nokv'):
                it.append(('buffer_store_dwordx4 v[%d:%d], v%d, %s, s%d offen offset:%d%s' % (32 + 4 * p, 35 + 4 * p, v, s4(S_ST), sSO, off & 4095, o.get('kvfl', ' sc1')), 'kv'))
            if self.sg:
                assert pg[p] < self.sg[n], (n, p, pg[p], self.sg[n])
                S.at(self.sg[n], it); continue
            gl = S.flow(it, gg)
            if stw: g0 = max(g0, gl)
        for n, l in enumerate(self.wstores):
            if self.sg: S.at(self.sg[32 + n], l)
            else: S.flow([l], o.get('wst', 13 * 128) + n * o.get('wsts', 12))
        tf = o.get('kvflag', 14)
        if self.sg: assert self.sg[-1] < bar(tf) - 40
        S.at(bar(tf), [('@vmwait', 'kv')], front=True)
        S.flow(self.flag(2), bar(tf) + 1)
        pa = ['s_and_b32 s3, s2, 31', 'v_and_b32 v%d, 7, v1' % vPA, 'v_lshlrev_b32 v%d, 5, v%d' % (vPA, vPA), 'v_add_lshl_u32 v%d, s3, v%d, 7' % (vPA, vPA)]
        S.flow(pa + self.poll_issue(), 16 * 128 + 10)
        su = ['s_lshl_b32 s%d, s%d, 20' % (sT0, sH)] + srd_off(S_A, pWS, 's%d' % sT0, 1 << 20)
        su += ['s_lshl_b32 s%d, s%d, 13' % (sAo[0], sW), 's_add_u32 s%d, s%d, 0x8000' % (sAo[1], sAo[0]),
               's_lshl_b32 s3, s%d, 16' % sI, 's_add_u32 s%d, s%d, s3' % (sAo[2], sAo[0]),
               's_add_u32 s%d, s%d, 0x18000' % (sAo[2], sAo[2]), 's_add_u32 s%d, s%d, 0x10000' % (sAo[3], sAo[2]),
               'v_lshlrev_b32 v%d, 4, v1' % vA[0], 'v_add_u32 v%d, 0x1000, v%d' % (vA[1], vA[0])]
        g = S.flow(self.keep_scc(su), 16 * 128 + 44)
        assert g < bar(16) - 1
        S.at(bar(16) - 1, self.stamp(10) + self.hop('c2') + self.poll_check(2) + self.stamp(11))
        S.at(10 * 128, self.stamp(7)); S.at(12 * 128, self.stamp(8)); S.at(14 * 128, self.stamp(9))
        if self.SO:
            S.at(8 * 128 - 1, self.stamp(2))
            for t, i in o.get('stepst', []): S.at(t * 128 + 127, self.stamp(i, force=True))

    def keep_scc(self, lines):
        out = []
        for l in lines:
            op = l.split()[0]
            if op in ('s_addc_u32', 's_cselect_b32', 's_cmov_b32', 's_cselect_b64'):
                if not isinstance(out[-1], list): out[-1] = [out[-1]]
                out[-1].append(l)
            else: out.append(l)
        return out

    def kv_off(self, p):
        if p < 16:
            mb, dsl = p & 7, p >> 3
            return (mb >> 2) * 32768 + (mb & 3) * 4096 + dsl * 1024, vSTK
        n, mp = (p - 16) >> 2, (p - 16) & 3
        return (mp >> 1) * 32768 + 16384 + (mp & 1) * 8192 + n * 1024, vSTV

    def p2_epilogue(self):
        L = []
        sC = sT0
        L += ['s_mov_b32 s%d, 0x3e0293ee' % sC]
        for ds in (1, 2, 3, 0):
            for qb in range(4):
                dst = 32 + (qb * 4 + ds) * 4
                for hf in range(2):
                    k, r = self.p2_tile(8 + 2 * ds + hf, qb)
                    if k == 'a':
                        t = 96 + (qb * 2 + hf) * 4
                        L += ['v_accvgpr_read_b32 v%d, a%d' % (t + e, r + e) for e in range(4)]
                        r = t
                    L += ['v_mul_f32 v%d, s%d, v%d' % (r + e, sC, r + e) for e in range(4)]
                    L += ['v_cvt_pk_bf16_f32 v%d, v%d, v%d' % (dst + 2 * hf + e, r + 2 * e, r + 2 * e + 1) for e in range(2)]
        L += ['s_add_u32 s3, s%d, 0x10000' % sMA, 'v_add_u32 v%d, s3, v%d' % (vT0, vA[0]), 'v_xor_b32 v%d, 0x2000, v%d' % (vT1, vT0)]
        for f in range(8):
            L.append('ds_write_b128 v%d, v[%d:%d] offset:%d' % (vT0, 64 + 4 * f, 67 + 4 * f, f * 1024))
        L += ['s_cmp_ge_u32 s%d, 27' % sFB, 's_cbranch_scc1 %s' % self.lab('skipgelu')]
        self.ool.append([self.lab('skipgelu') + ':', 's_waitcnt vmcnt(0)', 's_branch %s' % self.lab('nogelu')])
        sL, sHh, c1, c2 = sGo[0], sGo[1], sT1, sT2
        L += srd_off(S_ST, pWS, WS_H, 32 * 54 * 4096)
        if self.H16:
            L += ['s_lshl_b32 s3, s%d, 1' % sW, 's_lshl_b32 s%d, s%d, 3' % (sL, sI), 's_sub_u32 s%d, 120, s%d' % (sHh, sL),
                  's_add_u32 s%d, s%d, s3' % (sL, sL), 's_add_u32 s%d, s%d, s3' % (sHh, sHh),
                  's_mul_i32 s%d, s%d, %d' % (sL, sL, 54 * 1024), 's_mul_i32 s%d, s%d, %d' % (sHh, sHh, 54 * 1024),
                  's_lshl_b32 s3, s%d, 11' % sFB, 's_add_u32 s%d, s%d, s3' % (sL, sL), 's_add_u32 s%d, s%d, s3' % (sHh, sHh),
                  'v_add_u32 v4, %d, v%d' % (54 * 1024, vA[0])]
        else:
            L += ['s_lshr_b32 s3, s%d, 1' % sW, 's_lshl_b32 s%d, s%d, 1' % (sL, sI), 's_sub_u32 s%d, 30, s%d' % (sHh, sL),
                  's_add_u32 s%d, s%d, s3' % (sL, sL), 's_add_u32 s%d, s%d, s3' % (sHh, sHh),
                  's_mul_i32 s%d, s%d, %d' % (sL, sL, 54 * 4096), 's_mul_i32 s%d, s%d, %d' % (sHh, sHh, 54 * 4096),
                  's_lshl_b32 s3, s%d, 13' % sFB, 's_and_b32 s%d, s%d, 1' % (c1, sW), 's_lshl_b32 s%d, s%d, 11' % (c1, c1), 's_add_u32 s3, s3, s%d' % c1,
                  's_add_u32 s%d, s%d, s3' % (sL, sL), 's_add_u32 s%d, s%d, s3' % (sHh, sHh)]
        import struct, math
        f2u = lambda x: struct.unpack('<I', struct.pack('<f', x))[0]
        kk = 2 * math.sqrt(2 / math.pi) * math.log2(math.e)
        L += ['s_mov_b32 s%d, 0x%x' % (c1, f2u(-kk * 0.044715)), 'v_mov_b32 v%d, 0x%x' % (vPR, f2u(-kk))]
        n = 0
        for m in range(2):
            for mb in range(4):
                base = 96 + (n % 2) * 28
                G, U, T, D = base, base + 8, base + 16, base + 24
                n += 1
                for hf in range(2):
                    _, rg = self.p2_tile(2 * (2 * m + hf), mb)
                    _, ru = self.p2_tile(2 * (2 * m + hf) + 1, mb)
                    L += ['v_accvgpr_read_b32 v%d, a%d' % (G + 4 * hf + e, rg + e) for e in range(4)]
                    L += ['v_accvgpr_read_b32 v%d, a%d' % (U + 4 * hf + e, ru + e) for e in range(4)]
                L += ['v_mul_f32 v%d, v%d, v%d' % (T + e, G + e, G + e) for e in range(8)]
                L += ['v_fma_f32 v%d, v%d, s%d, v%d' % (T + e, T + e, c1, vPR) for e in range(8)]
                L += ['v_mul_f32 v%d, v%d, v%d' % (T + e, T + e, G + e) for e in range(8)]
                L += ['v_exp_f32 v%d, v%d' % (T + e, T + e) for e in range(8)]
                L += ['v_mul_f32 v%d, v%d, v%d' % (G + e, G + e, U + e) for e in range(8)]
                L += ['v_add_f32 v%d, 1.0, v%d' % (T + e, T + e) for e in range(8)]
                L += ['v_rcp_f32 v%d, v%d' % (T + e, T + e) for e in range(8)]
                L += ['v_mul_f32 v%d, v%d, v%d' % (G + e, G + e, T + e) for e in range(8)]
                L += ['v_cvt_pk_bf16_f32 v%d, v%d, v%d' % (D + e, G + 2 * e, G + 2 * e + 1) for e in range(4)]
                va, off = ((4 if mb & 1 else vA[0]), m * 1024) if self.H16 else (vA[m], (mb & 1) * 1024)
                L += [('buffer_store_dwordx4 v[%d:%d], v%d, %s, s%d offen offset:%d sc1' % (D, D + 3, va, s4(S_ST), sL if mb < 2 else sHh, off), 'h')]
        L += [self.lab('nogelu') + ':']
        return L

    def dump_q(self):
        L = srd_off(S_X, pWS, WS_Q, 16 << 20)
        L += ['s_lshl_b32 s3, s2, 2', 's_add_u32 s3, s3, s%d' % sW, 's_lshl_b32 s3, s3, 14']
        for f in range(16):
            L += ['buffer_store_dwordx4 v[%d:%d], v%d, %s, s3 offen' % (32 + 4 * f, 35 + 4 * f, vA[0], s4(S_X)), 's_add_u32 s3, s3, 1024']
        return L

    def build(self, stats=None):
        o = self.opt
        L = self.prologue()
        pre, S = self.gemms()
        L += [('@vmwait', 'dma0'), 's_barrier'] + self.stamp(1) + pre
        L += S.lines()
        L += self.stamp(3)
        L += self.p2_epilogue()
        L += self.stamp(4)
        if o.get('stop') == 2:
            L += self.dump_q()
        L += self.epoch_out()
        L += ['s_waitcnt vmcnt(0)'] + self.stamp(13) + self.stamp(15, True) + self.stamps_out()
        L += ['s_endpgm']
        out, st = process(L, stats=stats, lazy=o.get('lazy', 8))
        for blk in self.ool:
            out += process(blk, stats=stats)[0]
        out += [self.lab('end') + ':']
        return out
```

```python
from asmlib import *
from fused import *

sK, sM, sN, sTI, sX, sXe, sCL, sEv, sRedo, sStage = range(64, 74)
sTri = [84, 86, 92, 94]
sCtL, sCtH, sRho = 91, 96, 97
vK, vV, vD1, vD2, vD3, vBig = 4, 5, 6, 7, 24, 25
CP = 8
QL = 32
SB = [64, 96]
PB = 128
CG = [144, 160]
O0, L0 = 176, 240
KF, QH, O1, L1, ONES, VF, QP = 0, 32, 64, 128, 136, 192, 224

class KA(K):
    def qreg(self, mode, q, ds):
        if q >= 2: return ar(QH + ((q - 2) * 4 + ds) * 4, 4)
        return vr(QL + (q * 4 + ds) * 4, 4) if mode == 'D' else ar(QP + (q * 4 + ds) * 4, 4)
    def creg(self, mode, q, kb):
        b = CG[1] if q >= 2 else CG[0] if mode == 'D' else CP
        return b + ((q & 1) * 2 + kb) * 4
    def oreg(self, q, db):
        off = ((db >> 1) * 2 + (q & 1)) * 8 + (db & 1) * 4
        return vr(O0 + off, 4) if q < 2 else ar(O1 + off, 4)
    def lreg(self, q):
        return vr(L0 + 4 * q, 4) if q < 2 else ar(L1 + 4 * (q - 2), 4)
    def qk(self, mode, u):
        out = []
        for m in range(32):
            ds, kb = m >> 3, (m >> 2) & 1
            q = (m & 3) if kb == 0 else 3 - (m & 3)
            d = vr(SB[u] + (q * 2 + kb) * 4, 4)
            out.append('%s %s, %s, %s, %s' % (MF, d, ar(KF + (kb * 4 + ds) * 4, 4), self.qreg(mode, q, ds), vr(self.creg(mode, q, kb), 4) if ds == 0 else d))
        return out
    def pv(self, zero=False, qs=(0, 1, 2, 3)):
        out = []
        for db in range(-1, 8):
            for q in (qs if db & 1 else reversed(qs)):
                d = self.lreg(q) if db < 0 else self.oreg(q, db)
                out.append('%s %s, %s, %s, %s' % (MF, d, ar(ONES if db < 0 else VF + db * 4, 4), vr(PB + 4 * q, 4), '0' if zero else d))
        return out
    def kread(self, u, kb, ds): return 'ds_read_b128 %s, v%d offset:%d' % (ar(KF + (kb * 4 + ds) * 4, 4), vK, ((2 * u + kb) * 4 + ds) * 1024)
    def vread(self, u, db): return 'ds_read_b128 %s, v%d offset:%d' % (ar(VF + db * 4, 4), vV, 16384 + (u * 8 + db) * 1024)
    def cvts(self, u): return ['v_cvt_pk_bf16_f32 v%d, v%d, v%d' % (PB + e, SB[u] + 2 * e, SB[u] + 2 * e + 1) for e in range(16)]
    def exps(self, u):
        o = []
        for kb, q in [(0, 0), (0, 1), (0, 2), (0, 3), (1, 3), (1, 2), (1, 1), (1, 0)]:
            r = SB[u] + (q * 2 + kb) * 4
            o += ['v_exp_f32 v%d, v%d' % (r + e, r + e) for e in range(4)]
        return o
    def tri(self, c):
        return ['v_cndmask_b32 v%d, v%d, v%d, s[%d:%d]' % (c + b + r, vBig, c + b + r, sTri[r], sTri[r] + 1) for b in (0, 12) for r in range(4)] + \
               ['v_mov_b32 v%d, v%d' % (c + 4 + r, vBig) for r in range(4)]
    def allm(self, c): return ['v_mov_b32 v%d, v%d' % (c + r, vBig) for r in range(16)]
    def hookD(self, tag):
        a, b, c = self.lab('hd' + tag), self.lab('hdr' + tag), self.lab('hda' + tag)
        self.ool.append([a + ':', 's_cmp_eq_u32 s%d, 0' % sStage, 's_cbranch_scc0 %s' % c] + self.tri(CG[0]) +
                        ['s_mov_b32 s%d, 1' % sStage, 's_mov_b32 s%d, 0' % sCL, 's_branch %s' % b,
                         c + ':'] + self.allm(CG[0]) + ['s_movk_i32 s%d, 1000' % sCL, 's_nop 0', 's_branch %s' % b])
        return ['s_sub_u32 s%d, s%d, 1' % (sCL, sCL), 's_cbranch_scc1 %s' % a, b + ':']
    def kv_dma(self, mode):
        def four(v): return ['buffer_load_dwordx4 v%d, %s, s%d offen offset:%d sc1 lds' % (v, s4(S_A), sK, k * 1024) for k in range(4)]
        it = ['s_add_u32 m0, s%d, 0x4000' % sM] + four(vD1)
        if mode == 'S': it += ['s_add_u32 m0, s%d, 0xc000' % sM] + four(vD3)
        it += ['s_xor_b32 s%d, s%d, 0x10000' % (sM, sM), 's_add_u32 s%d, s%d, %s' % (sK, sK, 's%d' % sTI if mode == 'D' else '0x10000'),
               's_mov_b32 m0, s%d' % sM] + four(vA[0])
        if mode == 'S': it += ['s_add_u32 m0, s%d, 0x8000' % sM] + four(vD2)
        return it

    def finalize(self, sC, bit):
        L = []
        if bit:
            L += ['v_max_f32 v%d, v%d, v%d' % (L0 + 1, L0, L0 + 4), 'v_add_f32 v%d, v%d, v%d' % (L0 + 2, L0, L0 + 4),
                  'v_cmp_gt_f32 vcc, 0x5f800000, v%d' % (L0 + 2), 's_cmp_eq_u64 vcc, -1', 's_cselect_b32 s3, 0, %d' % bit, 's_or_b32 s%d, s%d, s3' % (sRedo, sRedo)]
            L.pop(0)
        L += ['v_rcp_f32 v%d, v%d' % (L0, L0), 'v_rcp_f32 v%d, v%d' % (L0 + 4, L0 + 4), 's_mov_b32 s3, s%d' % sC]
        for ds in range(4):
            if ds == 2: L.append('s_add_u32 s3, s3, 0x2000')
            for q in range(2):
                b = O0 + (ds * 2 + q) * 8
                L += ['v_pk_mul_f32 v[%d:%d], v[%d:%d], v[%d:%d] op_sel_hi:[1,0]' % (b + 2 * e, b + 2 * e + 1, b + 2 * e, b + 2 * e + 1, L0 + 4 * q, L0 + 4 * q + 1) for e in range(4)]
                L += ['v_cvt_pk_bf16_f32 v%d, v%d, v%d' % (b + e, b + 2 * e, b + 2 * e + 1) for e in range(4)]
                L += [('buffer_store_dwordx4 v[%d:%d], v%d, %s, s3 offen offset:%d sc1' % (b, b + 3, vA[ds & 1], s4(S_ST), q * 1024), 'ctx')]
        return L
    def zero0(self): return ['v_mov_b64 v[%d:%d], 0' % (r, r + 1) for r in range(O0, L0 + 8, 2)]

    def body(self, mode, first=False):
        o = self.opt
        S = Stream()
        for l in self.qk(mode, 0): S.add(l)
        if not first:
            for l in self.pv(): S.add(l)
        b1 = S.n()
        for l in self.qk(mode, 1) + self.pv(zero=first): S.add(l)
        tag = ('f' if first else '') + mode
        for base, u in ((0, 1), (b1, 0)):
            for m in range(8):
                S.at(base + 4 * m + 3, self.kread(u, m & 1, m >> 1))
        BAR = 31 if first else o.get('abar', 39)
        tog = ['v_mov_b32 v%d, v%d' % (vV, vK), 'v_xor_b32 v%d, %s, v%d' % (vK, 's%d' % sX if mode == 'D' else '0x10000', vK)]
        e0 = self.exps(0)
        if first:
            S.flow(e0[:3], 28)
            S.at(31, e0[3:27] + tog + self.hookD(tag + '1') + ['s_waitcnt vmcnt(0) lgkmcnt(0)', 's_barrier'] + self.flag(3))
            e0 = e0[27:]
        else:
            S.at(BAR, ['s_waitcnt vmcnt(0) lgkmcnt(0)', 's_barrier'])
            S.at(b1 - 2, tog)
            if mode == 'D':
                S.at(-1, self.hookD(tag + '0'))
                S.at(b1 - 1, self.hookD(tag + '1'))
            else:
                S.at(b1 - 1, ['s_cmp_lg_u32 s%d, 0' % sEv, 's_cbranch_scc1 %s' % self.lab('hmid'), self.lab('hmidr') + ':'])
            c = self.cvts(1)
            vr_ = [self.vread(1, db) for db in range(8)]
            S.flow([x for k in range(8) for x in (vr_[k], c[2 * k], c[2 * k + 1])], 0)
        if not first:
            S.at(S.n() - 1, ['s_sub_u32 s%d, s%d, 1' % (sN, sN), 's_cbranch_scc0 %s' % self.lab('top' + mode)])
        dm = self.kv_dma(mode)
        if o.get('dsp') and not first:
            sp = o['dsp'] if mode == 'S' else o.get('dspD', o['dsp'])
            g = BAR + 1
            pend = []
            k = 0
            for l in dm:
                if l.startswith('s_'):
                    S.at(g if k == 0 else gp, l)
                    if k and S.load[gp] >= 8: gp += 1
                else:
                    gp = BAR + 2 + int(k * sp)
                    while S.load.get(gp, 0) > 4: gp += 1
                    S.at(gp, l, front=True); k += 1
                    if S.load[gp] >= 8: gp += 1
            ge = S.flow(e0, 28)
            it = [self.vread(0, db) for db in range(8)]
        else:
            n0 = 0 if first else o.get('dma0', 6)
            g = BAR + 1
            for k in range(0, n0, 2):
                S.at(g, dm[k:k + 2]); g += o.get('dma0s', 3)
            ge = S.flow(e0, 32 if first else 28)
            vr_ = [self.vread(0, db) for db in range(8)]
            rest = dm[n0:]
            it = []
            while vr_ or rest:
                if rest: it.append(rest.pop(0))
                if rest: it.append(rest.pop(0))
                if vr_: it.append(vr_.pop(0))
        g = S.flow(self.exps(1), b1 + 28)
        assert g < S.n(), g
        c = self.cvts(0)
        g = b1 + 30
        for l in reversed(c):
            while S.load.get(g, 0) + 4 > 8: g -= 1
            S.at(g, l, front=True)
        assert g > ge or first, (g, ge)
        gl = S.flow(it, b1, gmax=b1 + 30)
        if o.get('verbose'): print(tag, 'exp0 end', ge - b1, 'cvt start', g - b1, 'dma end', gl - b1, 'over', [(k, v) for k, v in sorted(S.load.items()) if v > 8])
        return S.lines()

    def pro_valu(self):
        L = ['v_add_u32 v%d, 0x4000, v%d' % (vD1, vA[0]), 'v_add_u32 v%d, 0x8000, v%d' % (vD2, vA[0]), 'v_add_u32 v%d, 0xc000, v%d' % (vD3, vA[0]),
             'v_mov_b32 v%d, v%d' % (vK, vA[0]), 'v_mov_b32 v%d, 0xf149f2ca' % vBig,
             'v_lshrrev_b32 v8, 4, v1', 'v_and_b32 v9, 15, v1', 'v_lshlrev_b32 v10, 8, v8', 'v_lshlrev_b32 v8, 2, v8', 'v_sub_u32 v8, v8, v9',
             'v_mov_b32 v9, 0x3f803f80']
        L += ['v_cmp_ge_i32 s[%d:%d], %d, v8' % (sTri[r], sTri[r] + 1, -r) for r in range(4)]
        L += ['v_accvgpr_write_b32 a%d, v9' % (ONES + e) for e in range(4)]
        return L
    def pro_salu(self):
        L =  ['s_lshl_b32 s3, s%d, 12' % sW, 's_add_u32 s%d, s3, 0x8000' % sK, 's_add_u32 s%d, s3, 0x10000' % sM,
              's_mov_b32 s%d, 0x8000' % sTI, 's_mov_b32 s%d, 0x10000' % sX,
              's_and_b32 s%d, s%d, 1' % (sXe, sW), 's_lshl_b32 s%d, s%d, 15' % (sXe, sXe), 's_add_u32 s%d, s%d, 0x10000' % (sXe, sXe),
              's_lshl_b32 s%d, s%d, 2' % (sCL, sI), 's_add_u32 s%d, s%d, s%d' % (sCL, sCL, sW),
              's_lshl_b32 s%d, s%d, 1' % (sN, sI),
              's_sub_u32 s3, 16, s%d' % sI, 's_lshl_b32 s%d, s3, 16' % (S_A + 2)]
        L += ['s_lshr_b32 s3, s%d, 1' % sW, 's_lshl_b32 s3, s3, 5', 's_add_u32 s3, s3, s%d' % sH, 's_lshl_b32 s3, s3, 14',
              's_lshl_b32 s%d, s%d, 20' % (sCtL, sI), 's_sub_u32 s%d, 0x%x, s%d' % (sCtH, 15 << 20, sCtL),
              's_add_u32 s%d, s%d, s3' % (sCtL, sCtL), 's_add_u32 s%d, s%d, s3' % (sCtH, sCtH),
              's_and_b32 s3, s%d, 1' % sW, 's_lshl_b32 s3, s3, 11', 's_add_u32 s%d, s%d, s3' % (sCtL, sCtL),
              's_xor_b32 s3, s3, 0x800', 's_add_u32 s%d, s%d, s3' % (sCtH, sCtH)]
        if self.opt.get('ep2', 0) >= 2:
            L += ['s_lshl_b32 s62, s%d, 12' % sW, 's_lshl_b32 s88, s%d, 16' % sI, 's_add_u32 s88, s88, s62', 's_add_u32 s88, s88, 0x10000']
        return L
    def attn_pro(self):
        L = [] if self.opt.get('ep2') else self.pro_valu() + self.pro_salu()
        L += ['s_mov_b64 s[%d:%d], 0' % (sRedo, sStage)]
        L += srd_off(S_ST, pWS, WS_CTX, 16 << 20)
        L += [('@vmwait', 'dma18' if self.opt.get('ep2') else 'dma19'), 's_waitcnt lgkmcnt(0)', 's_barrier']
        L += ['ds_read_b128 v[%d:%d], v10 offset:%d' % (96 + 4 * ds, 99 + 4 * ds, ds * 1024) for ds in range(4)]
        L += ['ds_read_b128 %s, v%d offset:%d' % (ar(QH + 4 * f, 4), vT0, f * 1024) for f in range(8)]
        L += ['v_xor_b32 v%d, 0x80008000, v%d' % (96 + e, 96 + e) for e in range(16)]
        L += ['ds_read_b128 %s, v%d offset:%d' % (ar(QP + 4 * f, 4), vT1, f * 1024) for f in range(8)]
        S = Stream()
        grp = [('D', 0), ('D', 1), ('D', 2), ('D', 3), ('S', 0), ('S', 1)]
        for half in (grp[:2], grp[2:4], grp[4:]):
            for ds in range(4):
                for mode, q in half:
                    d = vr(self.creg(mode, q, 0), 4)
                    S.add('%s %s, %s, %s, %s' % (MF, d, vr(96 + 4 * ds, 4), self.qreg(mode, q, ds), '0' if ds == 0 else d))
        for m in range(8): S.at(m, self.kread(0, m & 1, m >> 1))
        for n, (mode, q) in enumerate(grp):
            c = self.creg(mode, q, 0)
            S.at(min(23, (n >> 1) * 8 + 12 + 2 * (n & 1)), ['v_mov_b64 v[%d:%d], v[%d:%d]' % (c + 4 + e, c + 5 + e, c + e, c + 1 + e) for e in (0, 2)])
        if self.opt.get('ep2', 0) >= 2:
            g0, sp = self.opt.get('sp2', (1, 3))
            for n in range(8):
                if n % 4 == 0: S.at(g0 + n * sp - 1, 's_add_u32 m0, s62, 0x%x' % (0xc000 if n else 0x8000))
                S.at(g0 + n * sp, ('buffer_load_dwordx4 v%d, %s, s88 offen offset:%d sc1 lds' % (vD3 if n >= 4 else vD2, s4(S_A), (n & 3) * 1024), 'kv'))
        L += S.lines()
        L += self.hookD('p')
        return L

    def attention(self, st, stats, lazy):
        out = []
        def run(lines, st):
            o, st = process(lines, st, stats=stats, lazy=lazy)
            return o, st
        def loop(lines, st):
            o1, st1 = process(lines, st, lazy=lazy); o2, st2 = run(lines, st1)
            assert st1.sig() == st2.sig()
            assert process(o2, st, pad=False)[0] == o2 and process(o2, st2, pad=False)[0] == o2
            return o2, st2
        o, st = run(self.attn_pro() + self.stamp(16) + self.body('D', True), st); out += o
        ent = ['s_sub_u32 s%d, s%d, 1' % (sN, sN), 's_cbranch_scc1 %s' % self.lab('postD')]
        o, st = run(ent, st); out += o
        bd = [self.lab('topD') + ':'] + self.body('D')
        o2, st = loop(bd, st); out += o2
        post = [self.lab('postD') + ':', 's_cmp_eq_u32 s%d, 0x8000' % sTI, 's_mov_b32 s%d, 0x10000' % sTI, 's_mov_b32 s%d, s%d' % (sX, sXe), 's_mov_b32 s%d, 0' % sN,
                's_cbranch_scc1 %s' % self.lab('topD')]
        post += self.stamp(17)
        post += ['s_mov_b32 s%d, 1' % sEv, 's_mov_b32 s%d, 0' % sStage, 's_lshl_b32 s3, s%d, 1' % sI, 's_sub_u32 s%d, 13, s3' % sN, 's_cbranch_scc1 %s' % self.lab('postS')]
        o, st = run(post, st); out += o
        bs = [self.lab('topS') + ':'] + self.body('S')
        o2, st = loop(bs, st); out += o2
        post = [self.lab('postS') + ':', 's_cmp_eq_u32 s%d, 0' % sStage, 's_cbranch_scc1 %s' % self.lab('hs0')]
        o, st = run(post, st); out += o
        lb = self.lab
        self.ool.append([lb('hs0') + ':', 's_mov_b32 s%d, 1' % sStage, 's_mov_b32 s%d, 0' % sN, 's_or_b32 s%d, s%d, 2' % (sEv, sEv),
                         's_cmp_eq_u32 s%d, 2' % sW, 's_cbranch_scc1 %s' % lb('topS'),
                         's_cmp_eq_u32 s%d, 1' % sW, 's_cbranch_scc1 %s' % lb('hs0a'),
                         's_cmp_eq_u32 s%d, 3' % sW, 's_cbranch_scc1 %s' % lb('hs0b')] + self.tri(CG[1]) + ['s_nop 0', 's_branch %s' % lb('topS'),
                         lb('hs0a') + ':'] + self.allm(CG[1]) + self.allm(CP) + ['s_nop 0', 's_branch %s' % lb('topS'),
                         lb('hs0b') + ':'] + self.tri(CP) + ['s_nop 0', 's_branch %s' % lb('topS')])
        self.ool.append([lb('hmid') + ':', 's_bitcmp1_b32 s%d, 0' % sEv, 's_cbranch_scc0 %s' % lb('hm1'), 's_nop 7'] + self.finalize(sCtL, 1) + self.zero0() +
                        [lb('hm1') + ':', 's_bitcmp1_b32 s%d, 1' % sEv, 's_mov_b32 s%d, 0' % sEv, 's_cbranch_scc0 %s' % lb('hmidr'),
                         's_cmp_eq_u32 s%d, 0' % sW, 's_cbranch_scc1 %s' % lb('hm2'),
                         's_cmp_eq_u32 s%d, 3' % sW, 's_cbranch_scc0 %s' % lb('hmidr')] + self.tri(CG[1]) + self.allm(CP) + ['s_nop 0', 's_branch %s' % lb('hmidr'),
                         lb('hm2') + ':'] + self.allm(CG[1]) + self.tri(CP) + ['s_nop 0', 's_branch %s' % lb('hmidr')])
        o, st = run(self.stamp(18) + self.attn_tail(), st); out += o
        return out, st

    def attn_tail(self):
        L = [self.vread(1, db) for db in range(8)]
        c = self.cvts(1)
        L += c[8:]
        S = Stream()
        for l in self.pv(qs=(2, 3)) + self.pv(qs=(0, 1)): S.add(l)
        ad = ['s_lshl_b32 s%d, s%d, 15' % (sT0, sW), 's_add_u32 s%d, s%d, 0x10000' % (sT0, sT0), 's_lshl_b32 s%d, s%d, 14' % (sT1, sW), 's_add_u32 s%d, s%d, 0x18000' % (sT1, sT1),
              ['s_cmp_lt_u32 s%d, 2' % sW, 's_cselect_b32 s%d, s%d, s%d' % (sT0, sT0, sT1), 's_cselect_b32 s%d, 1, 0' % sT1], 's_lshl_b32 s%d, 0x4000, s%d' % (sT1, sT1),
              'v_add_u32 v%d, s%d, v%d' % (vT0, sT0, vA[0]), 'v_xor_b32 v%d, s%d, v%d' % (vT1, sT1, vT0),
              's_lshl_b32 s%d, s%d, 12' % (sT0, sW), 's_add_u32 s%d, s%d, 0x14000' % (sT0, sT0), 'v_add_u32 v%d, s%d, v%d' % (vK, sT0, vA[0]), 'v_xor_b32 v%d, 0x1000, v%d' % (vV, vK),
              's_lshl_b32 s%d, s%d, 13' % (sT0, sW), 'v_lshlrev_b32 v%d, 7, v1' % vPA, 'v_add_u32 v%d, s%d, v%d' % (vPA, sT0, vPA)] + self.poll_issue()
        S.flow(c[:8] + ad, 0)
        wr = ['ds_write_b128 v%d, %s offset:%d' % (vT0, ar(O1 + 4 * t, 4), t * 1024) for t in range(16)]
        S.flow(wr, 21, cap=4, gmax=35)
        L += S.lines()
        L += ['s_waitcnt vmcnt(0)'] + ['ds_write_b128 v%d, %s offset:%d' % (vK, ar(L1 + 4 * q, 4), q * 1024) for q in range(2)]
        L += self.poll_check(3) + ['s_waitcnt lgkmcnt(0)', 's_barrier']
        L += ['ds_read_b32 v%d, v%d offset:%d' % (PB + q, vV, q * 1024) for q in range(2)]
        L += ['ds_read_b128 v[%d:%d], v%d offset:%d' % (64 + 4 * t, 67 + 4 * t, vT1, t * 1024) for t in range(16)]
        L += ['v_add_f32 v%d, v%d, v%d' % (L0 + 4 * q, L0 + 4 * q, PB + q) for q in range(2)]
        L += ['v_pk_add_f32 v[%d:%d], v[%d:%d], v[%d:%d]' % (O0 + e, O0 + e + 1, O0 + e, O0 + e + 1, 64 + e, 65 + e) for e in range(0, 64, 2)]
        L += self.finalize(sCtH, 2)
        L += ['s_cmp_lg_u32 s%d, 0' % sRedo, 's_cbranch_scc1 %s' % self.lab('redo'), self.lab('redor') + ':']
        self.slow()
        return L

    def slow(self):
        lb = self.lab
        C = CG[0]
        sO, sC, sJ = sK, sM, sN
        B = [lb('redo') + ':', 's_waitcnt vmcnt(0)', 's_bitcmp1_b32 s%d, 0' % sRedo, 's_cbranch_scc0 %s' % lb('rd2'),
             's_andn2_b32 s%d, s%d, 1' % (sRedo, sRedo), 's_lshl_b32 s%d, s%d, 2' % (sRho, sI), 's_add_u32 s%d, s%d, s%d' % (sRho, sRho, sW),
             's_mov_b32 s%d, s%d' % (sC, sCtL), 's_branch %s' % lb('sl0'),
             lb('rd2') + ':', 's_bitcmp1_b32 s%d, 1' % sRedo, 's_cbranch_scc0 %s' % lb('redor'),
             's_mov_b32 s%d, 0' % sRedo, 's_lshl_b32 s%d, s%d, 2' % (sRho, sI), 's_sub_u32 s%d, 60, s%d' % (sRho, sRho), 's_xor_b32 s3, s%d, 1' % sW,
             's_add_u32 s%d, s%d, s3' % (sRho, sRho), 's_mov_b32 s%d, s%d' % (sC, sCtH)]
        B += ['v_accvgpr_read_b32 v%d, a%d' % (QL + e, QP + e) for e in range(32)]
        B += [lb('sl0') + ':']
        def head(name):
            return ['s_mov_b32 s%d, 0' % sJ, lb(name) + ':', 's_lshr_b32 s%d, s%d, 1' % (sO, sJ), 's_lshl_b32 s%d, s%d, 15' % (sO, sO), 's_and_b32 s3, s%d, 1' % sJ,
                    's_lshl_b32 s3, s3, 13', 's_add_u32 s%d, s%d, s3' % (sO, sO)] + \
                   ['buffer_load_dwordx4 %s, v%d, %s, s%d offen offset:%d sc1' % (ar(KF + 4 * f, 4), vA[f >> 2], s4(S_A), sO, (f & 3) * 1024) for f in range(8)]
        def mask(name):
            return ['s_cmp_eq_u32 s%d, s%d' % (sJ, sRho), 's_cbranch_scc0 %s' % lb(name)] + self.tri(C) + [lb(name) + ':', 's_nop 1']
        qk = [l for l in self.qk('D', 0) if l.split(',')[2].strip().startswith('v')]
        assert len(qk) == 16
        def tail(name):
            return ['s_add_u32 s%d, s%d, 1' % (sJ, sJ), 's_cmp_le_u32 s%d, s%d' % (sJ, sRho), 's_nop 7', 's_cbranch_scc1 %s' % lb(name)]
        M = PB
        B += ['v_mov_b32 v%d, 0' % (C + e) for e in range(16)] + ['v_mov_b32 v%d, v%d' % (M + q, vBig) for q in range(2)]
        B += head('sl1') + mask('sl1m') + qk
        for q in range(2):
            B += ['v_max3_f32 v%d, v%d, v%d, v%d' % (M + q, M + q, SB[0] + 8 * q + 2 * e, SB[0] + 8 * q + 2 * e + 1) for e in range(4)]
        B += tail('sl1')
        for q in range(2):
            for sw in ('16', '32'):
                B += ['v_mov_b32 v%d, v%d' % (M + 2, M + q), 'v_permlane%s_swap_b32 v%d, v%d' % (sw, M + q, M + 2), 'v_max_f32 v%d, v%d, v%d' % (M + q, M + q, M + 2)]
            B += ['v_sub_f32 v%d, 0, v%d' % (C + 8 * q + e, M + q) for e in range(8)]
        B += self.zero0()
        B += head('sl2') + ['s_add_u32 s%d, s%d, 0x4000' % (sO, sO)]
        B += ['buffer_load_dwordx4 %s, v%d, %s, s%d offen offset:%d sc1' % (ar(VF + 4 * f, 4), vA[f >> 2], s4(S_A), sO, (f & 3) * 1024) for f in range(8)]
        B += mask('sl2m') + qk
        B += ['v_exp_f32 v%d, v%d' % (SB[0] + e, SB[0] + e) for e in range(16)] + self.cvts(0)[:8] + self.pv(qs=(0, 1))
        B += tail('sl2')
        B += self.finalize(sC, 0) + ['s_branch %s' % lb('redo')]
        self.ool.append(B)

    def phase4(self):
        o = self.opt
        R = o.get('ring', 6)
        sRB, sCB, sB, sWo = sK, sM, sN, sTI
        S_H, S_C, S_WD, S_WO = S_B0, S_B1, S_B2, S_W
        accF, accS = 32, 112
        XR = 192
        L = ['s_and_b32 s%d, s2, 6' % sRB, 's_lshl_b32 s%d, s%d, 2' % (sRB, sRB), 's_bfe_u32 s3, s2, 0x30003', 's_add_u32 s%d, s%d, s3' % (sRB, sRB),
             's_and_b32 s%d, s2, 1' % sCB, 's_lshl_b32 s%d, s%d, 2' % (sCB, sCB), 's_lshr_b32 s3, s2, 6', 's_add_u32 s%d, s%d, s3' % (sCB, sCB),
             's_mul_i32 s%d, s%d, %d' % (sT0, sRB, 54 * 4096), 's_add_u32 s%d, s%d, 0x%x' % (sT0, sT0, WS_H),
             's_lshl_b32 s%d, s%d, 19' % (sT1, sRB), 's_add_u32 s%d, s%d, 0x%x' % (sT1, sT1, WS_CTX)]
        L += srd_off(S_H, pWS, 's%d' % sT0, 54 * 4096) + srd_off(S_WD, pWS, WS_W + (5 << 20), 54 * 40960)
        L += ['s_lshl_b32 s%d, s%d, 12' % (sB, sW), 's_mul_i32 s%d, s%d, 8' % (sWo, sW), 's_add_u32 s%d, s%d, s%d' % (sWo, sWo, sCB), 's_mul_i32 s%d, s%d, 5120' % (sWo, sWo)]
        NK = 46
        def loads(k):
            base = (k % R) * 36
            sb, sw = (S_H, S_WD) if k < 14 else (S_C, S_WO)
            it = []
            if k == 14: it += ['s_sub_u32 s%d, s%d, %d' % (sB, sB, 14 * 16384), 's_sub_u32 s%d, s%d, %d' % (sWo, sWo, 14 * 163840)]
            it += ['buffer_load_dwordx4 %s, v%d, %s, s%d offen offset:%d sc1' % (ar(base + 16 + 4 * n, 4), vA[n >> 2], s4(sw), sWo, (n & 3) * 1024) for n in range(5)]
            if k == 14: it.append(self.stamp(20) + self.poll_check(5) + self.stamp(21))
            it += ['buffer_load_dwordx4 %s, v%d, %s, s%d offen offset:%d sc1' % (ar(base + 4 * j, 4), vA[0], s4(sb), sB, j * 1024) for j in range(4)]
            it += ['s_add_u32 s%d, s%d, 16384' % (sB, sB), 's_add_u32 s%d, s%d, 163840' % (sWo, sWo)]
            return it
        for k in range(R - 1): L += flat(loads(k))
        L += srd_off(S_C, pWS, 's%d' % sT1, 128 * 4096) + srd_off(S_WO, pWS, WS_W, 128 * 40960)
        L += ['s_lshr_b32 s%d, s%d, 1' % (sT0, sRB), 's_sub_u32 s%d, 15, s%d' % (sT1, sT0), 's_min_u32 s%d, s%d, s%d' % (sT0, sT0, sT1), 's_lshl_b32 s%d, s%d, 12' % (sT0, sT0),
              'v_and_b32 v%d, 31, v1' % vPA, 'v_lshlrev_b32 v%d, 7, v%d' % (vPA, vPA), 'v_add_u32 v%d, s%d, v%d' % (vPA, sT0, vPA)]
        L += [('@vmwait', 'ctx'), 's_barrier'] + self.flag(5) + self.stamp(19)
        S = Stream()
        for k in range(NK):
            base = (k % R) * 36
            acc = accF if k < 14 else accS
            for n in range(5):
                for j in (range(4) if n % 2 == 0 else reversed(range(4))):
                    d = vr(acc + (j * 5 + n) * 4, 4)
                    S.add('%s %s, %s, %s, %s' % (MF, d, ar(base + 16 + 4 * n, 4), ar(base + 4 * j, 4), '0' if k in (0, 14) else d))
        for k in range(NK):
            if k + R - 1 < NK:
                g = k * 20
                for x in loads(k + R - 1):
                    S.at(g, x); g += 1 if isinstance(x, str) and x.startswith('s_') else 2
                    g = min(g, k * 20 + 19)
        S.at((14 - R) * 20 + 1, self.poll_issue())
        vO = 4
        xa = ['s_lshl_b32 s%d, s%d, 2' % (sT0, sRB), 's_add_u32 s%d, s%d, s%d' % (sT0, sT0, sW), 's_mul_i32 s%d, s%d, %d' % (sT0, sT0, 16 * 1280),
              's_mul_i32 s%d, s%d, 160' % (sT1, sCB), 's_add_u32 s%d, s%d, s%d' % (sT0, sT0, sT1),
              'v_and_b32 v%d, 15, v1' % vO, 'v_mul_u32_u24 v%d, 1280, v%d' % (vO, vO), 'v_lshrrev_b32 v5, 4, v1', 'v_lshl_add_u32 v%d, v5, 3, v%d' % (vO, vO),
              'v_add_u32 v%d, s%d, v%d' % (vO, sT0, vO)] + self.keep_scc(srd(S_X, pX, pX + 1, 2048 * 1280) + srd(S_ST, pOUT, pOUT + 1, 2048 * 1280))
        xa += ['buffer_load_dwordx2 v[%d:%d], v%d, %s, 0 offen offset:%d' % (XR + 2 * n, XR + 2 * n + 1, vO, s4(S_X), n * 32) for n in range(5)]
        xa += ['s_mul_i32 s%d, s%d, 10240' % (sT0, sW), 'v_add_u32 v5, s%d, v%d' % (sT0, vA[0]), 'v_add_u32 v6, 0x%x, v5' % 81920,
               's_lshl_b32 s%d, s%d, 2' % (sT0, sT0), 'v_add_u32 v7, s%d, v%d' % (sT0, vA[0])]
        g = S.flow(xa, (NK - R + 1) * 20)
        wr = lambda acc, sel: ['ds_write_b128 v%d, v[%d:%d] offset:%d' % (5 + (j >> 1), acc + (j * 5 + n) * 4, acc + (j * 5 + n) * 4 + 3, (j & 1) * 40960 + (sel * 5 + n) * 1024)
                               for j in range(4) for n in range(5)]
        S.flow(wr(accF, 0), g + 1, cap=4)
        L += S.lines() + self.stamp(22)
        L += wr(accS, 1) + ['s_waitcnt lgkmcnt(0)', 's_barrier']
        for t in range(10):
            L += ['ds_read_b128 v[%d:%d], v7 offset:%d' % (32 + (t * 4 + ww) * 4, 35 + (t * 4 + ww) * 4, ww * 10240 + t * 1024) for ww in range(4)]
        L += ['s_mov_b32 s3, 0xbfb8aa3b']
        for t in range(10):
            b = 32 + t * 16
            for x, y in ((0, 4), (8, 12), (0, 8)):
                L += ['v_pk_add_f32 v[%d:%d], v[%d:%d], v[%d:%d]' % (b + x + e, b + x + e + 1, b + x + e, b + x + e + 1, b + y + e, b + y + e + 1) for e in (0, 2)]
        for n in range(5):
            f, s, x = 32 + n * 16, 112 + n * 16, XR + 2 * n
            L += ['v_mul_f32 v%d, s3, v%d' % (f + 4 + e, f + e) for e in range(4)]
            L += ['v_exp_f32 v%d, v%d' % (f + 4 + e, f + 4 + e) for e in range(4)]
            L += ['v_lshlrev_b32 v%d, 16, v%d' % (f + 8 + 2 * e, x + e) for e in range(2)] + ['v_and_b32 v%d, s%d, v%d' % (f + 9 + 2 * e, sMask, x + e) for e in range(2)]
            L += ['v_add_f32 v%d, 1.0, v%d' % (f + 4 + e, f + 4 + e) for e in range(4)]
            L += ['v_rcp_f32 v%d, v%d' % (f + 4 + e, f + 4 + e) for e in range(4)]
            L += ['v_mul_f32 v%d, v%d, v%d' % (f + e, f + e, s + e) for e in range(4)]
            L += ['v_fma_f32 v%d, v%d, v%d, v%d' % (f + e, f + e, f + 4 + e, f + 8 + e) for e in range(4)]
            L += ['v_cvt_pk_bf16_f32 v%d, v%d, v%d' % (f + e, f + 2 * e, f + 2 * e + 1) for e in range(2)]
            L += ['buffer_store_dwordx2 v[%d:%d], v%d, %s, 0 offen offset:%d' % (f, f + 1, vO, s4(S_ST), n * 32)]
        return L

    def build(self, stats=None):
        o = self.opt
        lazy = o.get('lazy', 8)
        L = self.prologue()
        pre, S = self.gemms()
        L += [('@vmwait', 'dma0'), 's_barrier'] + self.stamp(1) + pre
        L += S.lines()
        L += self.stamp(3)
        L += self.p2_epilogue()
        L += self.stamp(4)
        out, st = process(L, stats=stats, lazy=lazy)
        oa, st = self.attention(st, stats, lazy)
        out += oa
        L = self.phase4() + self.epoch_out()
        if self.SO: L += ['s_waitcnt vmcnt(0)'] + self.stamp(13) + self.stamp(15, True) + self.stamps_out()
        L += ['s_endpgm']
        out += process(L, st, stats=stats, lazy=lazy)[0]
        for blk in self.ool:
            out += process(blk, stats=stats)[0]
        out += [self.lab('end') + ':']
        return out
```

```python
from asmlib import *
from fused import *
from attn import *

WS_P = 72 << 20
sFA, sFW, sFM, sWO, sRL, sRH, sCB, sP0, sDH = 34, [35, 36, 37, 38], 39, [40, 41, 42, 43], 44, 45, 46, 47, [None, 48, 49, 50]
S_H, S_WD, S_WO, S_P = S_B0, S_B1, S_B2, S_W
FACC, FA, FB = 140, 160, 172
vFW, vFR = 248, 249
V2, P2 = 160, 144
CXL = 32
ACCL = [64 + 8 * n for n in range(10)]
ACCH = [32, 40, 48, 56, 144, 152, 160, 168, 8, 16]
vW1, vW2, v8K, vMW, vMR, vR = 4, 5, 6, 7, 24, [30, 25]
NRING = 16
sM2, sK2 = sTI, sX
sU = [51, 54, 55, 62, 74, 88]
def tmp(lines, k):
    f = lambda l: [f(y) for y in l] if isinstance(l, list) else re.sub(r'\bs3\b', 's%d' % sU[k], l)
    return [f(l) for l in lines]

vTC = 252
AD = ['s_lshl_b32 s%d, s%d, 14' % (sM2, sW), 'v_add_u32 v%d, s%d, v%d' % (vMW, sM2, vA[0]), 'v_xor_b32 v%d, 0x4000, v%d' % (vMR, vMW), 's_xor_b32 s%d, s%d, 0x4000' % (sM2, sM2),
      's_add_u32 s%d, s%d, %d' % (sK2, sK, 144 * 1024), 'v_lshl_add_u32 v250, v1, 2, s%d' % sK2, 'v_xor_b32 v251, 0x1000, v250',
      'v_lshrrev_b32 v%d, 4, v1' % vTC, 'v_and_b32 v253, 15, v1', 'v_lshlrev_b32 v253, 7, v253', 'v_lshl_add_u32 v%d, v%d, 12, v253' % (vTC, vTC)]

class KB(KA):
    H16 = True
    MAXF = 12

    def f_setup(self):
        x, jj = sT0, sT1
        L = ['s_and_b32 s%d, s2, 7' % x, 's_bfe_u32 s%d, s2, 0x20003' % jj,
             's_and_b32 s3, s2, 1', 's_lshl_b32 s%d, s%d, 1' % (sCB, jj), 's_add_u32 s%d, s%d, s3' % (sCB, sCB),
             's_and_b32 s3, s2, 6', 's_lshl_b32 s%d, s%d, 3' % (sRL, sI), 's_sub_u32 s%d, 120, s%d' % (sRH, sRL),
             's_add_u32 s%d, s%d, s3' % (sRL, sRL), 's_xor_b32 s3, s3, 2', 's_add_u32 s%d, s%d, s3' % (sRH, sRH),
             's_cmp_lt_u32 s%d, 2' % sW, 's_cselect_b32 s%d, s%d, s%d' % (sFA, sRL, sRH), 's_and_b32 s3, s%d, 1' % sW,
             's_add_u32 s%d, s%d, s3' % (sFA, sFA), 's_mul_i32 s%d, s%d, %d' % (sFA, sFA, 54 * 1024),
             's_mul_i32 s%d, s%d, 5' % (sT2, sCB), 's_lshl_b32 s3, s%d, 2' % sW, 's_add_u32 s%d, s%d, s3' % (sT2, sT2), 's_mul_i32 s%d, s%d, 52' % (sFM, sW)]
        for k in range(4):
            L += ['s_add_u32 s3, s%d, %d' % (sFM, 13 * k), 's_lshr_b32 s3, s3, 6', 's_mul_i32 s3, s3, 35', 's_add_u32 s3, s3, s%d' % sT2, 's_lshl_b32 s%d, s3, 10' % sFW[k]]
        L += ['s_lshl_b32 s%d, s%d, 12' % (sFM, sW), 's_add_u32 s%d, s%d, 0x20000' % (sFM, sFM),
              'v_mov_b32 v%d, v%d' % (vFW, vA[0]), 'v_add_u32 v%d, 0x20000, v%d' % (vFR, vA[0])]
        L += srd_off(S_H, pWS, WS_H, 128 * 54 * 1024) + srd_off(S_WD, pWS, WS_W + (5 << 20), 54 * 40960)
        return self.keep_scc(L)
    def w_setup(self):
        x, jj = sT0, sT1
        L = ['s_bfe_u32 s%d, s2, 0x20003' % jj,
             's_lshl_b32 s%d, s%d, 2' % (sT2, sH), 's_add_u32 s%d, s%d, s%d' % (sT2, sT2, sW), 's_lshl_b32 s%d, s%d, 2' % (sT2, sT2), 's_add_u32 s%d, s%d, s%d' % (sT2, sT2, jj),
             's_mul_i32 s%d, s%d, 10240' % (sWO[0], sT2)]
        for hr in range(1, 4):
            L += ['s_add_u32 s3, s%d, %d' % (jj, hr), 's_and_b32 s3, s3, 3', 's_sub_u32 s3, s3, s%d' % jj, 's_lshl_b32 s%d, s3, 14' % sDH[hr],
                  's_mul_i32 s3, s%d, 10' % sDH[hr], 's_add_u32 s%d, s%d, s3' % (sWO[hr], sWO[0])]
        L += srd_off(S_WO, pWS, WS_W, 128 * 40960)
        return self.keep_scc(L)
    def p_setup(self):
        L = ['s_andn2_b32 s3, s2, 7', 's_add_u32 s3, s3, s%d' % sW, 's_add_u32 s3, s3, s%d' % sW, 's_mul_i32 s3, s3, 80', 's_and_b32 s%d, s2, 7' % sP0,
             's_add_u32 s3, s3, s%d' % sP0, 's_lshl_b32 s%d, s3, 10' % sP0]
        L += srd_off(S_P, pWS, WS_P, 256 * 81920)
        return self.keep_scc(L)

    def place_vm(self, S, lines, g0, sp, tag=None):
        gp, k, out = g0 - 1, 0, []
        nxt = g0
        for l in lines:
            t = l[0] if isinstance(l, tuple) else l
            if not t.startswith('buffer_'):
                while S.load.get(gp, 0) >= 8: gp += 1
                S.at(gp, l)
                nxt = max(nxt, gp + 1)
            else:
                g = nxt
                c = [y for y in range(g, g + self.opt.get('pairw', 2)) if S.load.get(y, 0) == 4]
                if c: g = c[0]
                while S.load.get(g, 0) > 4: g += 1
                S.at(g, (l, tag) if tag and not isinstance(l, tuple) else l, front=True)
                out.append(g); gp = g; nxt = g + sp
        return out

    def body2(self, mode, kind):
        o = self.opt
        first, second, last, hasf = kind == 'first', kind == 'second', kind == 'last', kind == 'loop'
        base = self.qk(mode, 0) + ([] if first else self.pv()) + self.qk(mode, 1) + self.pv(zero=first)
        b1 = 32 if first else 68
        ins = o.get('fpos', [47 + 6 * k for k in range(15)]) if hasf else []
        S = Stream(); G = {}; fg = []
        for n, l in enumerate(base):
            G[n] = S.n(); S.add(l)
            if n in ins:
                u = len(fg); fg.append(S.n())
                d = ar(FACC + 4 * (u % 5), 4)
                S.add('%s %s, %s, %s, %s' % (MF, d, ar(FB + 4 * (u % 5), 4), ar(FA + 4 * (u // 5), 4), d))
        tag = kind[0] + mode
        for b, u in ((0, 1), (b1, 0)):
            for m in range(8):
                if not (last and b): S.at(G[b + 4 * m + 3], self.kread(u, m & 1, m >> 1))
        BAR = 31 if first else o.get('abar', 39)
        tog = ['v_mov_b32 v%d, v%d' % (vV, vK), 'v_xor_b32 v%d, %s, v%d' % (vK, 's%d' % sX if mode == 'D' else '0x10000', vK)]
        if last: tog = tog[:1]
        e0 = self.exps(0)
        if first:
            S.flow(e0[:3], 28)
            S.at(31, e0[3:27] + tog + self.hookD(tag + '1') + self.hop('f') + ([('@vmwait', 'h'), 's_waitcnt lgkmcnt(0)'] if o.get('ep2', 0) >= 2 and not o.get('noh') else ['s_waitcnt vmcnt(0) lgkmcnt(0)']) + ['s_barrier'] + self.flag(4 if o.get('hn') else 3))
            e0 = e0[27:]
            fs = self.f_setup()
            g = S.flow(fs[:-8], 0)
            assert g < 28, g
        else:
            S.at(BAR, [('@vmwait', 'kv'), 's_waitcnt lgkmcnt(0)', 's_barrier'])
            S.load[BAR] = 8
            S.at(G[b1] - 2, tog)
            if mode == 'D':
                S.at(-1, self.hookD(tag + '0'))
                S.at(G[b1] - 1, self.hookD(tag + '1'))
            elif last:
                S.at(G[b1] - 1, ['s_branch %s' % self.lab('hmid'), self.lab('hmidr2') + ':'])
                S.load[G[b1] - 1] = 8
            else:
                S.at(G[b1] - 1, ['s_cmp_lg_u32 s%d, 0' % sEv, 's_cbranch_scc1 %s' % self.lab('hmid'), self.lab('hmidr') + ':'])
            c = self.cvts(1)
            vr_ = [self.vread(1, db) for db in range(8)]
            gfree = S.flow([x for k in range(8) for x in (vr_[k], c[2 * k], c[2 * k + 1])], 0)
        if hasf:
            S.at(S.n() - 1, ['s_sub_u32 s%d, s%d, 1' % (sN, sN), 's_cbranch_scc0 %s' % self.lab('top' + mode)])
            for u in range(15):
                g = BAR + 1 + u if u < 2 else fg[u - 2]
                S.at(g, 'ds_read_b128 %s, v%d offset:%d' % (ar(FB + 4 * (u % 5), 4), vFR, u * 1024))
            S.at(fg[13], 'v_xor_b32 v%d, 0x4000, v%d' % (vFR, vFR))
        fdma = ['s_mov_b32 m0, s%d' % sFM] + ['buffer_load_dwordx4 v%d, %s, s%d offen offset:%d sc1 lds' % (vFW, s4(S_WD), sFW[k], k * 1024) for k in range(4)] + \
               ['s_xor_b32 s%d, s%d, 0x4000' % (sFM, sFM), 'v_add_u32 v%d, %d, v%d' % (vFW, 3 * 40960, vFW)]
        fa = ['buffer_load_dwordx4 %s, v%d, %s, s%d offen offset:%d sc1' % (ar(FA + 4 * t, 4), vA[0], s4(S_H), sFA, t * 1024) for t in range(3)]
        sp = o['dsp'] if mode == 'S' else o.get('dspD', o['dsp'])
        vr0 = [self.vread(0, db) for db in range(8)]
        kvd = self.kv_dma(mode)
        if o.get('ep2', 0) >= 2:
            four = lambda v: ['buffer_load_dwordx4 v%d, %s, s88 offen offset:%d sc1 lds' % (v, s4(S_A), k * 1024) for k in range(4)]
            if first: kvd = kvd[5:] + ['s_add_u32 m0, s62, 0x18000', 's_add_u32 s88, s88, 0x10000'] + four(vD2)
        if first:
            self.place_vm(S, kvd, 34, sp, 'kv')
            ge = S.flow(e0, 32)
        elif last:
            g = S.flow(self.w_setup() + ['v_add_u32 v%d, 0x2000, v%d' % (v8K, vA[0]), 's_mul_i32 s%d, s%d, 10240' % (sM, sW), 's_lshl_b32 s%d, s%d, 12' % (sK, sW)] + AD, gfree)
            assert g < BAR, g
            dm = []
            for hr in range(3):
                for n in range(10 if hr < 2 else 3):
                    if n % 4 == 0:
                        dm.append('s_add_u32 m0, s%d, %d' % (sM, 0x10000 + hr * 40960 + n * 1024) if hr < 2 else 's_add_u32 m0, s%d, %d' % (sK, 144 * 1024))
                    dm.append((self.wo_dma(hr, n), 'wo%d' % hr))
            gs = self.place_vm(S, dm, BAR + 2, sp)
            k = max(k for k, g in enumerate(gs) if g < G[b1] - 1)
            assert k < 9
            S.fill[gs[k]] = [(l[0], 'pre') if isinstance(l, tuple) and l[0].startswith('buffer_') else l for l in S.fill[gs[k]]]
            ge = S.flow(e0, G[28] + 1)
        else:
            gs = self.place_vm(S, fdma + kvd, BAR + 2, sp, 'kv')
            g = gs[-1] + sp
            if second:
                assert gs[-1] < o.get('gb', 124), gs
                S.at(BAR - 1, self.poll_check(3 if o.get('hn') else 2))
                g = o.get('gb', 124)
                S.at(g - 1, self.poll_check(4 if o.get('hn') else 3))
                S.flow(['v_accvgpr_write_b32 a%d, 0' % (FACC + e) for e in range(20)], gfree, gmax=28)
            for t in range(2):
                if hasf: g = max(g, fg[5 * t + 4])
                g = self.place_vm(S, fa[t:t + 1], g, sp)[0] + sp
            if hasf: S.flow([fa[2], 's_add_u32 s%d, s%d, 3072' % (sFA, sFA)], gfree)
            ge = S.flow(e0, G[28] + 1)
        if not last:
            g = S.flow(self.exps(1), G[b1 + 28] + 1)
            assert g < S.n(), g
        c = self.cvts(0)
        g = G[b1 + 30] if not last else G[b1 + 28]
        for l in reversed(c):
            while S.load.get(g, 0) + 4 > 8: g -= 1
            S.at(g, l, front=True)
        assert (g > ge and g >= G[b1]) or first, (g, ge)
        gl = S.flow(vr0, G[b1], gmax=G[b1 + 30])
        if first:
            pa = ['s_lshl_b32 s3, s%d, 6' % sW, 'v_add_lshl_u32 v%d, s3, v1, 7' % vPA]
            S.flow(pa + fs[-8:] + [(o.get('gp2', 90), self.poll_issue())], gl)
        if second:
            pa = ['s_lshl_b32 s3, s%d, 5' % sI, 'v_and_b32 v%d, 31, v1' % vPA, 'v_add_lshl_u32 v%d, s3, v%d, 7' % (vPA, vPA)]
            gg = S.flow(self.epoch_out() + ['s_lshl_b32 s3, s2, 5', 's_add_u32 s3, s3, s%d' % sW, 's_lshl_b32 s3, s3, 2', 's_add_u32 s3, s3, 16',
                                            'v_mov_b32 v%d, 0x7fff0000' % vFL, 'v_writelane_b32 v%d, s3, 0' % vFL] + pa, BAR + 1, gmax=80)
            gg = S.flow(self.poll_issue(), max(gg, o.get('gb', 124) - o.get('gp3', 44)), cap=12)
            assert gg < o.get('gb', 124) - 1
        if last:
            gl = S.flow(['ds_read_b128 %s, v%d offset:%d' % (ar(V2 + db * 4, 4), vV, 16384 + (8 + db) * 1024) for db in range(8)], gl, gmax=G[b1 + 31])
        if o.get('verbose'): print(tag, 'exp0 end', ge - G[b1], 'cvt start', g - G[b1], 'rd end', gl - G[b1], 'over', [(k, v) for k, v in sorted(S.load.items()) if v > 8])
        given = S if last else S.lines()
        return given

    def wo_dma(self, hr, n):
        return 'buffer_load_dwordx4 v%d, %s, s%d offen offset:%d sc1 lds' % ([vA[0], vA[1], v8K][n >> 2], s4(S_WO), sWO[hr], (n & 3) * 1024)
    def wo_lds(self, hr, ds, n):
        if hr < 2: a = 64 + (4 * hr + ds) * 10 + n
        elif hr == 2 and n < 4: a = 144 + ds * 4 + n
        elif hr == 2: a = (ds ^ 1) * 16 + n - 4
        else: a = (ds ^ 1) * 16 + 6 + n
        return [vA[0], vW1, vW2][a >> 6], (a & 63) * 1024

    def check(self, slow, t):
        return ['v_add_f32 v%d, v%d, v%d' % (t, L0, L0 + 4), 'v_cmp_gt_f32 vcc, 0x5f800000, v%d' % t, 's_cmp_eq_u64 vcc, -1',
                's_cbranch_scc0 %s' % self.lab(slow), self.lab(slow + 'r') + ':']
    def finalizeL(self):
        L = self.check('slowL', L0 + 2)
        L += ['v_rcp_f32 v%d, v%d' % (L0, L0), 'v_rcp_f32 v%d, v%d' % (L0 + 4, L0 + 4), 's_mov_b32 s3, s%d' % sCtL]
        for ds in range(4):
            if ds == 2: L.append('s_add_u32 s3, s3, 0x2000')
            for q in range(2):
                b, d = O0 + (ds * 2 + q) * 8, CXL + (ds * 2 + q) * 4
                L += ['v_pk_mul_f32 v[%d:%d], v[%d:%d], v[%d:%d] op_sel_hi:[1,0]' % (b + 2 * e, b + 2 * e + 1, b + 2 * e, b + 2 * e + 1, L0 + 4 * q, L0 + 4 * q + 1) for e in range(4)]
                L += ['v_cvt_pk_bf16_f32 v%d, v%d, v%d' % (d + e, b + 2 * e, b + 2 * e + 1) for e in range(4)]
                L += ['buffer_store_dwordx4 v[%d:%d], v%d, %s, s3 offen offset:%d sc1' % (d, d + 3, vA[ds & 1], s4(S_ST), q * 1024)]
        return L

    def slow2(self, name):
        lb = lambda s: self.lab(name + s)
        hi = name == 'slowH'
        C = 144
        SS, PP, M = (160, 8, 16) if hi else (96, 128, 136)
        Q = (lambda q, ds: ar(QP + (q * 4 + ds) * 4, 4)) if hi else (lambda q, ds: vr(QL + (q * 4 + ds) * 4, 4))
        sO, sJ = sSO, sSpin
        B = [lb('') + ':', 's_waitcnt vmcnt(0) lgkmcnt(0)', 's_lshl_b32 s%d, s%d, 2' % (sRho, sI)]
        if hi: B += ['s_sub_u32 s%d, 60, s%d' % (sRho, sRho), 's_xor_b32 s3, s%d, 1' % sW, 's_add_u32 s%d, s%d, s3' % (sRho, sRho)]
        else: B += ['s_add_u32 s%d, s%d, s%d' % (sRho, sRho, sW)]
        ld = ['buffer_load_dwordx4 %s, v%d, %s, s%d offen offset:%d sc1' % (ar(VF + 4 * f, 4), vA[f >> 2], s4(S_A), sO, (f & 3) * 1024) for f in range(8)]
        def head(n):
            return ['s_mov_b32 s%d, 0' % sJ, lb(n) + ':', 's_lshr_b32 s%d, s%d, 1' % (sO, sJ), 's_lshl_b32 s%d, s%d, 15' % (sO, sO), 's_and_b32 s3, s%d, 1' % sJ,
                    's_lshl_b32 s3, s3, 13', 's_add_u32 s%d, s%d, s3' % (sO, sO)] + ld
        def mask(n):
            return ['s_cmp_eq_u32 s%d, s%d' % (sJ, sRho), 's_cbranch_scc0 %s' % lb(n)] + self.tri(C) + [lb(n) + ':', 's_nop 1']
        qk = []
        for ds in range(4):
            for kb in range(2):
                for q in range(2):
                    d = vr(SS + (q * 2 + kb) * 4, 4)
                    qk.append('%s %s, %s, %s, %s' % (MF, d, ar(VF + (kb * 4 + ds) * 4, 4), Q(q, ds), vr(C + (q * 2 + kb) * 4, 4) if ds == 0 else d))
        def tail(n):
            return ['s_add_u32 s%d, s%d, 1' % (sJ, sJ), 's_cmp_le_u32 s%d, s%d' % (sJ, sRho), 's_nop 7', 's_cbranch_scc1 %s' % lb(n)]
        B += ['s_nop 7', 's_nop 7']
        B += ['v_mov_b32 v%d, 0' % (C + e) for e in range(16)] + ['v_mov_b32 v%d, v%d' % (M + q, vBig) for q in range(2)]
        B += head('1') + mask('1m') + qk
        for q in range(2):
            B += ['v_max3_f32 v%d, v%d, v%d, v%d' % (M + q, M + q, SS + 8 * q + 2 * e, SS + 8 * q + 2 * e + 1) for e in range(4)]
        B += tail('1')
        for q in range(2):
            for sw in ('16', '32'):
                B += ['v_mov_b32 v%d, v%d' % (M + 2, M + q), 'v_permlane%s_swap_b32 v%d, v%d' % (sw, M + q, M + 2), 'v_max_f32 v%d, v%d, v%d' % (M + q, M + q, M + 2)]
            B += ['v_sub_f32 v%d, 0, v%d' % (C + 8 * q + e, M + q) for e in range(8)]
        B += self.zero0()
        if hi:
            B += ['ds_write_b128 v%d, v[%d:%d] offset:%d' % (vMR, O0, O0 + 3, t * 1024) for t in range(16)] + ['s_waitcnt lgkmcnt(0)']
        B += head('2') + mask('2m') + qk + ['s_add_u32 s%d, s%d, 0x4000' % (sO, sO)]
        B += ['v_exp_f32 v%d, v%d' % (SS + e, SS + e) for e in range(16)] + ld
        B += ['v_cvt_pk_bf16_f32 v%d, v%d, v%d' % (PP + e, SS + 2 * e, SS + 2 * e + 1) for e in range(8)]
        B += [l.replace(vr(PB, 4), vr(PP, 4)).replace(vr(PB + 4, 4), vr(PP + 4, 4)) for l in self.pv(qs=(0, 1))]
        B += tail('2') + ['s_nop 7', 's_branch %s' % lb('r')]
        self.ool.append(B)

    def attention(self, st, stats, lazy):
        out = []
        lb = self.lab
        def run(lines, st): return process(lines, st, stats=stats, lazy=lazy)
        def ok(o, *sts):
            for s in sts:
                p = process(o, s, pad=False)[0]
                if p != o:
                    k = next(k for k in range(len(o)) if p[k] != o[k])
                    print('\n'.join(p[max(0, k - 30):k + 5])); print(s.lg, s.vm)
                assert p == o
                assert [t for t, _ in s.vm][-2:] == [None] * 2, s.vm
        def loop(lines, st):
            o1, st1 = process(lines, st, lazy=lazy); o2, st2 = run(lines, st1)
            assert st1.sig() == st2.sig()
            ok(o2, st, st2)
            return o2, st2
        lastD = ['s_mov_b32 s%d, 0x10000' % sTI, 's_mov_b32 s%d, s%d' % (sX, sXe)]
        o, st = run(self.attn_pro() + self.stamp(16) + self.body2('D', 'first') +
                    ['s_cmp_eq_u32 s%d, 0' % sI] + [l.replace('s_mov', 's_cmov') for l in lastD] + self.body2('D', 'second') +
                    ['s_waitcnt lgkmcnt(0)', 's_sub_u32 s%d, s%d, 2' % (sN, sN), 's_cbranch_scc1 %s' % lb('entS')], st); out += o
        st1 = st
        oD, st = loop([lb('topD') + ':'] + self.body2('D', 'loop'), st); out += oD
        post = ['s_cmp_eq_u32 s%d, 0x8000' % sTI] + lastD + ['s_mov_b32 s%d, 0' % sN, 's_cbranch_scc1 %s' % lb('topD')]
        o, st = run(post, st); out += o
        ok(oD, st)
        ent = [lb('entS') + ':'] + self.stamp(17) + ['s_mov_b32 s%d, 1' % sEv, 's_lshl_b32 s3, s%d, 1' % sI, 's_sub_u32 s%d, 13, s3' % sN, 's_cbranch_scc1 %s' % lb('postS')]
        o, st = run(ent, st); out += o
        st1 = process(o, st1)[1]
        stD = st
        oS, st = loop([lb('topS') + ':'] + self.body2('S', 'loop'), st); out += oS
        ok(oS, st1)
        post = [lb('postS') + ':', 's_or_b32 s%d, s%d, 2' % (sEv, sEv), 's_cmp_eq_u32 s%d, 2' % sW, 's_cbranch_scc0 %s' % lb('hs0'), lb('topL') + ':']
        self.ool.append([lb('hs0') + ':',
                         's_cmp_eq_u32 s%d, 1' % sW, 's_cbranch_scc1 %s' % lb('hs0a'),
                         's_cmp_eq_u32 s%d, 3' % sW, 's_cbranch_scc1 %s' % lb('hs0b')] + self.tri(CG[1]) + ['s_nop 0', 's_branch %s' % lb('topL'),
                         lb('hs0a') + ':'] + self.allm(CG[1]) + self.allm(CP) + ['s_nop 0', 's_branch %s' % lb('topL'),
                         lb('hs0b') + ':'] + self.tri(CP) + ['s_nop 0', 's_branch %s' % lb('topL')])
        self.ool.append([lb('hmid') + ':', 's_bitcmp1_b32 s%d, 0' % sEv, 's_cbranch_scc0 %s' % lb('hm1'), 's_nop 7'] + self.finalizeL() + self.zero0() +
                        ['s_bitcmp1_b32 s%d, 1' % sEv, 's_mov_b32 s%d, 0' % sEv, 's_cbranch_scc0 %s' % lb('hmidr'),
                         lb('hm1') + ':', 's_cmp_eq_u32 s%d, 0' % sW, 's_cbranch_scc1 %s' % lb('hm2'),
                         's_cmp_eq_u32 s%d, 3' % sW, 's_cbranch_scc0 %s' % lb('hmidr2')] + self.tri(CG[1]) + self.allm(CP) + ['s_nop 0', 's_branch %s' % lb('hmidr2'),
                         lb('hm2') + ':'] + self.allm(CG[1]) + self.tri(CP) + ['s_nop 0', 's_branch %s' % lb('hmidr2')])
        self.slow2('slowL'); self.slow2('slowH')
        o, st = run(post + self.finish(self.body2('S', 'last')), st); out += o
        if not self.opt.get('abl'): ok(o, stD)
        return out, st

    def areg(self, part, hr, ds, q):
        f = ds * 2 + q
        if hr == 0: return vr(CXL + 4 * f, 4) if part == 0 else vr(O0 + 8 * f, 4)
        if part == 0: return ar([160, 64, 96][hr - 1] + 4 * f, 4)
        return ar([192, 224][hr - 1] + 4 * f, 4) if hr < 3 else vr(O0 + 4 + 8 * f, 4)
    def freg(self, k):
        return ar(64 + 4 * k, 4) if k < 16 else ar(160 + 4 * (k - 16), 4) if k < 24 else vr(O0 + 8 * (k - 24), 4)

    def finish(self, S):
        o = self.opt
        E = S.n()
        sp = o.get('wsp', 5.5)
        for l in self.pv(qs=(2, 3)) + self.pv(qs=(0, 1)):
            for q in range(4): l = l.replace(vr(PB + 4 * q, 4), vr(P2 + 4 * q, 4))
            for db in range(8): l = l.replace(', ' + ar(VF + 4 * db, 4) + ', v', ', ' + ar(V2 + 4 * db, 4) + ', v')
            S.add(l)
        allk = lambda *h: [(hr, ds) for hr in h for ds in range(4)]
        mix = o.get('mix', 'HLLHLLHH')
        seg = [('k', 0, allk(0))] + [('k', int(c == 'H'), [(int(c == 'L'), mix[:k].count(c))]) for k, c in enumerate(mix)]
        seg += [('c', 0, allk(2, 3))] if o.get('lc', 1) == 2 else [('k', 0, allk(2)), ('c', 0, allk(3))]
        hk = o.get('hk', 8)
        seg += [('k', 1, allk(1, 2, 3)[:hk], (0, 1, 2)), ('c', 1, allk(1, 2, 3)[hk:], (0, 1, 2)), ('c', 1, allk(1, 2, 3), (3, 4))]
        uses = []
        needA = {}
        lastA = {}
        done = {}
        seen = set()
        for kind, part, ks, *cs in seg:
            cs = cs[0] if cs else range(5)
            order = [(hr, ds, n) for hr, ds in ks for c in cs for n in (c, 5 + c)] if kind == 'k' else [(hr, ds, n) for c in cs for hr, ds in ks for n in (c, 5 + c)]
            for hr, ds, n in order:
                u = len(uses)
                uses.append((S.n(), hr, ds, n))
                needA.setdefault((part, hr, ds), S.n())
                for q in ((0, 1) if u % 2 == 0 else (1, 0)):
                    d = vr((ACCH if part else ACCL)[n] + 4 * q, 4)
                    S.add('%s %s, %s, %s, %s' % (MF, d, ar(4 * (u % NRING), 4), self.areg(part, hr, ds, q), d if (part, n) in seen else '0'))
                seen.add((part, n))
                done[(part, n)] = lastA[(part, hr, ds)] = S.n() - 1
        assert len(uses) == 320
        F0 = S.n()
        facc = lambda j, n: ar(FACC + 4 * n, 4) if j == 0 else vr(64 + (j - 1) * 20 + 4 * n, 4)
        fdone = {}
        for n in range(5):
            for t in range(3):
                for j in range(4):
                    d = facc(j, n)
                    fdone[(j, n)] = S.n()
                    S.add('%s %s, %s, %s, %s' % (MF, d, self.freg(9 * t + 4 + n), self.freg(9 * t + j), '0' if t == 0 and j else d))
        bar = lambda g, *tags: S.at(g, [('@vmwait', t) for t in tags] + ['s_waitcnt lgkmcnt(0)', 's_barrier'])
        LA = o.get('wla', 16)
        B1 = E - 1
        bar(B1, 'wo0'); S.load[B1] = 8
        first = lambda p: min(g for g, hr, ds, n in uses if p(hr))
        B3, B4a, B4 = [first(lambda h: h == k) - LA - 1 for k in (1, 2, 3)]
        if o.get('lc', 1) == 2: B4 = B4a
        else: S.at(B4a, [('@vmwait', 'wo2'), 's_barrier']); S.load[B4a] = 8
        S.at(B4, [('@vmwait', 'wo3'), 's_barrier']); S.load[B4] = 8
        g6 = E + o.get('g6', 0)
        touch = lambda s: ['buffer_load_dword a%d, v%d, %s, s%d offen sc1' % (135, vTC, s4(S_ST), s)] if o.get('touch', 1) else []
        S.at(g6, [('@vmwait', 'pre')] + self.flag(6))
        wr = []
        gw = E + 6
        for db in range(8):
            for q in range(2):
                t = (db >> 1) * 4 + q * 2 + (db & 1)
                wr.append((max(int(gw), E + 2 + 2 * db + 4), 'ds_write_b128 v%d, %s offset:%d' % (vMW, ar(O1 + 4 * t, 4), t * 1024)))
                gw += o.get('msp', 3.5)
        gmw = S.flow(wr, E + 4)
        gt6 = S.flow(touch(sCtL) + [(E + 9, 'ds_write_b32 v251, a%d offset:3072' % L1), (E + 19, 'ds_write_b32 v251, a%d offset:3328' % (L1 + 4))], E + 6)
        for u, (g, hr, ds, n) in enumerate(uses):
            v, off = self.wo_lds(hr, ds, n)
            S.at(g - LA, 'ds_read_b128 %s, v%d offset:%d' % (ar(4 * (u % NRING), 4), v, off))
        ex = lambda q: ['v_exp_f32 v%d, v%d' % (SB[1] + 8 * q + e, SB[1] + 8 * q + e) for e in range(8)]
        cv = lambda q: ['v_cvt_pk_bf16_f32 v%d, v%d, v%d' % (P2 + e, SB[1] + 2 * e, SB[1] + 2 * e + 1) for e in range(4 * q, 4 * q + 4)]
        g = S.flow(ex(2)[:4] + ex(3) + ex(2)[4:] + cv(3) + cv(2), E - 36 - 3)
        assert g < E - 1, g
        ad = ['v_add_u32 v%d, 0x10000, v%d' % (vW1, vA[0]), 'v_add_u32 v%d, 0x20000, v%d' % (vW2, vA[0])]
        pa = ['s_andn2_b32 s3, s2, 24', 's_lshl_b32 s3, s3, 5', 's_add_u32 s3, s3, s%d' % sW, 's_lshl_b32 s3, s3, 2', 's_add_u32 s3, s3, 16',
              'v_and_b32 v%d, 3, v1' % vPA, 'v_lshl_add_u32 v%d, v%d, 10, s3' % (vPA, vPA)]
        g = S.flow(ex(0) + cv(0) + ex(1) + cv(1), g)
        assert g < E + 18, g - E
        gp = S.flow(ad + tmp(pa, 0), E - 36)
        assert gp < E + 36 - LA - 1, gp - E
        g = gmw
        B2 = max(g + o.get('b2d', 8), E + 37)
        while S.load.get(B2, 0): B2 += 1
        bar(B2, 'wo1')
        assert gt6 <= B2 + 6 and B2 < B3
        S.at(B2, ['ds_read_b32 v%d, v250 offset:%d' % (L0 + 1 + 4 * q, 3072 + q * 256) for q in range(2)])
        g = B2 + 6
        S.at(g, ['v_add_f32 v%d, v%d, v%d' % (L0 + 4 * q, L0 + 4 * q, L0 + 1 + 4 * q) for q in range(2)] + self.check('slowH', L0 + 2))
        X = lambda f: 240 + 8 * (f & 1)
        rdx = lambda f: ['ds_read_b128 v[%d:%d], v%d offset:%d' % (X(f) + 4 * k, X(f) + 4 * k + 3, vMR, (2 * f + k) * 1024) for k in range(2)]
        vTC2 = vMW
        g = S.flow(['v_mov_b32 v%d, v%d' % (vTC2, vTC)] + rdx(1) + ['v_rcp_f32 v%d, v%d' % (vR[q], L0 + 4 * q) for q in range(2)] + rdx(0), g + 1)
        g += 4
        freed = {}
        cap = o.get('fcap', 8)
        for f in (1, 0, 3, 2, 5, 4, 7, 6):
            b, ds, q = O0 + 8 * f, f >> 1, f & 1
            g = S.flow(['v_add_f32 v%d, v%d, v%d' % (b + e, b + e, X(f) + e) for e in range(8)], g, cap=cap)
            freed[f] = g
            it = (rdx(f + 2) if f < 6 else []) + ['v_mul_f32 v%d, v%d, v%d' % (b + e, b + e, vR[q]) for e in range(8)]
            it += ['v_cvt_pk_bf16_f32 v%d, v%d, v%d' % (b + e, b + 2 * e, b + 2 * e + 1) for e in range(4)]
            g = S.flow(it, g, cap=cap)
            assert g < needA[(1, 0, ds)] - 1, (f, g, needA[(1, 0, ds)])
            if f == 5: g = S.flow(['s_add_u32 s%d, s%d, 0x2000' % (sT2, sCtH)], g, cap=cap)
            g = S.flow([('buffer_store_dwordx4 v[%d:%d], v%d, %s, s%d offen offset:%d sc1' % (b, b + 3, vA[ds & 1], s4(S_ST), sCtH if ds < 2 else sT2, q * 1024), 'cx')], g, cap=cap)
        gfin = g
        def aloads(part):
            it = []
            for hr in range(1, 4):
                for ds in range(4):
                    if ds == 0: it.append('s_add_u32 s%d, s%d, s%d' % (sT0, sCtH if part else sCtL, sDH[hr]))
                    if ds == 2: it.append('s_add_u32 s%d, s%d, 0x2000' % (sT0, sT0))
                    it += ['buffer_load_dwordx4 %s, v%d, %s, s%d offen offset:%d sc1' % (self.areg(part, hr, ds, q), vA[ds & 1], s4(S_ST), sT0, q * 1024) for q in range(2)]
            return it
        def chk(gs, part):
            sl = [needA[(part, 1 + k // 8, (k >> 1) & 3)] - g for k, g in enumerate(gs)]
            if o.get('verbose'): print('A slack', part, sl)
            assert min(sl) > 0
        c6 = E + o.get('c6', 60)
        assert gp < c6 - o.get('pd', 30) and c6 >= E + 36
        S.at(c6 - o.get('pd', 30), self.poll_issue())
        S.at(c6, self.stamp(19) + self.hop('c6') + self.poll_check(6) + self.stamp(20))
        al = aloads(0)
        w2, w3 = [], []
        for a in range(16):
            hr, n = (2, 4 + a) if a < 6 else (3, a - 6)
            dm = w2 if a < 6 else w3
            if n % 4 == 0: dm.append('s_add_u32 m0, s%d, %d' % (sM2, a * 1024))
            dm.append((freed[a >> 1] + 1, (self.wo_dma(hr, n), 'wo%d' % hr)))
        q = al[:10] + [(B2 + 8, 's_mov_b32 m0, s%d' % sK2), (self.wo_dma(2, 3), 'wo2')] + al[10:20] + w2 + w3 + al[20:]
        gs = self.place_vm2(S, q, c6 + 1, sp)
        chk(gs[:8] + gs[9:17] + gs[33:], 0)
        if o.get('verbose'): print('E', E, 'B2', B2 - E, 'fin end', gfin - E, 'c6', c6 - E, 'vm', [x - E for x in gs], 'B4', B4a - E, B4 - E, 'F0', F0 - E)
        assert gs[22] < B4a and gs[32] < B4
        gAL, gW3 = gs[-1], gs[32]
        S.flow(tmp(self.p_setup(), 4), gfin + 1)
        g7 = gfin + o.get('g7', 75)
        S.flow([[('@vmwait', 'cx')] + self.flag(7)] + [l.replace('v%d,' % vTC, 'v%d,' % vTC2) for l in touch(sCtH)], g7)
        c7 = E + o.get('c7', 350)
        assert c7 > gAL
        assert g7 < c7 - o.get('pd', 30)
        S.at(c7 - o.get('pd', 30), self.poll_issue())
        S.at(c7, self.stamp(21) + self.hop('c7') + self.poll_check(7) + self.stamp(22))
        gs = self.place_vm2(S, aloads(1), c7 + 1, sp)
        chk(gs, 1)
        gAH = gs[-1]
        gst = {}
        for part in range(2):
            g = 0
            for n in sorted(range(10), key=lambda n: done[(part, n)]):
                b = (ACCH if part else ACCL)[n]
                t = part + (part and n % 5 > 2)
                g = S.flow(['v_cvt_pk_bf16_f32 v%d, v%d, v%d' % (b + e, b + 2 * e, b + 2 * e + 1) for e in range(4)] +
                           ['s_add_u32 s%d, s%d, %d' % (sT1, sP0, (n // 5) * 81920 + (part * 5 + n % 5) * 8192),
                            ('buffer_store_dwordx4 v[%d:%d], v%d, %s, s%d offen sc1' % (b, b + 3, vA[0], s4(S_P), sT1), 'p%d' % t)], max(g, done[(part, n)] + 4))
                gst[t] = g
        assert gst[0] < min(done[(1, n)] for n in range(10))
        g8 = S.flow([[('@vmwait', 'p0')] + self.flag(8)], gst[0] + o.get('g8', 80))
        g9 = S.flow([[('@vmwait', 'p1')] + self.flag(9)], gst[1] + o.get('g9', 75))
        sJ = sFW
        su = ['s_mul_i32 s%d, s%d, 3' % (sFM, sW), 's_add_u32 s%d, s%d, 42' % (sFM, sFM)]
        for j in range(4):
            su += ['s_add_u32 s3, s%d, %d' % (sW, j), 's_bitcmp1_b32 s3, 1', 's_cselect_b32 s%d, s%d, s%d' % (sJ[j], sRH, sRL), 's_and_b32 s3, s3, 1',
                   's_add_u32 s3, s3, s%d' % sJ[j], 's_mul_i32 s3, s3, 54', 's_add_u32 s3, s3, s%d' % sFM, 's_lshl_b32 s%d, s3, 10' % sJ[j]]
        su += ['s_lshl_b32 s%d, s%d, 3' % (sFM, sFM), 's_add_u32 s%d, s%d, s%d' % (sFM, sFM, sCB), 's_mul_i32 s%d, s%d, 5120' % (sFM, sFM)]
        g = S.flow(tmp(self.keep_scc(su), 1), c7 + 2)
        it = []
        for t in range(3):
            it += ['buffer_load_dwordx4 %s, v%d, %s, s%d offen offset:%d sc1' % (self.freg(9 * t + j), vA[0], s4(S_H), sJ[j], t * 1024) for j in range(4)]
            it += ['buffer_load_dwordx4 %s, v%d, %s, s%d offen offset:%d sc1' % (self.freg(9 * t + 4 + n), vA[n >> 2], s4(S_WD), sFM, (n & 3) * 1024) for n in range(5)]
            if t < 2: it.append('s_add_u32 s%d, s%d, 40960' % (sFM, sFM))
        gl = max(max(v for (p, hr, ds), v in lastA.items() if p == 0 or hr == 0) + 1, gAH + sp, g + 1)
        gs = self.place_vm2(S, it, gl, sp)
        if o.get('verbose'): print('g7', g7 - E, 'c7', c7 - E, 'AH end', gAH - E, 'pst', gst[0] - E, gst[1] - E, 'fl', gs[0] - E, gs[-1] - E)
        assert gs[-1] < F0 + 20
        gF = gs[-1]
        sPA, sPB, sOA, sOB = sWO
        vO, vO2 = 6, 24
        su = ['s_mul_i32 s%d, s2, 10' % sPB, 's_add_u32 s%d, s%d, s%d' % (sPA, sPB, sW), 's_lshl_b32 s%d, s%d, 13' % (sPA, sPA),
              's_mul_i32 s3, s%d, 5' % sCB, 's_add_u32 s3, s3, s%d' % sW, 's_lshl_b32 s3, s3, 5', 's_mul_i32 s%d, s%d, 20480' % (sOA, sRL), 's_mul_i32 s%d, s%d, 20480' % (sOB, sRH),
              's_add_u32 s%d, s%d, s3' % (sOA, sOA), 's_add_u32 s%d, s%d, s3' % (sOB, sOB), 's_add_u32 s3, s%d, 32' % sOA,
              's_cmp_eq_u32 s%d, 3' % sW, 's_cselect_b32 s%d, s3, s%d' % (sOB, sOB), 's_cselect_b32 s3, 1, 5', 's_lshl_b32 s3, s3, 13', 's_add_u32 s%d, s%d, s3' % (sPB, sPA),
              'v_and_b32 v%d, 15, v1' % vO, 'v_mul_u32_u24 v%d, 1280, v%d' % (vO, vO), 'v_lshrrev_b32 v%d, 4, v1' % vO2, 'v_lshl_add_u32 v%d, v%d, 3, v%d' % (vO, vO2, vO),
              'v_add_u32 v%d, 20480, v%d' % (vO2, vO)]
        su += srd(S_X, pX, pX + 1, 2048 * 1280) + srd(S_A, pOUT, pOUT + 1, 2048 * 1280)
        g = S.flow(tmp(self.keep_scc(su), 2), gW3 + 1)
        XR = 240
        xl = ['buffer_load_dwordx2 v[%d:%d], v%d, %s, s%d offen offset:%d' % (XR + 4 * k + 2 * q, XR + 4 * k + 2 * q + 1, [vO, vO2][q], s4(S_X), [sOA, sOB, sOB][k], 96 * (k == 2)) for k in range(3) for q in range(2)]
        gs = self.place_vm2(S, xl, max(g + 1, gAL + 4), 4)
        if o.get('verbose'): print('x loads', gs[0] - E, gs[-1] - E)
        SEL = 140
        su = ['s_andn2_b32 s3, s2, 7', 's_lshl_b32 s3, s3, 7', 's_and_b32 s%d, s2, 6' % sT2, 's_lshl_b32 s%d, s%d, 1' % (sT2, sT2), 's_add_u32 s3, s3, s%d' % sT2, 's_add_u32 s3, s3, 16',
              'v_and_b32 v%d, 7, v1' % vPA, 'v_lshl_add_u32 v%d, v%d, 7, s3' % (vPA, vPA)]
        g = S.flow(tmp(su, 5), c7 + 2)
        pd = o.get('pd', 30)
        c8 = max(gF + 4, g8 + 30 + pd)
        assert g < c8 - pd
        pregs = {0: [124, 128, 132] + [O0 + 8 * f for f in range(3, 8)], 1: [32 + 4 * p for p in range(6)] + [152, 156], 2: [192 + 4 * p for p in range(8)]}
        prn = lambda k, p: (ar if k == 2 else vr)(pregs[k][p], 4)
        pl = lambda k: ['buffer_load_dwordx4 %s, v%d, %s, s%d offen offset:%d sc1' % (prn(k, p), vA[p >> 2], s4(S_P), [sPA, sPB, sPA][k], (p & 3) * 1024) for p in range(8)]
        S.at(c8 - pd, self.poll_issue())
        S.at(c8, self.stamp(23) + self.hop('c8') + self.poll_check(8) + self.stamp(24))
        gs = self.place_vm2(S, pl(0), c8 + 1, sp)
        c9 = g9 + o.get('d9', 30) + pd
        assert c9 < S.n() - 2 and c9 - pd > c8, (c9 - F0, c8 - F0)
        S.at(c9 - pd, self.poll_issue())
        S.at(c9, self.stamp(25) + self.hop('c9') + self.poll_check(9) + self.stamp(26))
        n_in = min(8, (S.n() - 2 - c9) // 3)
        self.place_vm2(S, pl(1)[:n_in], c9 + 1, 3)
        S.at(F0 + 1, ['s_barrier'])
        vFJ = [136, 137, 138, 139]
        su = []
        for j in range(4):
            su += ['s_add_u32 s3, s%d, %d' % (sW, j), 's_and_b32 s3, s3, 3', 's_mul_i32 s3, s3, 20', 's_add_u32 s3, s3, s%d' % sW, 's_lshl_b32 s3, s3, 10', 'v_add_u32 v%d, s3, v%d' % (vFJ[j], vA[0])]
        su += ['s_lshl_b32 s3, s%d, 12' % sW, 'v_add_u32 v25, s3, v%d' % vA[0], 's_cmp_eq_u32 s%d, 3' % sW, 's_cselect_b32 s3, 4, 40', 's_lshl_b32 s3, s3, 10', 'v_add_u32 v252, s3, v25']
        X0 = SEL + 2
        su += ['v_lshrrev_b32 v%d, 4, v1' % SEL, 'v_bfe_u32 v%d, v1, 1, 3' % (SEL + 1), 'v_lshlrev_b32 v%d, 1, v%d' % (SEL, SEL), 'v_sub_u32 v%d, v%d, v%d' % (SEL + 1, SEL + 1, SEL),
               'v_and_b32 v%d, 1, v1' % SEL, 'v_lshlrev_b32 v%d, 4, v%d' % (SEL, SEL), 's_movk_i32 s3, 0x3f80', 'v_lshlrev_b32 v%d, v%d, s3' % (SEL, SEL),
               ['v_cmp_eq_u32 vcc, 0, v%d' % (SEL + 1), 'v_cndmask_b32 v%d, 0, v%d, vcc' % (X0, SEL)], ['v_cmp_eq_u32 vcc, 1, v%d' % (SEL + 1), 'v_cndmask_b32 v%d, 0, v%d, vcc' % (X0 + 1, SEL)],
               'v_mov_b64 v[%d:%d], 0' % (SEL, SEL + 1)]
        su = [l for x in su for l in ([x] if isinstance(x, list) else [x])]
        k = next(k for k, l in enumerate(su) if isinstance(l, list))
        g = S.flow(tmp(self.keep_scc(su[:k]) + su[k:], 3), g8 + 1)
        assert g < F0 + 12, g - F0
        fw = sorted(fdone, key=lambda k: fdone[k])
        wl = []
        for k in fw: wl.append((max(fdone[k] + 4, wl[-1][0] + 3 if wl else 0), 'ds_write_b128 v%d, %s offset:%d' % (vFJ[k[0]], facc(*k), k[1] * 4096)))
        nin = sum(1 for e, _ in wl if e < S.n())
        S.flow(wl[:nin], F0 + 2, gmax=S.n() - 1)
        for k, gx in enumerate(o.get('xst', [])): S.at(E + gx, self.stamp([5, 6, 7, 8, 9, 10, 11, 12, 18][k]))
        if o.get('verbose'): print('g8', g8 - E, 'g9', g9 - E, 'c8', c8 - F0, 'c9', c9 - F0, 'nin', n_in, nin, 'over', [(k - E, v) for k, v in sorted(S.load.items()) if v > 8 and k >= E - 40])
        L = S.lines() + pl(1)[n_in:] + [l for _, l in wl[nin:]] + self.stamp(27)
        fl = [('@vmwait', 'p2')] + self.flag(10)
        L += ['s_add_u32 s%d, s%d, %d' % (sPA, sPB, 3 * 8192), 's_mov_b32 s3, 0xbfb8aa3b', 's_waitcnt lgkmcnt(0)', 's_barrier']
        FR = lambda k, q: [64, 80, 96, 160, 176, 8][2 * k + q]
        rd = lambda k: ['ds_read_b128 v[%d:%d], v%d offset:%d' % (FR(k, q) + 4 * ww, FR(k, q) + 4 * ww + 3, 252 if k else 25, 12288 * (k == 2) + q * 20480 + ww * 1024) for q in range(2) for ww in range(4)]
        pk = lambda op, d, x, y: 'v_pk_%s_f32 v[%d:%d], %s, v[%d:%d]' % (op, d, d + 1, x if isinstance(x, str) else 'v[%d:%d]' % (x, x + 1), y, y + 1)
        def silu(k):
            R = []
            for q in range(2):
                b = FR(k, q)
                for x, y in ((0, 4), (8, 12), (0, 8)): R += [pk('add', b + x + e, b + x + e, b + y + e) for e in (0, 2)]
                R += ['v_mul_f32 v%d, s3, v%d' % (b + 4 + e, b + e) for e in range(4)]
                R += ['v_exp_f32 v%d, v%d' % (b + 4 + e, b + 4 + e) for e in range(4)]
                R += ['v_lshlrev_b32 v%d, 16, v%d' % (b + 8 + 2 * e, XR + 4 * k + 2 * q + e) for e in range(2)]
                R += ['v_add_f32 v%d, 1.0, v%d' % (b + 4 + e, b + 4 + e) for e in range(4)]
                R += ['v_rcp_f32 v%d, v%d' % (b + 4 + e, b + 4 + e) for e in range(4)]
                R += ['v_and_b32 v%d, s%d, v%d' % (b + 9 + 2 * e, sMask, XR + 4 * k + 2 * q + e) for e in range(2)]
                R += [pk('mul', b + e, b + e, b + 4 + e) for e in (0, 2)]
            return R
        SUM = lambda k, q: [112, 116, 120, 56, 60, 148][2 * k + q]
        sums = lambda k: ['%s %s, %s, %s, %s' % (MF, vr(SUM(k, q), 4), vr(SEL + 2 - 2 * q, 4), prn(k, p), vr(SUM(k, q), 4) if p else '0') for p in range(8) for q in range(2)]
        def outs(k):
            R = []
            for q in range(2):
                b, d = FR(k, q), SUM(k, q)
                R += ['v_pk_fma_f32 v[%d:%d], v[%d:%d], v[%d:%d], v[%d:%d]' % (d + e, d + e + 1, d + e, d + e + 1, b + e, b + e + 1, b + 8 + e, b + 9 + e) for e in (0, 2)]
            for q in range(2):
                d = SUM(k, q)
                R += ['v_cvt_pk_bf16_f32 v%d, v%d, v%d' % (d + e, d + 2 * e, d + 2 * e + 1) for e in range(2)]
                R += ['buffer_store_dwordx2 v[%d:%d], v%d, %s, s%d offen offset:%d%s' % (d, d + 1, [vO, vO2][q], s4(S_A), [sOA, sOB, sOB][k], 96 * (k == 2), o.get('outfl', ''))]
            return R
        def mixin(a, m):
            R = []
            for k, l in enumerate(a):
                R.append(l)
                if k % 3 == 2 and m: R.append(m.pop(0))
            return R + m
        L += rd(0) + rd(1) + fl + self.stamp(28) + ['v_mov_b64 v[%d:%d], 0' % (SEL + 4, SEL + 5)] + rd(2)
        w = mixin(silu(0), sums(0)) + outs(0) + mixin(silu(1), sums(1)) + outs(1)
        pi = o.get('pi', 60)
        L += w[:pi] + self.poll_issue() + w[pi:]
        L += ['s_cmp_lt_u32 s%d, 2' % sW, 's_cbranch_scc0 %s' % self.lab('fin')] + self.stamp(29) + self.poll_check(10) + self.stamp(30)
        L += pl(2) + silu(2) + sums(2) + outs(2) + [self.lab('fin') + ':']
        pats = {'f': r'load_dwordx4.*(%s|%s)' % (re.escape(s4(S_H)), re.escape(s4(S_WD))), 'A': r'load_dwordx4.*' + re.escape(s4(S_ST)), 'ps': r'store.*' + re.escape(s4(S_P)),
                'pl': r'load.*' + re.escape(s4(S_P)), 'W': r'load.*' + re.escape(s4(S_WO)), 'cs': r'store.*' + re.escape(s4(S_ST)), 'x': r'load.*' + re.escape(s4(S_X))}
        for a in o.get('abl', []): L = [l for l in L if not re.search(pats[a], l[0] if isinstance(l, tuple) else l)]
        return L

    def place_vm2(self, S, lines, g0, sp):
        vg = self.opt.get('vgap', 2)
        def isvm(l):
            t = l[0] if isinstance(l, tuple) else l
            return t.startswith('buffer_')
        def near(g): return any(isvm(l) for y in range(g - vg + 1, g + vg) for l in S.fill.get(y, []))
        g, out, pend, fr = int(g0), [], [], 0
        for l in lines:
            if isinstance(l, tuple) and isinstance(l[0], int):
                g = max(g, l[0]); l = l[1]
            if not isvm(l):
                pend.append(l); continue
            k = 0
            while near(g) and k < 6: g += 1; k += 1
            if pend:
                S.at(g - 1, pend); pend = []
            S.at(g, l)
            out.append(g); fr += sp - int(sp); g += int(sp) + int(fr); fr -= int(fr)
        assert not pend
        return out

    def build(self, stats=None):
        o = self.opt
        lazy = o.get('lazy', 8)
        L = self.prologue()
        pre, S = self.gemms()
        L += self.hop('p') + self.stamp(12)
        L += [('@vmwait', 'dma0'), 's_barrier'] + self.stamp(1) + pre
        L += S.lines()
        L += self.stamp(3)
        L += self.p2_epilogue()
        L += self.stamp(4)
        out, st = process(L, stats=stats, lazy=lazy)
        oa, st = self.attention(st, stats, lazy)
        out += oa
        L = []
        if self.SO: L += ['s_waitcnt vmcnt(0)'] + self.stamp(13) + self.stamp(15, True) + self.stamps_out()
        L += ['s_endpgm ;@stop']
        out += process(L, st, stats=stats, lazy=lazy)[0]
        for blk in self.ool:
            out += process(blk, stats=stats)[0]
        out += [self.lab('end') + ':']
        if o.get('pg'):
            import pg
            out = pg.pads(out, self.lab, sW, True, o.get('al', 0))
        return out
```

```python
from asmlib import *
from k1 import srd, half_reduce, layernorm

MF = 'v_mfma_f32_16x16x32_bf16'
MF32 = 'v_mfma_f32_32x32x16_bf16'
WS_KV, WS_XN, WS_H, WS_CTX, WS_W, WS_Q, WS_DBG = 0, 32 << 20, 36 << 20, 44 << 20, 60 << 20, 72 << 20, 128 << 20
WS_FL = 35 << 20

S_A, S_B0, S_B1, S_B2, S_ST, S_FL, S_X = 4, 8, 12, 16, 20, 24, 28
pX, pC, pWQ, pUK, pUV, pWO, pBX, pWG, pWU, pWD, pOUT, pDBG, pWS = [32 + 2 * i for i in range(13)]
sW, sH, sI, sMask, sMB, sMA = 58, 59, 60, 61, 62, 63
sAo = [64, 65, 66, 67]
sBo = [68, 69, 70, 71]
sGo = [72, 73]
sFB, sT0, sT1, sT2, sSO = 74, 75, 76, 77, 78
sSpin = 79
S_W = 80
sStamp = 98
sRot, sInc, sIncB, sIncG, sRot2 = 84, 85, 86, 87, 88
sEp, sBase = 89, 90
vA = [2, 3]; vB = [4, 5]; vG = [6, 7]
vRA1 = [8, 9]; vRA2 = [10, 11]
vRB = list(range(12, 20)); vRG = list(range(20, 24))
vSTK, vSTV, vFL, vPA, vPR, vT0, vT1, vSTAMP = 24, 25, 26, 27, 28, 29, 30, 31
vBASE = 0
aTA, aTB, aTW = 118, 119, 120
sTW, sTWs = 91, 97

def s4(b): return 's[%d:%d]' % (b, b + 3)

def srd_off(d, p, off, nrec):
    o = ['s_add_u32 s%d, s%d, %s' % (d, p, off if isinstance(off, str) else '0x%x' % off), 's_addc_u32 s%d, s%d, 0' % (d + 1, p + 1)]
    o += ['s_mov_b32 s%d, %s' % (d + 2, nrec if isinstance(nrec, str) else '0x%x' % nrec), 's_mov_b32 s%d, 0x00020000' % (d + 3)]
    return o

def flat(x):
    o = []
    for y in x:
        if isinstance(y, list): o += flat(y)
        else: o.append(y)
    return o

class K:
    H16 = False
    def __init__(self, name, opt):
        self.name = name
        self.opt = opt
        self.SO = opt.get('stamps', False)
        self.nlab = 0
        self.ool = []
    def lab(self, s): return '%s_%s' % (self.name, s)
    def stamp(self, i, real=False, force=False):
        if not self.SO: return []
        if not force and i in self.opt.get('mute', ()): return []
        if real:
            return ['s_memrealtime s[%d:%d]' % (sStamp, sStamp + 1), 's_waitcnt lgkmcnt(0)', 'v_writelane_b32 v%d, s%d, %d' % (vSTAMP, sStamp, i)]
        return ['s_memtime s[%d:%d]' % (sStamp, sStamp + 1), 's_memrealtime s[%d:%d]' % (sStamp + 2, sStamp + 3), 's_waitcnt lgkmcnt(0)',
                'v_writelane_b32 v%d, s%d, %d' % (vSTAMP, sStamp, i), 'v_writelane_b32 v%d, s%d, %d' % (vSTAMP, sStamp + 2, 32 + i)]
    def stamps_out(self):
        if not self.SO: return []
        return srd_off(S_X, pWS, WS_DBG, 0x40000) + [
            's_lshl_b32 s3, s2, 2', 's_add_u32 s3, s3, s%d' % sW, 's_lshl_b32 s3, s3, 8',
            'v_lshlrev_b32 v2, 2, v1', 'v_add_u32 v2, s3, v2',
            'buffer_store_dword v%d, v2, %s, 0 offen' % (vSTAMP, s4(S_X))]
    def hop(self, k): return ['s_nop 0 ;@hop'] if k in self.opt.get('pg', []) else []
    def flag(self, val):
        return ['v_add_u32 v%d, %d, v%d' % (vT0, val, vBASE), 'buffer_store_dword v%d, v%d, %s, 0 offen sc1' % (vT0, vFL, s4(S_FL))]
    def poll_issue(self):
        return ['buffer_load_dword v%d, v%d, %s, 0 offen sc1' % (vPR, vPA, s4(S_FL))]
    MAXF = 5
    def poll_check(self, need):
        self.nlab += 1
        a, b = self.lab('pl%d' % self.nlab), self.lab('pd%d' % self.nlab)
        chk = ['v_sub_u32 v%d, v%d, v%d' % (vPR, vPR, vBASE), 'v_subrev_u32 v%d, %d, v%d' % (vPR, need, vPR), 'v_cmp_ge_u32 vcc, %d, v%d' % (self.MAXF - need, vPR)]
        self.ool.append([a + ':', 's_sleep 2'] + self.poll_issue() + ['s_waitcnt vmcnt(0)'] + chk +
                ['s_add_u32 s%d, s%d, 1' % (sSpin, sSpin), 's_cmp_eq_u64 vcc, -1', 's_cbranch_scc1 %s' % b,
                's_cmp_lt_u32 s%d, 0x8000' % sSpin, 's_cbranch_scc1 %s' % a, 's_branch %s' % b])
        return chk + ['s_mov_b32 s%d, 0' % sSpin, 's_cmp_eq_u64 vcc, -1', 's_cbranch_scc0 %s' % a, b + ':']
    def epoch_out(self):
        return ['s_add_u32 s%d, s%d, 1' % (sEp, sEp), 'v_mov_b32 v%d, s%d' % (vT0, sEp), 'v_add_u32 v%d, 0x8000, v%d' % (vT1, vFL),
                'buffer_store_dword v%d, v%d, %s, 0 offen sc1' % (vT0, vT1, s4(S_FL))]

    def prologue(self):
        L = ['s_cmp_lt_u32 s2, 256', 's_cbranch_scc1 %s' % self.lab('go'), 's_endpgm', self.lab('go') + ':']
        if self.SO: L += ['s_memrealtime s[96:97]']
        L += ['s_load_dwordx16 s[32:47], s[0:1], 0', 's_load_dwordx8 s[48:55], s[0:1], 64', 's_load_dwordx2 s[56:57], s[0:1], 96']
        L += ['v_and_b32 v1, 63, v0', 'v_lshrrev_b32 v%d, 6, v0' % vT0, 'v_mov_b32 v%d, 0' % vSTAMP,
              'v_readfirstlane_b32 s%d, v%d' % (sW, vT0)]
        L += ['s_and_b32 s%d, s2, 7' % sT0, 's_bfe_u32 s%d, s2, 0x20003' % sT1, 's_lshr_b32 s%d, s2, 5' % sI,
              's_lshl_b32 s%d, s%d, 2' % (sH, sT0), 's_add_u32 s%d, s%d, s%d' % (sH, sH, sT1)]
        L += ['s_mul_i32 s%d, s%d, 3' % (sFB, sT0), 's_add_u32 s%d, s%d, s%d' % (sFB, sFB, sT1),
              's_mul_i32 s%d, s%d, 3' % (sT2, sI), 's_sub_u32 s%d, s%d, s%d' % (sT2, sT0, sT2), 's_and_b32 s%d, s%d, 7' % (sT2, sT2),
              's_add_u32 s%d, s%d, 24' % (sT2, sT2), 's_cmp_eq_u32 s%d, 3' % sT1, 's_cselect_b32 s%d, s%d, s%d' % (sFB, sT2, sFB)]
        L += ['s_lshl_b32 s%d, s%d, 1' % (sRot2, sT1), 's_add_u32 s%d, s%d, s%d' % (sRot2, sRot2, sI)]
        if self.opt.get('norot'): L += ['s_mov_b32 s%d, 0' % sRot2]
        L += ['s_and_b32 s%d, s%d, 7' % (sRot, sRot2), 's_sub_u32 s%d, s%d, 10' % (sInc, sRot2), 's_cselect_b32 s%d, s%d, s%d' % (sRot2, sRot2, sInc)]
        r1 = self.opt.get('rot1')
        if r1 is not None:
            L += ['s_and_b32 s%d, s%d, %d' % (sRot, sI, r1 - 1), 's_mul_i32 s%d, s%d, %d' % (sRot, sRot, 8 // r1)]
        if self.opt.get('rot2') == 0: L += ['s_mov_b32 s%d, 0' % sRot2]
        if self.opt.get('rot2') == 'i': L += ['s_mov_b32 s%d, s%d' % (sRot2, sI)]
        if self.opt.get('rot2') == 'x': L += ['s_mov_b32 s%d, s%d' % (sRot2, sT0)]
        L += ['s_mov_b32 s%d, 0xffff0000' % sMask,
              's_lshl_b32 s%d, s%d, 12' % (sMB, sW), 's_lshl_b32 s%d, s%d, 13' % (sMA, sW), 's_add_u32 s%d, s%d, 0x10000' % (sMA, sMA)]
        L += ['s_lshl_b32 s%d, s%d, 2' % (sT0, sI), 's_add_u32 s%d, s%d, s%d' % (sT0, sT0, sW), 's_lshl_b32 s%d, s%d, 16' % (sAo[0], sT0)]
        for j in range(1, 4):
            L.append('s_add_u32 s%d, s%d, %d' % (sAo[j], sAo[0], j * 16384 - (j & 1) * 2048))
        L += ['s_lshl_b32 s%d, s%d, 17' % (sBo[0], sW), 's_lshl_b32 s%d, s%d, 8' % (sT1, sH), 's_add_u32 s%d, s%d, s%d' % (sBo[0], sBo[0], sT1)]
        for j in range(1, 4):
            L.append('s_add_u32 s%d, s%d, %d' % (sBo[j], sBo[0], j * 32768 - j * 1024))
        L += self.a_dma_addr(1024, sRot)
        t0, t1 = vT0, vT1
        L += ['v_lshrrev_b32 v%d, 4, v1' % t0, 'v_and_b32 v%d, 15, v1' % t1,
              'v_lshlrev_b32 v%d, 1, v%d' % (vB[1], t0), 'v_xor_b32 v%d, v%d, v%d' % (t1, t1, vB[1]),
              'v_lshl_add_u32 v%d, s%d, 6, v%d' % (t0, sRot, t0),
              'v_lshlrev_b32 v%d, 13, v%d' % (t0, t0), 'v_lshl_add_u32 v%d, v%d, 4, v%d' % (vB[0], t1, t0),
              'v_xor_b32 v%d, 0x80, v%d' % (vB[1], vB[0])]
        vLN = 40 if self.opt.get('np') != 2 else 6
        L += ['s_lshl_b32 s%d, s2, 2' % sT2, 's_add_u32 s%d, s%d, s%d' % (sT2, sT2, sW),
              's_lshl_b32 s%d, s%d, 1' % (sT1, sT2),
              'v_lshrrev_b32 v%d, 5, v1' % t0, 'v_add_u32 v%d, s%d, v%d' % (t0, sT1, t0),
              's_movk_i32 s%d, 1280' % sT1, 'v_mul_lo_u32 v%d, v%d, s%d' % (t0, t0, sT1), 'v_and_b32 v%d, 31, v1' % t1,
              'v_lshl_add_u32 v%d, v%d, 4, v%d' % (vLN, t1, t0), 'v_lshl_add_u32 v%d, v%d, 3, v%d' % (vLN + 1, t1, t0)]
        L += ['s_waitcnt lgkmcnt(0)']
        if self.SO: L += ['s_memrealtime s[94:95]']
        if self.opt.get('np') == 2: return L + self.prologue3()
        if self.opt.get('np'): return L + self.prologue2(vLN)
        L += srd(S_B0, pUK, pUK + 1, 512 * 8192) + srd(S_B1, pUV, pUV + 1, 512 * 8192) + srd(S_A, pC, pC + 1, 2048 * 1024)
        L += srd(S_X, pX, pX + 1, 2048 * 1280)
        LNL, LNX, LNT = 44, 56, 80
        d0 = self.dma1(0)
        L += flat(d0)
        if self.SO: L += ['s_memrealtime s[92:93]']
        L += srd_off(S_FL, pWS, WS_FL, 32768 + 4) + ['s_buffer_load_dword s%d, %s, 0x8000' % (sEp, s4(S_FL))]
        L += ['buffer_load_dwordx4 v[%d:%d], v%d, %s, 0 offen' % (LNL, LNL + 3, vLN, s4(S_X)),
              'buffer_load_dwordx4 v[%d:%d], v%d, %s, 0 offen offset:512' % (LNL + 4, LNL + 7, vLN, s4(S_X)),
              'buffer_load_dwordx2 v[%d:%d], v%d, %s, 0 offen offset:1024' % (LNL + 8, LNL + 9, vLN + 1, s4(S_X))]
        L += flat(self.dma1(1))
        L += self.stamp(0) + self.stamp(14, True)
        if self.SO: L += ['v_writelane_b32 v%d, s96, 46' % vSTAMP, 'v_writelane_b32 v%d, s94, 47' % vSTAMP, 'v_writelane_b32 v%d, s92, 63' % vSTAMP]
        if self.opt.get('codepf', True):
            L += ['s_getpc_b64 s[%d:%d]' % (S_W, S_W + 1), self.lab('pc') + ':', 'v_lshlrev_b32 v34, 7, v0']
            for i in range(self.opt.get('codepf_n', 2)):
                L += ['v_min_u32 v32, %s-%s-4, v34' % (self.lab('end'), self.lab('pc')), 'v_mov_b32 v33, s%d' % (S_W + 1),
                      'v_add_co_u32 v32, vcc, s%d, v32' % S_W, 'v_addc_co_u32 v33, vcc, 0, v33, vcc',
                      'global_load_dword a%d, v[32:33], off' % (112 + i), 'v_add_u32 v34, 0x8000, v34']
        L += ['s_cmp_lt_u32 s%d, 640' % sT2,
              's_cselect_b32 s%d, s%d, s%d' % (S_W, pWO, pWD), 's_cselect_b32 s%d, s%d, s%d' % (S_W + 1, pWO + 1, pWD + 1),
              's_mov_b32 s%d, 0x%x' % (S_W + 2, 1728 * 1280), 's_cmov_b32 s%d, 0x%x' % (S_W + 2, 4096 * 1280),
              's_cselect_b32 s%d, 0, 640' % sT0, 's_mov_b32 s%d, 0x00020000' % (S_W + 3)]
        L += ['s_sub_u32 s%d, s%d, s%d' % (sT0, sT2, sT0),
              's_mul_i32 s%d, s%d, 52429' % (sT1, sT0), 's_lshr_b32 s%d, s%d, 18' % (sT1, sT1),
              's_mul_i32 s3, s%d, 5' % sT1, 's_sub_u32 s%d, s%d, s3' % (sT0, sT0),
              's_mul_i32 s%d, s%d, %d' % (sT1, sT1, 32 * 1280), 's_lshl_b32 s%d, s%d, 8' % (sT0, sT0),
              's_add_u32 s%d, s%d, s%d' % (sT0, sT0, sT1),
              'v_lshrrev_b32 v36, 4, v1', 's_movk_i32 s3, 1280', 'v_mul_lo_u32 v36, v36, s3', 'v_and_b32 v37, 15, v1',
              'v_lshl_add_u32 v36, v37, 4, v36', 'v_add_u32 v36, s%d, v36' % sT0]
        for j in range(8 if not self.opt.get('now') else 0):
            if j % 4 == 0:
                L.append('s_add_u32 m0, s%d, %d' % (sMA, 0x10000 + j * 1024))
            L += ['s_mov_b32 s3, %d' % (j * 4 * 1280 - (j % 4) * 1024),
                  ('buffer_load_dwordx4 v36, %s, s3 offen offset:%d lds' % (s4(S_W), (j % 4) * 1024), 'wt')]
        L += ['s_lshl_b32 s%d, s%d, 13' % (sT0, sT2), 's_add_u32 s%d, s%d, 0x%x' % (sT0, sT0, WS_W),
              's_cmp_lt_u32 s%d, 910' % sT2, 's_cselect_b32 s%d, 8192, 0' % sT1]
        self.w_srd = srd_off(S_W, pWS, 's%d' % sT0, 's%d' % sT1)
        L += self.w_srd
        L += self.read_addrs()
        L += srd_off(S_ST, pWS, WS_XN, 2048 * 1280)
        L += ['s_mul_i32 s%d, s%d, 0x9e3779b1' % (sBase, sEp), 'v_mov_b32 v%d, s%d' % (vBASE, sBase)]
        L += self.stamp(12) + layernorm(LNL, LNX, LNT, sMask) + self.stamp(18)
        L += ['buffer_store_dwordx4 v[%d:%d], v%d, %s, 0 offen sc1' % (LNL, LNL + 3, vLN, s4(S_ST)),
              'buffer_store_dwordx4 v[%d:%d], v%d, %s, 0 offen offset:512 sc1' % (LNL + 4, LNL + 7, vLN, s4(S_ST)),
              ('buffer_store_dwordx2 v[%d:%d], v%d, %s, 0 offen offset:1024 sc1' % (LNL + 8, LNL + 9, vLN + 1, s4(S_ST)), 'xn')]
        return L

    def w_block(self, v, t):
        su = ['s_lshl_b32 s%d, s2, 2' % sT2, 's_add_u32 s%d, s%d, s%d' % (sT2, sT2, sW), 's_mov_b32 s%d, 0x%x' % (S_W + 2, 1728 * 1280), 's_cmp_lt_u32 s%d, 640' % sT2,
              's_cselect_b32 s%d, s%d, s%d' % (S_W, pWO, pWD), 's_cselect_b32 s%d, s%d, s%d' % (S_W + 1, pWO + 1, pWD + 1),
              's_cmov_b32 s%d, 0x%x' % (S_W + 2, 4096 * 1280), 's_cselect_b32 s%d, 0, 640' % sT0, 's_mov_b32 s%d, 0x00020000' % (S_W + 3),
              's_sub_u32 s%d, s%d, s%d' % (sT0, sT2, sT0), 's_mul_i32 s%d, s%d, 52429' % (sT1, sT0), 's_lshr_b32 s%d, s%d, 18' % (sT1, sT1),
              's_mul_i32 s3, s%d, 5' % sT1, 's_sub_u32 s%d, s%d, s3' % (sT0, sT0),
              's_mul_i32 s%d, s%d, %d' % (sT1, sT1, 32 * 1280), 's_lshl_b32 s%d, s%d, 8' % (sT0, sT0), 's_add_u32 s%d, s%d, s%d' % (sT0, sT0, sT1),
              'v_lshrrev_b32 v%d, 4, v1' % v, 'v_mul_u32_u24 v%d, 1280, v%d' % (v, v), 'v_and_b32 v%d, 15, v1' % t,
              'v_lshl_add_u32 v%d, v%d, 4, v%d' % (v, t, v), 'v_add_u32 v%d, s%d, v%d' % (v, sT0, v)]
        ld = []
        for j in range(8):
            it = ['s_add_u32 m0, s%d, %d' % (sMA, 0x10000 + j * 1024)] if j % 4 == 0 else []
            ld.append((it + ['s_mov_b32 s%d, %d' % (sT1, j * 4 * 1280 - (j % 4) * 1024)],
                       ('buffer_load_dwordx4 v%d, %s, s%d offen offset:%d%s lds' % (v, s4(S_W), sT1, (j % 4) * 1024, self.opt.get('wfl', '')), 'wt')))
        sw = ['s_lshl_b32 s%d, s%d, 13' % (sT0, sT2), 's_add_u32 s%d, s%d, 0x%x' % (sT0, sT0, WS_W),
              's_cmp_lt_u32 s%d, 910' % sT2, 's_cselect_b32 s%d, 8192, 0' % sT1] + srd_off(S_W, pWS, 's%d' % sT0, 's%d' % sT1)
        return su, ld, sw
    def touchA(self, v, t, d, dst):
        return ['s_lshr_b32 s3, s2, 3', 's_lshl_b32 s3, s3, 2', 's_add_u32 s3, s3, s%d' % sW, 's_lshl_b32 s3, s3, 14',
                'v_lshrrev_b32 v%d, 4, v1' % v, 'v_add_u32 v%d, s%d, v%d' % (v, sRot, v), 'v_add_u32 v%d, %d, v%d' % (v, d & 7, v), 'v_and_b32 v%d, 7, v%d' % (v, v),
                'v_and_b32 v%d, 15, v1' % t, 'v_lshl_add_u32 v%d, v%d, 3, v%d' % (v, t, v), 'v_lshlrev_b32 v%d, 7, v%d' % (v, v),
                'buffer_load_dword a%d, v%d, %s, s3 offen' % (dst, v, s4(S_A))]
    def touchB(self, v, t, dst):
        R = self.opt.get('rot1', 1)
        L = ['s_cmp_lt_u32 s%d, 2' % sW, 's_cselect_b32 s%d, s%d, s%d' % (S_W, pUK, pUV), 's_cselect_b32 s%d, s%d, s%d' % (S_W + 1, pUK + 1, pUV + 1),
             's_mov_b32 s%d, 0x%x' % (S_W + 2, 512 * 8192), 's_mov_b32 s%d, 0x00020000' % (S_W + 3),
             's_and_b32 s3, s%d, 1' % sW, 's_lshl_b32 s%d, s%d, 1' % (sT0, sI), 's_add_u32 s3, s3, s%d' % sT0, 's_lshl_b32 s3, s3, 7', 's_add_u32 s3, s3, s%d' % sH, 's_lshl_b32 s3, s3, 8']
        L += ['v_lshrrev_b32 v%d, 3, v1' % v, 'v_add_u32 v%d, %d, v%d' % (v, 2 * R, v)]
        if R > 1:
            sh = {2: 1, 4: 2}[R]
            L += ['v_and_b32 v%d, %d, v%d' % (t, R - 1, v), 'v_lshrrev_b32 v%d, %d, v%d' % (v, sh, v), 'v_lshl_add_u32 v%d, v%d, %d, v%d' % (v, t, 3 - sh, v),
                  'v_cmp_gt_u32 vcc, %d, v1' % (64 - 16 * R), 'v_mov_b32 v%d, 8' % t, 'v_cndmask_b32 v%d, v%d, v%d, vcc' % (v, t, v)]
        L += ['v_bfe_u32 v%d, v1, 1, 2' % t, 'v_lshl_add_u32 v%d, v%d, 6, v%d' % (v, v, t), 'v_and_b32 v%d, 1, v1' % t, 'v_lshl_add_u32 v%d, v%d, 6, v%d' % (v, v, t),
              'v_lshlrev_b32 v%d, 7, v%d' % (v, v), 'buffer_load_dword a%d, v%d, %s, s3 offen' % (dst, v, s4(S_W))]
        return L
    def prologue2(self, vLN):
        o = self.opt
        LNL, LNX, LNT = 44, 56, 80
        xl = srd(S_X, pX, pX + 1, 2048 * 1280) + \
             ['buffer_load_dwordx4 v[%d:%d], v%d, %s, 0 offen' % (LNL, LNL + 3, vLN, s4(S_X)),
              'buffer_load_dwordx4 v[%d:%d], v%d, %s, 0 offen offset:512' % (LNL + 4, LNL + 7, vLN, s4(S_X)),
              'buffer_load_dwordx2 v[%d:%d], v%d, %s, 0 offen offset:1024' % (LNL + 8, LNL + 9, vLN + 1, s4(S_X))]
        d0 = srd(S_B0, pUK, pUK + 1, 512 * 8192) + srd(S_B1, pUV, pUV + 1, 512 * 8192) + srd(S_A, pC, pC + 1, 2048 * 1024) + flat(self.dma1(0))
        cp = ['s_getpc_b64 s[%d:%d]' % (S_W, S_W + 1), self.lab('pc') + ':', 's_lshr_b32 s3, s2, 3', 's_lshl_b32 s3, s3, 2', 's_add_u32 s3, s3, s%d' % sW,
              'v_lshl_add_u32 v34, v1, 7, s3', 'v_lshlrev_b32 v34, 7, v34', 'v_mov_b32 v33, s%d' % (S_W + 1),
              'v_cmp_gt_u32 vcc, %s-%s-4, v34' % (self.lab('end'), self.lab('pc')), 's_and_saveexec_b64 s[%d:%d], vcc' % (S_W + 2, S_W + 3),
              'v_add_co_u32 v32, vcc, s%d, v34' % S_W, 'v_addc_co_u32 v33, vcc, 0, v33, vcc',
              'global_load_dword a112, v[32:33], off', 's_mov_b64 exec, -1']
        L = xl + d0 if o.get('xfirst', 1) else d0 + xl
        if self.SO: L += ['s_memrealtime s[92:93]']
        L += srd_off(S_FL, pWS, WS_FL, 32768 + 4) + ['s_buffer_load_dword s%d, %s, 0x8000' % (sEp, s4(S_FL))]
        L += cp
        d1 = self.dma1(1)
        n0, n1 = o.get('d1a', 0), o.get('d1pre', 16)
        L += flat(d1[:n0])
        L += self.read_addrs()
        L += srd_off(S_ST, pWS, WS_XN, 2048 * 1280)
        L += self.stamp(0) + self.stamp(14, True)
        if self.SO: L += ['v_writelane_b32 v%d, s96, 46' % vSTAMP, 'v_writelane_b32 v%d, s94, 47' % vSTAMP, 'v_writelane_b32 v%d, s92, 63' % vSTAMP]
        L += ['s_mul_i32 s%d, s%d, 0x9e3779b1' % (sBase, sEp), 'v_mov_b32 v%d, s%d' % (vBASE, sBase)]
        L += layernorm(LNL, LNX, LNT, sMask) + self.stamp(12)
        L += ['buffer_store_dwordx4 v[%d:%d], v%d, %s, 0 offen sc1' % (LNL, LNL + 3, vLN, s4(S_ST)),
              'buffer_store_dwordx4 v[%d:%d], v%d, %s, 0 offen offset:512 sc1' % (LNL + 4, LNL + 7, vLN, s4(S_ST)),
              ('buffer_store_dwordx2 v[%d:%d], v%d, %s, 0 offen offset:1024 sc1' % (LNL + 8, LNL + 9, vLN + 1, s4(S_ST)), 'xn')]
        L += flat(d1[n0:n1])
        self.d1rest = d1[n1:]
        assert n1 >= 2
        if o.get('tch', 1) == 1:
            if o.get('rot1', 8) < 4: L += self.touchB(100, 101, 113)
            L += self.touchA(102, 103, 0, 114)
        L += self.stamp(18)
        return L

    def code_pf(self):
        return ['s_getpc_b64 s[%d:%d]' % (S_W, S_W + 1), self.lab('pc') + ':', 's_lshr_b32 s3, s2, 3', 's_lshl_b32 s3, s3, 2', 's_add_u32 s3, s3, s%d' % sW,
                'v_lshl_add_u32 v34, v1, 7, s3', 'v_lshlrev_b32 v34, 7, v34', 'v_mov_b32 v33, s%d' % (S_W + 1),
                'v_cmp_gt_u32 vcc, %s-%s-4, v34' % (self.lab('end'), self.lab('pc')), 's_and_saveexec_b64 s[%d:%d], vcc' % (S_W + 2, S_W + 3),
                'v_add_co_u32 v32, vcc, s%d, v34' % S_W, 'v_addc_co_u32 v33, vcc, 0, v33, vcc',
                'global_load_dword a112, v[32:33], off', 's_mov_b64 exec, -1']
    def touch_setup(self):
        R = self.opt.get('rot1', 1)
        sh = {1: 0, 2: 1, 4: 2, 8: 3}[R]
        nw = self.opt.get('twn', 16)
        big = 'v_mov_b32 v39, 0x7fff0000'
        msk = lambda n, a: ['v_cmp_gt_u32 vcc, %d, v1' % n, 's_nop 0', 'v_cndmask_b32 v36, v39, v36, vcc', 'v_accvgpr_write_b32 a%d, v36' % a]
        L = [big, 's_lshr_b32 s3, s2, 3', 's_lshl_b32 s3, s3, 2', 's_add_u32 s3, s3, s%d' % sW, 's_lshl_b32 s3, s3, 4', 'v_add_lshl_u32 v36, s3, v1, 10'] + msk(16, aTA)
        L += ['s_cmp_lt_u32 s%d, 2' % sW, 's_cselect_b32 s%d, s%d, s%d' % (S_W, pUK, pUV), 's_cselect_b32 s%d, s%d, s%d' % (S_W + 1, pUK + 1, pUV + 1),
              's_mov_b32 s%d, 0x%x' % (S_W + 2, 512 * 8192), 's_mov_b32 s%d, 0x00020000' % (S_W + 3),
              's_and_b32 s3, s%d, 1' % sW, 's_lshr_b32 s%d, s%d, %d' % (sT0, sI, sh), 's_lshl_b32 s%d, s%d, 1' % (sT0, sT0), 's_add_u32 s3, s3, s%d' % sT0,
              's_lshl_b32 s3, s3, %d' % (7 + sh), 's_add_u32 s3, s3, s%d' % sH, 's_lshl_b32 s3, s3, 1',
              'v_lshrrev_b32 v36, 1, v1', 'v_and_b32 v37, 1, v1', 'v_lshl_add_u32 v36, v36, 6, v37', 'v_add_lshl_u32 v36, s3, v36, 7'] + msk(8 * R, aTB)
        S = S_B2
        L += ['s_cmp_eq_u32 s%d, 2' % sW, 's_cselect_b32 s%d, s%d, s%d' % (S, pWG, pWU), 's_cselect_b32 s%d, s%d, s%d' % (S + 1, pWG + 1, pWU + 1),
              's_cmp_lt_u32 s%d, 27' % sFB, 's_cselect_b32 s%d, 0x%x, 0' % (S + 2, 640 * 3456), 's_mov_b32 s%d, 0x00020000' % (S + 3),
              's_lshl_b32 s%d, s%d, 1' % (sT0, sH), 's_add_u32 s%d, s%d, s%d' % (sT0, sT0, sW), 's_movk_i32 s%d, 3456' % sTWs,
              's_cmp_lt_u32 s%d, 2' % sW, 's_cmov_b32 s%d, s%d' % (S, pWQ), 's_cmov_b32 s%d, s%d' % (S + 1, pWQ + 1), 's_cmov_b32 s%d, 0x%x' % (S + 2, 640 * 8192),
              's_cselect_b32 s%d, s%d, s%d' % (sT0, sT0, sFB), 's_cmov_b32 s%d, 8192' % sTWs,
              's_mul_i32 s3, s%d, 80' % sI, 'v_add_u32 v36, s3, v1', 'v_mul_lo_u32 v36, v36, s%d' % sTWs,
              's_lshl_b32 s%d, s%d, 7' % (sTW, sT0), 's_mul_i32 s%d, s%d, %d' % (sTWs, sTWs, nw)] + msk(nw, aTW)
        return L
    def touch_ab(self, d, b=True):
        L = ['s_add_u32 s3, s%d, %d' % (sRot, d), 's_and_b32 s3, s3, 7', 's_lshl_b32 s3, s3, 7', 'v_accvgpr_read_b32 v%d, a%d' % (vT0, aTA),
             'buffer_load_dword a113, v%d, %s, s3 offen' % (vT0, s4(S_A))]
        if b: L += ['s_lshl_b32 s3, s3, 12', 'v_accvgpr_read_b32 v%d, a%d' % (vT0, aTB), 'buffer_load_dword a114, v%d, %s, s3 offen' % (vT0, s4(S_W))]
        return [l.replace(' a113,', ' a%d,' % self.dummy()).replace(' a114,', ' a%d,' % self.dummy()) for l in L]
    def touch_w(self):
        return ['v_accvgpr_read_b32 v%d, a%d' % (vT0, aTW), 'buffer_load_dword a%d, v%d, %s, s%d offen' % (self.dummy(), vT0, s4(S_B2), sTW), 's_add_u32 s%d, s%d, s%d' % (sTW, sTW, sTWs)]
    def dummy(self):
        self.ndum = getattr(self, 'ndum', 0) + 1
        return 124 + self.ndum % 96
    def prologue3(self):
        o = self.opt
        R = o.get('rot1', 1)
        d0 = srd(S_B0, pUK, pUK + 1, 512 * 8192) + srd(S_A, pC, pC + 1, 2048 * 1024) + srd(S_B1, pUV, pUV + 1, 512 * 8192)
        dd = self.dma1(0) + self.dma1(1)
        n0, n1 = o.get('d0a', 16), 16 + o.get('d1pre', 16)
        L = d0 + flat(dd[:n0])
        if self.SO: L += ['s_memrealtime s[92:93]']
        L += srd_off(S_FL, pWS, WS_FL, 32768 + 4) + ['s_buffer_load_dword s%d, %s, 0x8000' % (sEp, s4(S_FL))]
        L += self.code_pf()
        ra = self.read_addrs(True)
        L += ra[0] + self.touch_setup()
        self.late_addrs = ra[1:]
        L += srd_off(S_ST, pWS, WS_XN, 2048 * 1280) + srd(S_X, pX, pX + 1, 2048 * 1280)
        L += self.stamp(0) + self.stamp(14, True)
        if self.SO: L += ['v_writelane_b32 v%d, s96, 46' % vSTAMP, 'v_writelane_b32 v%d, s94, 47' % vSTAMP, 'v_writelane_b32 v%d, s92, 63' % vSTAMP]
        L += flat(dd[n0:n1])
        self.d1rest = dd[n1:]
        assert n1 >= 18
        for d in range(o.get('tlead', 1)): L += self.touch_ab(d, 2 + d < 8 // R)
        L += self.stamp(18)
        return L
    def layernorm2(self, L, m, a0, a1, u0, u1):
        un = lambda i, x, y: ['v_lshlrev_b32 v%d, 16, v%d' % (x, L + i), 'v_and_b32 v%d, s%d, v%d' % (y, sMask, L + i)]
        o = un(0, m, a1)
        for i in range(1, 10): o += un(i, u0, u1) + ['v_add_f32 v%d, v%d, v%d' % (m, m, u0), 'v_add_f32 v%d, v%d, v%d' % (a1, a1, u1)]
        o += ['v_add_f32 v%d, v%d, v%d' % (m, m, a1)] + half_reduce(m, a1) + ['v_mul_f32 v%d, 0x3acccccd, v%d' % (m, m)]
        for i in range(10):
            o += un(i, u0, u1) + ['v_sub_f32 v%d, v%d, v%d' % (u, u, m) for u in (u0, u1)]
            o += ['v_%s_f32 v%d, v%d, v%d' % ('fmac' if i else 'mul', a, u, u) for a, u in ((a0, u0), (a1, u1))]
        o += ['v_add_f32 v%d, v%d, v%d' % (a0, a0, a1)] + half_reduce(a0, a1) + ['v_mul_f32 v%d, 0x3acccccd, v%d' % (a0, a0)]
        o += ['v_cvt_pk_bf16_f32 v%d, v%d, v%d' % (a1, m, a0), 'v_lshlrev_b32 v%d, 16, v%d' % (m, a1), 'v_and_b32 v%d, s%d, v%d' % (a0, sMask, a1),
              'v_add_f32 v%d, 0x3727c5ac, v%d' % (a0, a0), 'v_cvt_pk_bf16_f32 v%d, v%d, v%d' % (a0, a0, a0), 'v_lshlrev_b32 v%d, 16, v%d' % (a0, a0),
              'v_sqrt_f32 v%d, v%d' % (a0, a0), 'v_cvt_pk_bf16_f32 v%d, v%d, v%d' % (a0, a0, a0), 'v_lshlrev_b32 v%d, 16, v%d' % (a0, a0), 'v_rcp_f32 v%d, v%d' % (a0, a0)]
        for i in range(10):
            o += un(i, u0, u1) + ['v_sub_f32 v%d, v%d, v%d' % (u, u, m) for u in (u0, u1)] + ['v_cvt_pk_bf16_f32 v%d, v%d, v%d' % (L + i, u0, u1)]
            o += un(i, u0, u1) + ['v_mul_f32 v%d, v%d, v%d' % (u, u, a0) for u in (u0, u1)] + ['v_cvt_pk_bf16_f32 v%d, v%d, v%d' % (L + i, u0, u1)]
        return o
    def extras3(self, S, bar):
        o = self.opt
        R = o.get('rot1', 1)
        tl = o.get('tlead', 1)
        LNL, vLN = 16, 6
        g0 = o.get('tg', 42)
        tw0, nw = o.get('tw0', 1), 80 // o.get('twn', 16)
        xs = o.get('xs', 0)
        gl = {}
        for t in range(7):
            it = []
            if t + 2 + tl < 8: it += self.touch_ab(tl, t + 2 + tl < 8 // R)
            if tw0 <= t < tw0 + nw: it += self.touch_w()
            if t == xs:
                it += ['buffer_load_dwordx4 v[%d:%d], v%d, %s, 0 offen' % (LNL, LNL + 3, vLN, s4(S_X)),
                       'buffer_load_dwordx4 v[%d:%d], v%d, %s, 0 offen offset:512' % (LNL + 4, LNL + 7, vLN, s4(S_X)),
                       'buffer_load_dwordx2 v[%d:%d], v%d, %s, 0 offen offset:1024' % (LNL + 8, LNL + 9, vLN + 1, s4(S_X))]
            g = t * 128 + g0
            for l in it:
                g = S.flow([l], g)
                if l.startswith('buffer'): g += o.get('tsp', 3)
            gl[t] = g
        assert tw0 + nw <= 6
        S.flow(['s_mul_i32 s%d, s%d, 0x9e3779b1' % (sBase, sEp), 'v_mov_b32 v%d, s%d' % (vBASE, sBase)], bar(0) + 1)
        g = S.flow(self.layernorm2(LNL, 10, 11, 27, 28, vT1), bar(xs + 1) + 1)
        for l in ['buffer_store_dwordx4 v[%d:%d], v%d, %s, 0 offen sc1' % (LNL, LNL + 3, vLN, s4(S_ST)),
                  'buffer_store_dwordx4 v[%d:%d], v%d, %s, 0 offen offset:512 sc1' % (LNL + 4, LNL + 7, vLN, s4(S_ST)),
                  ('buffer_store_dwordx2 v[%d:%d], v%d, %s, 0 offen offset:1024 sc1' % (LNL + 8, LNL + 9, vLN + 1, s4(S_ST)), 'xn')]:
            g = S.flow([l], g + 2)
        tf = o.get('xnf', xs + 4)
        if o.get('verbose'): print('xn stores end', divmod(g, 128))
        assert g < bar(tf)
        S.at(bar(tf), [('@vmwait', 'xn')], front=True)
        S.flow([self.flag(1)], bar(tf) + 1)
        t = g // 128 + 1
        g = S.flow(self.keep_vcc(self.late_addrs[0]), gl[t] + 1)
        assert g < bar(t) and t < 5, (t, g)
        wt = o.get('wdma', 5)
        v = vSTK
        su, ld, sw = self.w_block(v, vT0)
        su = su[:-3] + ['v_lshrrev_b32 v%d, 3, v1' % vT0, 'v_xor_b32 v%d, v%d, v1' % (vT0, vT0), 'v_and_b32 v%d, 1, v1' % vT1, 'v_and_or_b32 v%d, v%d, 14, v%d' % (vT0, vT0, vT1)] + su[-2:]
        g = S.flow(self.keep_scc(su), gl[wt] + 1)
        per = o.get('wper', 3)
        for j, (pre, l) in enumerate(ld):
            ts = wt + j // per
            if j % per == 0 and j: g = ts * 128 + g0
            pre = ['s_add_u32 m0, s%d, %d' % (sMA, 0x10000 + (j & 4) * 1024), pre[-1].replace('s%d,' % sT1, 's%d,' % sSO)]
            if j: pre.append('v_xor_b32 v%d, 0x80, v%d' % (v, v))
            g = S.flow(pre, g + 1)
            g = S.flow([(l[0].replace(', s%d offen' % sT1, ', s%d offen' % sSO), l[1])], g + 1)
            assert g < bar(ts), (j, g)
            g += o.get('wdsp', 4)
        assert ts <= 7
        g = S.flow(self.late_addrs[1], max(g, 7 * 128 + g0))
        assert g < bar(7) - 6
        tr = o.get('wtr', 9)
        va, vs = vRA1
        sw = ['s_lshl_b32 s%d, s2, 2' % sT2, 's_add_u32 s%d, s%d, s%d' % (sT2, sT2, sW)] + sw
        rd = self.keep_scc(sw) + ['v_lshrrev_b32 v%d, 2, v1' % va, 'v_lshlrev_b32 v%d, 8, v%d' % (va, va), 'v_and_b32 v%d, 31, v1' % vs,
              'v_lshl_add_u32 v%d, v%d, 3, v%d' % (va, vs, va), 's_add_u32 s3, s%d, 0x10000' % sMA, 'v_add_u32 v%d, s3, v%d' % (va, va), 'v_lshlrev_b32 v%d, 4, v1' % vs, 's_movk_i32 s%d, 4096' % sT0]
        for q in range(8):
            if q: rd.append('v_xor_b32 v%d, %d, v%d' % (va, (q ^ (q - 1)) * 32, va))
            rd += ['ds_read_b64_tr_b16 %s, v%d offset:%d' % (ar(224 + 4 * q + 2 * j, 2), va, j * 4096) for j in range(2)]
        S.flow(rd, tr * 128 + 2)
        self.wstores = [('buffer_store_dwordx4 %s, v%d, %s, %s offen offset:%d sc1' % (ar(224 + 4 * q, 4), vs, s4(S_W), '0' if q < 4 else 's%d' % sT0, (q & 3) * 1024), 'kv') for q in range(8)]
    def keep_vcc(self, lines):
        out = []
        on = False
        for l in lines:
            if l.startswith('v_cmp'): out.append([l]); on = True
            elif on:
                out[-1].append(l)
                if l.startswith('v_cndmask'): on = False
            else: out.append(l)
        return out

    def a_dma_addr(self, stride, rot):
        t0, t1 = vT0, vT1
        return ['v_lshrrev_b32 v%d, 3, v1' % t0, 's_movk_i32 s3, %d' % stride, 'v_mul_lo_u32 v%d, v%d, s3' % (t0, t0),
                'v_lshl_add_u32 v%d, s%d, 7, v%d' % (t0, rot, t0),
                'v_lshrrev_b32 v%d, 4, v1' % t1, 'v_and_b32 v%d, 7, v1' % vA[1], 'v_xor_b32 v%d, v%d, v%d' % (t1, t1, vA[1]),
                'v_lshl_add_u32 v%d, v%d, 4, v%d' % (vA[0], t1, t0), 'v_xor_b32 v%d, 4, v%d' % (t1, t1),
                'v_lshl_add_u32 v%d, v%d, 4, v%d' % (vA[1], t1, t0), 'v_add_u32 v%d, %d, v%d' % (vA[1], 8 * stride - 1024, vA[1])]

    def read_addrs(self, split=False):
        t0, t1 = vT0, vT1
        L = []
        L += ['v_and_b32 v%d, 15, v1' % t0, 'v_lshrrev_b32 v%d, 1, v%d' % (t1, t0), 'v_lshrrev_b32 v%d, 4, v1' % vRA1[0],
              'v_xor_b32 v%d, v%d, v%d' % (t1, t1, vRA1[0]), 'v_lshlrev_b32 v%d, 7, v%d' % (t0, t0),
              'v_lshl_add_u32 v%d, v%d, 4, v%d' % (t0, t1, t0),
              's_and_b32 s3, s%d, 1' % sW, 's_lshl_b32 s3, s3, 14', 's_add_u32 s3, s3, 0x10000',
              'v_add_u32 v%d, s3, v%d' % (vRA1[0], t0), 'v_xor_b32 v%d, 64, v%d' % (vRA1[1], vRA1[0])]
        L += ['v_lshrrev_b32 v%d, 4, v1' % t0, 'v_lshlrev_b32 v%d, 11, v%d' % (t0, t0),
              'v_bfe_u32 v%d, v1, 2, 2' % t1, 'v_lshl_add_u32 v%d, v%d, 8, v%d' % (t0, t1, t0),
              'v_bfe_u32 v%d, v1, 2, 3' % t1, 'v_lshl_add_u32 v%d, v%d, 5, v%d' % (t0, t1, t0),
              'v_and_b32 v%d, 3, v1' % t1, 'v_lshl_add_u32 v%d, v%d, 3, v%d' % (t0, t1, t0),
              's_lshr_b32 s3, s%d, 1' % sW, 's_lshl_b32 s3, s3, 7', 'v_xor_b32 v%d, s3, v%d' % (vRB[0], t0)]
        for nb in range(1, 4):
            L.append('v_xor_b32 v%d, %d, v%d' % (vRB[nb], nb * 32, vRB[0]))
        L += ['s_lshl_b32 s3, s2, 7', 'v_mov_b32 v%d, s3' % vFL, 'v_mov_b32 v%d, 0x7fff0000' % t0, 'v_cmp_eq_u32 vcc, 0, v0',
              's_nop 1', 'v_cndmask_b32 v%d, v%d, v%d, vcc' % (vFL, t0, vFL)]
        L0, L = L, []
        for nb in range(4, 8):
            L.append('v_xor_b32 v%d, %d, v%d' % (vRB[nb], nb * 32, vRB[0]))
        L += ['v_and_b32 v%d, 0x7ff, v%d' % (t0, vRA1[0]), 'v_add_u32 v%d, s%d, v%d' % (vRA2[0], sMA, t0), 'v_xor_b32 v%d, 64, v%d' % (vRA2[1], vRA2[0])]
        L += ['v_lshrrev_b32 v%d, 5, v1' % t0, 'v_lshlrev_b32 v%d, 12, v%d' % (t0, t0),
              'v_bfe_u32 v%d, v1, 4, 1' % t1, 'v_lshl_add_u32 v%d, v%d, 10, v%d' % (t0, t1, t0),
              'v_bfe_u32 v%d, v1, 2, 2' % t1, 'v_lshl_add_u32 v%d, v%d, 7, v%d' % (t0, t1, t0),
              'v_bfe_u32 v%d, v1, 3, 2' % t1, 'v_lshl_add_u32 v%d, v%d, 5, v%d' % (t0, t1, t0),
              'v_and_b32 v%d, 3, v1' % t1, 'v_lshl_add_u32 v%d, v%d, 3, v%d' % (vRG[0], t1, t0)]
        for nb in range(1, 4):
            L.append('v_xor_b32 v%d, %d, v%d' % (vRG[nb], nb * 32, vRG[0]))
        L += ['v_lshrrev_b32 v%d, 3, v1' % t0, 'v_lshl_add_u32 v%d, s%d, 6, v%d' % (t0, sRot2, t0), 's_movk_i32 s3, 3456', 'v_mul_lo_u32 v%d, v%d, s3' % (t0, t0),
              'v_bfe_u32 v%d, v1, 4, 1' % t1, 'v_lshlrev_b32 v%d, 1, v%d' % (t1, t1), 'v_and_b32 v%d, 7, v1' % vG[1],
              'v_xor_b32 v%d, v%d, v%d' % (t1, t1, vG[1]), 'v_lshl_add_u32 v%d, v%d, 4, v%d' % (vG[0], t1, t0),
              'v_xor_b32 v%d, 4, v%d' % (t1, t1), 'v_lshl_add_u32 v%d, v%d, 4, v%d' % (vG[1], t1, t0)]
        L += ['s_mul_i32 s%d, s%d, %d' % (sGo[0], sW, 16 * 3456), 's_lshl_b32 s3, s%d, 7' % sFB,
              's_add_u32 s%d, s%d, s3' % (sGo[0], sGo[0]), 's_add_u32 s%d, s%d, %d' % (sGo[1], sGo[0], 8 * 3456 - 1024)]
        L2 = ['s_lshr_b32 s3, s%d, 1' % sW, 's_lshl_b32 s3, s3, 11', 'v_lshl_add_u32 v%d, v1, 4, s3' % vSTK, 'v_add_u32 v%d, s3, v%d' % (vSTV, vSTK)]
        L += ['s_lshl_b32 s%d, s%d, 4' % (sT0, sI), 's_lshl_b32 s3, s%d, 2' % sW, 's_sub_u32 s%d, 240, s%d' % (sT1, sT0),
              's_add_u32 s%d, s%d, s3' % (sT0, sT0), 's_add_u32 s%d, s%d, s3' % (sT1, sT1),
              'v_mov_b32 v%d, s%d' % (t0, sT0), 'v_mov_b32 v%d, s%d' % (t1, sT1), 'v_cmp_lt_u32 vcc, 31, v1',
              'v_and_b32 v%d, 3, v1' % vPA, 's_nop 0', 'v_cndmask_b32 v%d, v%d, v%d, vcc' % (t0, t0, t1), 'v_add_lshl_u32 v%d, v%d, v%d, 7' % (vPA, vPA, t0)]
        return (L0, L, L2) if split else L0 + L + L2

    def dmaA(self, t, tag, fl):
        st = t & 1
        A = []
        for p in range(8):
            it = []
            if p % 4 == 0: it.append('s_add_u32 m0, s%d, %d' % (sMA, st * 32768 + (p >> 2) * 4096))
            it.append(('buffer_load_dwordx4 v%d, %s, s%d offen offset:%d%s lds' % (vA[p & 1], s4(S_A), sAo[p >> 1], (p & 3) * 1024, fl), tag))
            A.append(it)
        return A
    def dmaB(self, t, sub, S, tag, fl):
        st = t & 1
        B = []
        for j in range(4):
            it = []
            if j == 0: it.append('s_add_u32 m0, s%d, %d' % (sMB, st * 32768 + sub * 16384))
            it.append(('buffer_load_dwordx4 v%d, %s, s%d offen offset:%d%s lds' % (vB[j >> 1], s4(S), sBo[j], j * 1024, fl), tag))
            B.append(it)
        return B
    def rot_step(self, n):
        return [['s_add_u32 s%d, s%d, 1' % (sRot, sRot), 's_cmp_eq_u32 s%d, %d' % (sRot, n), 's_cselect_b32 s%d, %d, 1' % (sInc, 1 - n), 's_cmov_b32 s%d, 0' % sRot],
                's_lshl_b32 s%d, s%d, 19' % (sIncB, sInc)]
    def dma1(self, t):
        tag = 'dma%d' % t
        it = self.dmaB(t, 0, S_B0, tag, '') + self.dmaA(t, tag, '')[:4] + self.dmaB(t, 1, S_B1, tag, '') + self.dmaA(t, tag, '')[4:]
        it[1] = it[1] + self.rot_step(8)
        it[11] = it[11] + ['v_add_u32 v%d, s%d, v%d' % (vB[0], sIncB, vB[0]), 'v_add_u32 v%d, s%d, v%d' % (vB[1], sIncB, vB[1])]
        if t < 7: it[15] = it[15] + ['v_lshl_add_u32 v%d, s%d, 7, v%d' % (v, sInc, v) for v in vA]
        return it
    def dma2(self, t):
        tag = 'dma%d' % t
        st = t & 1
        G = []
        for j in range(4):
            it = []
            if j % 2 == 0: it.append('s_add_u32 m0, s%d, %d' % (sMB, st * 32768 + 16384 + (j >> 1) * 2048))
            it.append(('buffer_load_dwordx4 v%d, %s, s%d offen offset:%d lds' % (vG[j & 1], s4([S_B1, S_B2][j >> 1]), sGo[j & 1], (j & 1) * 1024), tag))
            G.append(it)
        A = self.dmaA(t, tag, self.opt.get('xnfl', ' sc1'))
        it = G + A[:4] + self.dmaB(t, 0, S_B0, tag, '') + A[4:]
        if t == 17: return it
        it[1] = it[1] + self.rot_step(10) + ['s_mul_i32 s%d, s%d, %d' % (sIncG, sInc, 64 * 3456)]
        it[5] = it[5] + ['v_add_u32 v%d, s%d, v%d' % (v, sIncG, v) for v in vG]
        it[11] = it[11] + ['v_add_u32 v%d, s%d, v%d' % (v, sIncB, v) for v in vB]
        it[15] = it[15] + ['v_lshl_add_u32 v%d, s%d, 7, v%d' % (v, sInc, v) for v in vA]
        return it
    def dmaKV(self, t):
        tag = 'dma%d' % t
        st = t & 1
        it = []
        for half in range(2):
            for p in range(8):
                x = []
                if p % 4 == 0:
                    x.append('s_add_u32 m0, s%d, %d' % (sMA, (half - 1) * 65536 + st * 32768 + (p >> 2) * 4096))
                x.append(('buffer_load_dwordx4 v%d, %s, s%d offen offset:%d sc1 lds' % (vA[p >> 2], s4(S_A), sAo[2 * st + half], (p & 3) * 1024), tag))
                it.append(x)
        return it

    def p1_tile(self, nb, mb):
        if nb < 4: p, b = (nb >> 1) * 8 + mb, nb & 1
        else: p, b = 16 + (nb - 4) * 4 + (mb >> 1), mb & 1
        if p < 28: return ('v', (144 if b else 32) + 4 * p)
        return ('a', 224 + (p - 28) * 8 + 4 * b)
    def p2_tile(self, nb, mb):
        k = nb * 4 + mb
        return ('a', 64 + 4 * k) if k < 40 else ('v', 160 + 4 * (k - 40))

    def gemms(self):
        o = self.opt
        S = Stream()
        subs = []
        self.moves = []
        for t in range(18):
            for ks in range(2):
                ph = 1 if t < 8 else 2
                base = S.n()
                subs.append((ph, t, ks, base))
                first = ks == 0 and t in (0, 8)
                ng, nm = (8, 8) if ph == 1 else (16, 4)
                for nb in range(ng):
                    for mb in (range(nm) if nb % 2 == 0 else reversed(range(nm))):
                        k, r = self.p1_tile(nb, mb) if ph == 1 else self.p2_tile(nb, mb)
                        if ph == 2 and nb < 8 and o.get('ep2'):
                            ms = o.get('mv0', 30) + nb // o.get('mvn', 2)
                            if 2 * t + ks > ms: k, r = 'v', r - 32
                            if 2 * t + ks == ms: self.moves.append((S.n(), r))
                        d = vr(r, 4, k)
                        a, b = ar(self.fragA(ph, ks, mb), 4), ar(self.fragB(ph, nb), 4)
                        if ph == 2 or nb < 4: a, b = b, a
                        S.add('%s %s, %s, %s, %s' % (MF, d, a, b, '0' if first else d))
        BAR = o.get('bar', 39)
        pre = []
        self.sg, holes = [], set()
        if o.get('hole'):
            se, h0, hs, hn, H = o['hole']
            self.sg = [g for t in range(8, 17) for g in range(t * 128 + h0, t * 128 + h0 + hs * hn, hs) if g >= se][:40]
            if o.get('hn'):
                self.sg = [(8 + t) * 128 + h0 + k * o.get('hw', 56) // n for t, n in enumerate(o['hn']) for k in range(n)]
                assert len(self.sg) == 40
            holes = {g + k for g in self.sg for k in range(H + 1)}
        for si, (ph, t, ks, base) in enumerate(subs):
            ng, nm, ring = (8, 8, 4) if ph == 1 else (16, 4, 8)
            rdA = [self.readA(ph, t, ks, mb) for mb in range(nm)]
            rdB = [self.readB(ph, t, ks, nb) for nb in range(ng)]
            lo = -10 ** 9
            if ks == 0 and t > 0:
                lo = base - 64 + BAR
                S.at(lo, self.hop(t - 1) + [('@vmwait', 'dma%d' % t), 's_waitcnt lgkmcnt(0)', 's_barrier'])
            items = []
            for nb in range(ng):
                g = base + (nb - ring + 1) * nm - 1
                if t == 8 and ks == 0:
                    g = base - 64 + BAR if nb < 4 else max(g, base - 1)
                items.append((max(g, lo), 0, rdB[nb]))
            for mb in range(nm):
                if ks == 0: g = lo + 1 + 2 * mb
                else: g = base - 64 + 8 + mb * (40 // nm)
                items.append((g, 1, [rdA[mb]]))
            items.sort(key=lambda x: (x[0], x[1]))
            for g, _, ls in items:
                if g < 0: pre += ls
                else:
                    for l in ls:
                        while g in holes or S.load.get(g, 0) > 4: g += 1
                        gg = S.flow([(g, l)], g)
                        if ks == 1: assert gg < base + (34 if t < 8 else 36), (t, gg - base)
        if o.get('np'):
            for k, it in enumerate(self.d1rest):
                g = 1 + k * o.get('d1sp', 3)
                if isinstance(it[0], str) and it[0].startswith('s_add_u32 m0'):
                    S.at(g - 1, it[0]); it = it[1:]
                S.at(g, it[0], front=True)
                if len(it) > 1: S.flow(it[1:], g)
        for t in range(2, 20):
            g0 = (t - 2) * 128 + 64 + BAR
            if t == 18: g0 += o.get('kvp', 0)
            its = self.dma1(t) if t < 8 else self.dma2(t) if t < 18 else self.dmaKV(t)
            if t == 19 and o.get('ep2', 0) < 2:
                S.at(g0, ['s_waitcnt lgkmcnt(0)', 's_barrier'])
            span = o.get('dspan', 64) if t < 19 else 22
            if o.get('nodma') or (t == 19 and o.get('ep2')): its = []
            if o.get('noA'): its = [x for x in its if not any(isinstance(y, tuple) and s4(S_A) in y[0] for y in x)]
            if t in (7, 17): span = min(span, 64)
            if t == 18: span = o.get('kvspan', span)
            for k, it in enumerate(its):
                g = g0 + 2 + k * span // 16
                if it[0].startswith('s_add_u32 m0') if isinstance(it[0], str) else False:
                    S.at(g - 1, it[0]); it = it[1:]
                S.at(g, it[0], front=True)
                if len(it) > 1: S.flow(it[1:], g)
        self.extras(S, BAR)
        return pre, S

    def fragA(self, ph, ks, mb): return ks * 32 + mb * 4
    def fragB(self, ph, nb):
        if ph == 1: return 64 + (nb & 3) * 4
        s = nb & 7
        return 16 + s * 4 if s < 4 else 48 + (s - 4) * 4
    def readA(self, ph, t, ks, mb):
        return 'ds_read_b128 %s, v%d offset:%d' % (ar(self.fragA(ph, ks, mb), 4), (vRA1 if ph == 1 else vRA2)[ks], (t & 1) * 32768 + mb * 2048)
    def readB(self, ph, t, ks, nb):
        f = self.fragB(ph, nb)
        st = (t & 1) * 32768
        if ph == 1: v, off, dj = vRB[nb & 3], st + (nb >> 2) * 16384 + ks * 8192, 1024
        elif nb >= 8: v, off, dj = vRB[nb - 8], st + ks * 8192, 1024
        else: v, off, dj = vRG[nb >> 1], st + 16384 + ks * 8192 + (nb & 1) * 2048, 512
        return ['ds_read_b64_tr_b16 %s, v%d offset:%d' % (ar(f + 2 * j, 2), v, off + j * dj) for j in range(2)]

    def extras(self, S, BAR):
        o = self.opt
        bar = lambda t: t * 128 + 64 + BAR
        self.wstores = []
        if o.get('np') == 2: self.extras3(S, bar)
        else: self.extras1(S, bar)
        self.extras2(S, bar)
    def extras1(self, S, bar):
        o = self.opt
        S.at(bar(1), [('@vmwait', 'xn')], front=True)
        S.flow(self.flag(1), bar(1) + 1)
        wt = 0
        if o.get('np'):
            wt = o.get('wdma', 2)
            su, ld, sw = self.w_block(vT1, vT0)
            g = S.flow(self.keep_scc(su), wt * 128 + 42)
            for pre, l in ld:
                g = S.flow(pre, g + 1)
                g = S.flow([l], g + 1) + o.get('wdsp', 2)
            g = S.flow(self.keep_scc(sw), g)
            assert g < bar(wt), g - wt * 128
            if o.get('tch', 1):
                ts = o.get('tA', 1)
                assert ts != wt and ts != o.get('wpf') and ts != wt + 2
                S.flow(self.touchA(vT1, vT0, 6 - ts - 2, 117), ts * 128 + 44)
            if o.get('tch', 1) == 2:
                g = S.flow(self.keep_scc(self.touchB(vT1, vT0, 113)), 44) if o.get('rot1', 8) < 4 else 44
                S.flow(self.touchA(vT1, vT0, 0, 114), g + 1)
        rd = ['v_lshrrev_b32 v%d, 2, v1' % vT1, 'v_lshlrev_b32 v%d, 8, v%d' % (vT1, vT1), 'v_and_b32 v%d, 3, v1' % vT0,
              'v_lshl_add_u32 v%d, v%d, 3, v%d' % (vT1, vT0, vT1), 's_add_u32 s3, s%d, 0x10000' % sMA, 'v_add_u32 v%d, s3, v%d' % (vT1, vT1)]
        for q in range(8):
            for j in range(2):
                rd.append('ds_read_b64_tr_b16 %s, v%d offset:%d' % (ar(80 + 4 * q + 2 * j, 2), vT1, q * 32 + j * 4096))
        g = S.flow(rd, (wt + 2) * 128 + 44, cap=4)
        stv = ['v_lshlrev_b32 v%d, 4, v1' % vT0, 's_movk_i32 s%d, 4096' % sSO]
        g = S.flow(stv, g + 1)
        for q in range(8 if not o.get('now') else 0):
            S.flow([('buffer_store_dwordx4 %s, v%d, %s, %s offen offset:%d sc1' % (ar(80 + 4 * q, 4), vT0, s4(S_W), '0' if q < 4 else 's%d' % sSO, (q & 3) * 1024), 'kv')],
                   (wt + 3) * 128 + 44 + q * 7)
        if o.get('wpf'):
            pf = [['s_cmp_eq_u32 s%d, 2' % sW, 's_cselect_b32 s%d, s%d, s%d' % (S_X, pWG, pWU), 's_cselect_b32 s%d, s%d, s%d' % (S_X + 1, pWG + 1, pWU + 1)],
                  ['s_cmp_lt_u32 s%d, 27' % sFB, 's_cselect_b32 s%d, 0x%x, 0' % (S_X + 2, 640 * 3456)],
                  's_lshl_b32 s%d, s%d, 1' % (sT0, sH), 's_add_u32 s%d, s%d, s%d' % (sT0, sT0, sW), 's_movk_i32 s%d, 3456' % sT1,
                  ['s_cmp_lt_u32 s%d, 2' % sW, 's_cmov_b32 s%d, s%d' % (S_X, pWQ), 's_cmov_b32 s%d, s%d' % (S_X + 1, pWQ + 1), 's_cmov_b32 s%d, 0x%x' % (S_X + 2, 640 * 8192),
                   's_cselect_b32 s%d, s%d, s%d' % (sT0, sT0, sFB), 's_cmov_b32 s%d, 8192' % sT1],
                  's_mul_i32 s%d, s%d, 80' % (sT2, sI), 'v_add_u32 v%d, s%d, v1' % (vPR, sT2), 'v_mul_lo_u32 v%d, v%d, s%d' % (vPR, vPR, sT1),
                  's_lshl_b32 s%d, s%d, 7' % (sT0, sT0), 's_lshl_b32 s%d, s%d, 4' % (sT1, sT1), 's_add_u32 s%d, s%d, s%d' % (sT1, sT1, sT0)]
            g = S.flow(pf, o['wpf'] * 128 + 44)
            g = S.flow(['buffer_load_dword a115, v%d, %s, s%d offen' % (vPR, s4(S_X), sT0)], g + 1)
            S.flow(['buffer_load_dword a116, v%d, %s, s%d offen' % (vPR, s4(S_X), sT1)], g + o.get('wpf2', 10))
    def extras2(self, S, bar):
        o = self.opt
        S.flow(self.poll_issue(), o.get('xpoll', 5 * 128 + 50 if o.get('np') != 2 else 6 * 128 + 41))
        gs = 6 * 128 + 44
        su = (srd_off(S_A, pWS, WS_XN, 2048 * 1280) if not o.get('readx') else srd_off(S_A, pX, 0, 2048 * 1280)) + srd(S_B0, pWQ, pWQ + 1, 640 * 8192)
        su += ['s_cmp_lt_u32 s%d, 27' % sFB, 's_cselect_b32 s%d, 0x%x, 0' % (S_B1 + 2, 640 * 3456), 's_mov_b32 s%d, s%d' % (S_B2 + 2, S_B1 + 2),
               's_mov_b32 s%d, s%d' % (S_B1, pWG), 's_mov_b32 s%d, s%d' % (S_B1 + 1, pWG + 1),
               's_mov_b32 s%d, s%d' % (S_B2, pWU), 's_mov_b32 s%d, s%d' % (S_B2 + 1, pWU + 1), 's_mov_b32 s%d, 0x00020000' % (S_B2 + 3)]
        su += ['s_lshl_b32 s%d, s%d, 2' % (sT0, sI), 's_sub_u32 s%d, 60, s%d' % (sT1, sT0),
               's_add_u32 s%d, s%d, s%d' % (sT0, sT0, sW), 's_add_u32 s%d, s%d, s%d' % (sT1, sT1, sW),
               's_mul_i32 s%d, s%d, %d' % (sAo[0], sT0, 32 * 1280), 's_mul_i32 s%d, s%d, %d' % (sAo[2], sT1, 32 * 1280),
               's_add_u32 s%d, s%d, %d' % (sAo[1], sAo[0], 16 * 1280 - 2048), 's_add_u32 s%d, s%d, %d' % (sAo[3], sAo[2], 16 * 1280 - 2048)]
        su += self.a_dma_addr(1280, sRot2)
        su += ['s_sub_u32 s%d, s%d, s%d' % (sInc, sRot2, sRot), 's_mov_b32 s%d, s%d' % (sRot, sRot2), 's_lshl_b32 s%d, s%d, 19' % (sIncG, sInc)]
        su += ['v_add_u32 v%d, s%d, v%d' % (v, sIncG, v) for v in vB]
        su += ['s_lshl_b32 s%d, s%d, 4' % (sT0, sH), 's_lshl_b32 s%d, s%d, 1' % (sT1, sI), 's_add_u32 s%d, s%d, s%d' % (sT0, sT0, sT1),
               's_and_b32 s%d, s%d, 1' % (sT1, sW), 's_add_u32 s%d, s%d, s%d' % (sT0, sT0, sT1), 's_lshl_b32 s%d, s%d, 16' % (sT0, sT0)]
        su += srd_off(S_ST, pWS, 's%d' % sT0, 65536)
        su = self.keep_scc(su)
        g = S.flow(su, gs)
        assert g < bar(6) - 1, g
        S.at(bar(6) - 1, self.stamp(5) + self.hop('c1') + self.poll_check(1) + self.stamp(6))
        fx = ['s_lshr_b32 s3, s%d, 1' % sW, 's_lshl_b32 s3, s3, 7'] + ['v_xor_b32 v%d, s3, v%d' % (v, v) for v in vRB]
        g = S.flow(fx, 7 * 128 + 64 + 34)
        assert g < 8 * 128, g
        b15 = 7 * 128 + 64
        pk = []
        for p in range(28):
            e = b15 + (17 if p < 8 else 33 if p < 16 else 41 + 8 * ((p - 16) >> 2))
            a, b = 32 + 4 * p, 144 + 4 * p
            pk += [(e, 'v_cvt_pk_bf16_f32 v%d, v%d, v%d' % (a, a, a + 1)), 'v_cvt_pk_bf16_f32 v%d, v%d, v%d' % (a + 1, a + 2, a + 3),
                   'v_cvt_pk_bf16_f32 v%d, v%d, v%d' % (a + 2, b, b + 1), 'v_cvt_pk_bf16_f32 v%d, v%d, v%d' % (a + 3, b + 2, b + 3)]
        g = b15
        pg = {}
        for p in range(28):
            g = pg[p] = S.flow(pk[4 * p:4 * p + 4], g)
            if p >= 4: assert g < 8 * 128 + 40 + ((p - 4) & ~3) - 1, (p, g)
        for q in range(4):
            for k in range(4):
                g = S.flow(['v_accvgpr_read_b32 v%d, a%d' % (vT0, 224 + 8 * q + 2 * k), 'v_accvgpr_read_b32 v%d, a%d' % (vT1, 225 + 8 * q + 2 * k),
                            'v_cvt_pk_bf16_f32 v%d, v%d, v%d' % (144 + 4 * q + k, vT0, vT1)], max(g, 8 * 128 + 2))
            pg[28 + q] = g
        order = sorted(range(32), key=lambda p: self.kv_off(p)[0])
        g0, g1 = g + 1, o.get('st_end', 13 * 128)
        last = None
        self.kvg = {}
        stw = o.get('stw')
        for n, p in enumerate(order):
            off, v = self.kv_off(p)
            gg = g0 + n * (g1 - g0) // 32
            if stw:
                gg = max(g0, bar(stw[0] + n // stw[1]) + 3 + o.get('dspan', 64) + (n % stw[1]) * stw[2])
            it = []
            if off >> 12 != last:
                last = off >> 12
                it.append('s_mov_b32 s%d, %d' % (sSO, off & ~4095))
            if not o.get('nokv'):
                it.append(('buffer_store_dwordx4 v[%d:%d], v%d, %s, s%d offen offset:%d%s' % (32 + 4 * p, 35 + 4 * p, v, s4(S_ST), sSO, off & 4095, o.get('kvfl', ' sc1')), 'kv'))
            if self.sg:
                assert pg[p] < self.sg[n], (n, p, pg[p], self.sg[n])
                self.kvg[p] = self.sg[n]
                S.at(self.sg[n], it); continue
            gl = S.flow(it, gg)
            if stw: g0 = max(g0, gl)
        for n, l in enumerate(self.wstores):
            if self.sg: S.at(self.sg[32 + n], (l[0], 'w') if o.get('hn') else l)
            else: S.flow([l], o.get('wst', 13 * 128) + n * o.get('wsts', 12))
        tf = o.get('kvflag', 14)
        if self.sg: assert self.sg[31 if o.get('hn') else -1] < bar(tf) - 40
        if o.get('hn'):
            gw = o.get('wflag', 17 * 128 + 20)
            assert self.sg[-1] < gw - 40
            S.at(gw, [('@vmwait', 'w'), 's_barrier'] + self.flag(3))
        S.at(bar(tf), [('@vmwait', 'kv')], front=True)
        S.flow(self.flag(2), bar(tf) + 1)
        pa = ['s_and_b32 s3, s2, 31', 'v_and_b32 v%d, 7, v1' % vPA, 'v_lshlrev_b32 v%d, 5, v%d' % (vPA, vPA), 'v_add_lshl_u32 v%d, s3, v%d, 7' % (vPA, vPA)]
        S.flow(pa + self.poll_issue(), bar(16) + o.get('kvp', 0) - o.get('kvpi', 93))
        su = ['s_lshl_b32 s%d, s%d, 20' % (sT1, sH)] + srd_off(S_A, pWS, 's%d' % sT1, 1 << 20)
        su += ['s_lshl_b32 s%d, s%d, 13' % (sAo[0], sW), 's_add_u32 s%d, s%d, 0x8000' % (sAo[1], sAo[0]),
               's_lshl_b32 s3, s%d, 16' % sI, 's_add_u32 s%d, s%d, s3' % (sAo[2], sAo[0]),
               's_add_u32 s%d, s%d, 0x18000' % (sAo[2], sAo[2]), 's_add_u32 s%d, s%d, 0x10000' % (sAo[3], sAo[2]),
               'v_lshlrev_b32 v%d, 4, v1' % vA[0], 'v_add_u32 v%d, 0x1000, v%d' % (vA[1], vA[0])]
        g = S.flow(self.keep_scc(su), 16 * 128 + 44)
        assert g < bar(16) - 1
        S.at(bar(16) - 1 + o.get('kvp', 0), self.stamp(10) + self.hop('c2') + self.poll_check(2) + self.stamp(11))
        if o.get('ep2'): self.ep2_gaps(S)
        S.at(10 * 128, self.stamp(7)); S.at(12 * 128, self.stamp(8)); S.at(14 * 128, self.stamp(9))
        if self.SO:
            S.at(8 * 128 - 1, self.stamp(2))
            for t, i in o.get('stepst', []): S.at(t * 128 + 127, self.stamp(i, force=True))

    def keep_scc(self, lines):
        out = []
        for l in lines:
            op = l.split()[0]
            if op in ('s_addc_u32', 's_cselect_b32', 's_cmov_b32', 's_cselect_b64'):
                if not isinstance(out[-1], list): out[-1] = [out[-1]]
                out[-1].append(l)
            else: out.append(l)
        return out

    def kv_off(self, p):
        if p < 16:
            mb, dsl = p & 7, p >> 3
            return (mb >> 2) * 32768 + (mb & 3) * 4096 + dsl * 1024, vSTK
        n, mp = (p - 16) >> 2, (p - 16) & 3
        return (mp >> 1) * 32768 + 16384 + (mp & 1) * 8192 + n * 1024, vSTV

    def ep2_gaps(self, S):
        o = self.opt
        g = 0
        for gm, r in self.moves:
            if self.sg: assert gm > self.kvg[(r - 64) // 4], (gm, r)
            for e in range(4):
                g = S.flow(['v_accvgpr_read_b32 v%d, a%d' % (r - 32 + e, r + e)], max(g + o.get('mvs', 0), gm + 5))
            assert g < gm + 56, (g, gm)
        import struct, math
        f2u = lambda x: struct.unpack('<I', struct.pack('<f', x))[0]
        kk = 2 * math.sqrt(2 / math.pi) * math.log2(math.e)
        sL, sHh = sGo
        L = srd_off(S_ST, pWS, WS_H, 0) + ['s_cmp_lt_u32 s%d, 27' % sFB, 's_cselect_b32 s%d, 0x%x, 0' % (S_ST + 2, 32 * 54 * 4096)]
        L += ['s_lshl_b32 s3, s%d, 1' % sW, 's_lshl_b32 s%d, s%d, 3' % (sL, sI), 's_sub_u32 s%d, 120, s%d' % (sHh, sL),
              's_add_u32 s%d, s%d, s3' % (sL, sL), 's_add_u32 s%d, s%d, s3' % (sHh, sHh),
              's_mul_i32 s%d, s%d, %d' % (sL, sL, 54 * 1024), 's_mul_i32 s%d, s%d, %d' % (sHh, sHh, 54 * 1024),
              's_lshl_b32 s3, s%d, 11' % sFB, 's_add_u32 s%d, s%d, s3' % (sL, sL), 's_add_u32 s%d, s%d, s3' % (sHh, sHh),
              'v_add_u32 v5, %d, v%d' % (54 * 1024, vA[0])]
        L += ['s_mov_b32 s28, 0x3e0293ee', 's_mov_b32 s29, s28', 's_mov_b32 s%d, 0x%x' % (sT1, f2u(-kk * 0.044715)), 's_mov_b32 s%d, s%d' % (sT2, sT1),
              'v_mov_b32 v%d, 0x%x' % (vPR, f2u(-kk))]
        L += ['s_add_u32 s3, s%d, 0x10000' % sMA, 'v_add_u32 v%d, s3, v%d' % (vT0, vA[0]), 'v_xor_b32 v%d, 0x2000, v%d' % (vT1, vT0)]
        L += self.pro_valu()
        g = S.flow(self.keep_scc(L), max(g, 17 * 128 + 2, 16 * 128 + 104 + o.get('kvp', 0)))
        assert g < 18 * 128 - 1

    def p2_epilogue2(self):
        o = self.opt
        pr = lambda r: 'v[%d:%d]' % (r, r + 1)
        TS = [248, 184, 216]
        def qpack(qb, ds, tmp):
            L, rr = [], []
            for hf in range(2):
                k, r = self.p2_tile(8 + 2 * ds + hf, qb)
                if k == 'a':
                    L += ['v_accvgpr_read_b32 v%d, a%d' % (tmp + 4 * hf + e, r + e) for e in range(4)]
                    r = tmp + 4 * hf
                rr.append(r)
            L += ['v_pk_mul_f32 %s, s[28:29], %s' % (pr(r + e), pr(r + e)) for r in rr for e in (0, 2)]
            dst = rr[0] if qb >= 2 else 32 + (qb * 4 + ds) * 4
            L += ['v_cvt_pk_bf16_f32 v%d, v%d, v%d' % (dst + 2 * hf + e, rr[hf] + 2 * e, rr[hf] + 2 * e + 1) for hf in range(2) for e in range(2)]
            if qb >= 2: L.append('ds_write_b128 v%d, v[%d:%d] offset:%d' % (vT0, dst, dst + 3, ((qb - 2) * 4 + ds) * 1024))
            return L
        L = []
        for ds in (1, 2, 3, 0):
            for qb in (2, 3): L += qpack(qb, ds, TS[qb - 1])
        sh = []
        for it in self.dmaKV(19)[:o.get('epn', 16) if o['ep2'] < 2 else 0]: sh += [[l] for l in it] + [[]] * o.get('epsp', 3)
        sh += [[l] if not isinstance(l, list) else l for l in self.keep_scc(self.pro_salu())]
        n = 0
        for m in range(2):
            for mb in range(4):
                T = TS[n % 3]; n += 1
                G = [32 + 4 * ((4 * m + 2 * hf) * 4 + mb) + e for hf in range(2) for e in (0, 2)]
                U = [g + 16 for g in G]
                L += ['v_pk_mul_f32 %s, %s, %s' % (pr(T + 2 * e), pr(G[e]), pr(G[e])) for e in range(4)]
                L += ['v_pk_fma_f32 %s, %s, s[%d:%d], %s op_sel_hi:[1,1,0]' % (pr(T + 2 * e), pr(T + 2 * e), sT1, sT2, pr(vPR)) for e in range(4)]
                L += ['v_pk_mul_f32 %s, %s, %s' % (pr(T + 2 * e), pr(T + 2 * e), pr(G[e])) for e in range(4)]
                for e in range(8): L += ['v_exp_f32 v%d, v%d' % (T + e, T + e)] + (sh.pop(0) if sh else [])
                L += ['v_pk_mul_f32 %s, %s, %s' % (pr(U[e]), pr(G[e]), pr(U[e])) for e in range(4)]
                L += ['v_pk_add_f32 %s, %s, 1.0 op_sel_hi:[1,0]' % (pr(T + 2 * e), pr(T + 2 * e)) for e in range(4)]
                for e in range(8): L += ['v_rcp_f32 v%d, v%d' % (T + e, T + e)] + (sh.pop(0) if sh else [])
                L += ['v_pk_mul_f32 %s, %s, %s' % (pr(U[e]), pr(U[e]), pr(T + 2 * e)) for e in range(4)]
                L += ['v_cvt_pk_bf16_f32 v%d, v%d, v%d' % (G[0] + e, U[e], U[e] + 1) for e in range(4)]
                if not o.get('noh'): L += [('buffer_store_dwordx4 v[%d:%d], v%d, %s, s%d offen offset:%d sc1' % (G[0], G[0] + 3, 5 if mb & 1 else vA[0], s4(S_ST), sGo[mb >> 1], m * 1024), 'h')]
        assert not sh, len(sh)
        for ds in (1, 2, 3, 0):
            for qb in (0, 1): L += qpack(qb, ds, TS[qb])
        if o.get('eploop'):
            L = ['s_mov_b32 s30, 0', self.lab('epl') + ':'] + L + self.stamp(28, force=True) + ['s_add_u32 s30, s30, 1', 's_cmp_lt_u32 s30, 2', 's_cbranch_scc0 ' + self.lab('epx')] + self.stamp(29, force=True) + ['s_branch ' + self.lab('epl'), self.lab('epx') + ':']
        return L

    def p2_epilogue(self):
        if self.opt.get('ep2'): return self.p2_epilogue2()
        L = []
        sC = sT0
        L += ['s_mov_b32 s%d, 0x3e0293ee' % sC]
        for ds in (1, 2, 3, 0):
            for qb in range(4):
                dst = 32 + (qb * 4 + ds) * 4
                for hf in range(2):
                    k, r = self.p2_tile(8 + 2 * ds + hf, qb)
                    if k == 'a':
                        t = 96 + (qb * 2 + hf) * 4
                        L += ['v_accvgpr_read_b32 v%d, a%d' % (t + e, r + e) for e in range(4)]
                        r = t
                    L += ['v_mul_f32 v%d, s%d, v%d' % (r + e, sC, r + e) for e in range(4)]
                    L += ['v_cvt_pk_bf16_f32 v%d, v%d, v%d' % (dst + 2 * hf + e, r + 2 * e, r + 2 * e + 1) for e in range(2)]
        L += ['s_add_u32 s3, s%d, 0x10000' % sMA, 'v_add_u32 v%d, s3, v%d' % (vT0, vA[0]), 'v_xor_b32 v%d, 0x2000, v%d' % (vT1, vT0)]
        for f in range(8):
            L.append('ds_write_b128 v%d, v[%d:%d] offset:%d' % (vT0, 64 + 4 * f, 67 + 4 * f, f * 1024))
        L += ['s_cmp_ge_u32 s%d, 27' % sFB, 's_cbranch_scc1 %s' % self.lab('skipgelu')]
        self.ool.append([self.lab('skipgelu') + ':', 's_waitcnt vmcnt(0)', 's_branch %s' % self.lab('nogelu')])
        sL, sHh, c1, c2 = sGo[0], sGo[1], sT1, sT2
        L += srd_off(S_ST, pWS, WS_H, 32 * 54 * 4096)
        if self.H16:
            L += ['s_lshl_b32 s3, s%d, 1' % sW, 's_lshl_b32 s%d, s%d, 3' % (sL, sI), 's_sub_u32 s%d, 120, s%d' % (sHh, sL),
                  's_add_u32 s%d, s%d, s3' % (sL, sL), 's_add_u32 s%d, s%d, s3' % (sHh, sHh),
                  's_mul_i32 s%d, s%d, %d' % (sL, sL, 54 * 1024), 's_mul_i32 s%d, s%d, %d' % (sHh, sHh, 54 * 1024),
                  's_lshl_b32 s3, s%d, 11' % sFB, 's_add_u32 s%d, s%d, s3' % (sL, sL), 's_add_u32 s%d, s%d, s3' % (sHh, sHh),
                  'v_add_u32 v4, %d, v%d' % (54 * 1024, vA[0])]
        else:
            L += ['s_lshr_b32 s3, s%d, 1' % sW, 's_lshl_b32 s%d, s%d, 1' % (sL, sI), 's_sub_u32 s%d, 30, s%d' % (sHh, sL),
                  's_add_u32 s%d, s%d, s3' % (sL, sL), 's_add_u32 s%d, s%d, s3' % (sHh, sHh),
                  's_mul_i32 s%d, s%d, %d' % (sL, sL, 54 * 4096), 's_mul_i32 s%d, s%d, %d' % (sHh, sHh, 54 * 4096),
                  's_lshl_b32 s3, s%d, 13' % sFB, 's_and_b32 s%d, s%d, 1' % (c1, sW), 's_lshl_b32 s%d, s%d, 11' % (c1, c1), 's_add_u32 s3, s3, s%d' % c1,
                  's_add_u32 s%d, s%d, s3' % (sL, sL), 's_add_u32 s%d, s%d, s3' % (sHh, sHh)]
        import struct, math
        f2u = lambda x: struct.unpack('<I', struct.pack('<f', x))[0]
        kk = 2 * math.sqrt(2 / math.pi) * math.log2(math.e)
        L += ['s_mov_b32 s%d, 0x%x' % (c1, f2u(-kk * 0.044715)), 'v_mov_b32 v%d, 0x%x' % (vPR, f2u(-kk))]
        n = 0
        for m in range(2):
            for mb in range(4):
                base = 96 + (n % 2) * 28
                G, U, T, D = base, base + 8, base + 16, base + 24
                n += 1
                for hf in range(2):
                    _, rg = self.p2_tile(2 * (2 * m + hf), mb)
                    _, ru = self.p2_tile(2 * (2 * m + hf) + 1, mb)
                    L += ['v_accvgpr_read_b32 v%d, a%d' % (G + 4 * hf + e, rg + e) for e in range(4)]
                    L += ['v_accvgpr_read_b32 v%d, a%d' % (U + 4 * hf + e, ru + e) for e in range(4)]
                L += ['v_mul_f32 v%d, v%d, v%d' % (T + e, G + e, G + e) for e in range(8)]
                L += ['v_fma_f32 v%d, v%d, s%d, v%d' % (T + e, T + e, c1, vPR) for e in range(8)]
                L += ['v_mul_f32 v%d, v%d, v%d' % (T + e, T + e, G + e) for e in range(8)]
                L += ['v_exp_f32 v%d, v%d' % (T + e, T + e) for e in range(8)]
                L += ['v_mul_f32 v%d, v%d, v%d' % (G + e, G + e, U + e) for e in range(8)]
                L += ['v_add_f32 v%d, 1.0, v%d' % (T + e, T + e) for e in range(8)]
                L += ['v_rcp_f32 v%d, v%d' % (T + e, T + e) for e in range(8)]
                L += ['v_mul_f32 v%d, v%d, v%d' % (G + e, G + e, T + e) for e in range(8)]
                L += ['v_cvt_pk_bf16_f32 v%d, v%d, v%d' % (D + e, G + 2 * e, G + 2 * e + 1) for e in range(4)]
                va, off = ((4 if mb & 1 else vA[0]), m * 1024) if self.H16 else (vA[m], (mb & 1) * 1024)
                L += [('buffer_store_dwordx4 v[%d:%d], v%d, %s, s%d offen offset:%d sc1' % (D, D + 3, va, s4(S_ST), sL if mb < 2 else sHh, off), 'h')]
        L += [self.lab('nogelu') + ':']
        return L

    def dump_q(self):
        L = srd_off(S_X, pWS, WS_Q, 16 << 20)
        L += ['s_lshl_b32 s3, s2, 2', 's_add_u32 s3, s3, s%d' % sW, 's_lshl_b32 s3, s3, 14']
        for f in range(16):
            L += ['buffer_store_dwordx4 v[%d:%d], v%d, %s, s3 offen' % (32 + 4 * f, 35 + 4 * f, vA[0], s4(S_X)), 's_add_u32 s3, s3, 1024']
        return L

    def build(self, stats=None):
        o = self.opt
        L = self.prologue()
        pre, S = self.gemms()
        L += [('@vmwait', 'dma0'), 's_barrier'] + self.stamp(1) + pre
        L += S.lines()
        L += self.stamp(3)
        L += self.p2_epilogue()
        L += self.stamp(4)
        if o.get('stop') == 2:
            L += self.dump_q()
        L += self.epoch_out()
        L += ['s_waitcnt vmcnt(0)'] + self.stamp(13) + self.stamp(15, True) + self.stamps_out()
        L += ['s_endpgm']
        out, st = process(L, stats=stats, lazy=o.get('lazy', 8))
        for blk in self.ool:
            out += process(blk, stats=stats)[0]
        out += [self.lab('end') + ':']
        return out
```

```python
from asmlib import *
from fused import *
from attn import *

WS_P = 72 << 20
sFA, sFW, sFM, sWO, sRL, sRH, sCB, sP0, sDH = 34, [35, 36, 37, 38], 39, [40, 41, 42, 43], 44, 45, 46, 47, [None, 48, 49, 50]
S_H, S_WD, S_WO, S_P = S_B0, S_B1, S_B2, S_W
FACC, FA, FB = 140, 160, 172
vFW, vFR = 248, 249
V2, P2 = 160, 144
CXL = 32
ACCL = [64 + 8 * n for n in range(10)]
ACCH = [32, 40, 48, 56, 144, 152, 160, 168, 8, 16]
vW1, vW2, v8K, vMW, vMR, vR = 4, 5, 6, 7, 24, [30, 25]
NRING = 16
sM2, sK2 = sTI, sX
sU = [51, 54, 55, 62, 74, 88]
def tmp(lines, k):
    f = lambda l: [f(y) for y in l] if isinstance(l, list) else re.sub(r'\bs3\b', 's%d' % sU[k], l)
    return [f(l) for l in lines]

vTC = 252
AD = ['s_lshl_b32 s%d, s%d, 14' % (sM2, sW), 'v_add_u32 v%d, s%d, v%d' % (vMW, sM2, vA[0]), 'v_xor_b32 v%d, 0x4000, v%d' % (vMR, vMW), 's_xor_b32 s%d, s%d, 0x4000' % (sM2, sM2),
      's_add_u32 s%d, s%d, %d' % (sK2, sK, 144 * 1024), 'v_lshl_add_u32 v250, v1, 2, s%d' % sK2, 'v_xor_b32 v251, 0x1000, v250',
      'v_lshrrev_b32 v%d, 4, v1' % vTC, 'v_and_b32 v253, 15, v1', 'v_lshlrev_b32 v253, 7, v253', 'v_lshl_add_u32 v%d, v%d, 12, v253' % (vTC, vTC)]

class KB(KA):
    H16 = True
    MAXF = 12

    def f_setup(self):
        x, jj = sT0, sT1
        L = ['s_and_b32 s%d, s2, 7' % x, 's_bfe_u32 s%d, s2, 0x20003' % jj,
             's_and_b32 s3, s2, 1', 's_lshl_b32 s%d, s%d, 1' % (sCB, jj), 's_add_u32 s%d, s%d, s3' % (sCB, sCB),
             's_and_b32 s3, s2, 6', 's_lshl_b32 s%d, s%d, 3' % (sRL, sI), 's_sub_u32 s%d, 120, s%d' % (sRH, sRL),
             's_add_u32 s%d, s%d, s3' % (sRL, sRL), 's_xor_b32 s3, s3, 2', 's_add_u32 s%d, s%d, s3' % (sRH, sRH),
             's_cmp_lt_u32 s%d, 2' % sW, 's_cselect_b32 s%d, s%d, s%d' % (sFA, sRL, sRH), 's_and_b32 s3, s%d, 1' % sW,
             's_add_u32 s%d, s%d, s3' % (sFA, sFA), 's_mul_i32 s%d, s%d, %d' % (sFA, sFA, 54 * 1024),
             's_mul_i32 s%d, s%d, 5' % (sT2, sCB), 's_lshl_b32 s3, s%d, 2' % sW, 's_add_u32 s%d, s%d, s3' % (sT2, sT2), 's_mul_i32 s%d, s%d, 52' % (sFM, sW)]
        for k in range(4):
            L += ['s_add_u32 s3, s%d, %d' % (sFM, 13 * k), 's_lshr_b32 s3, s3, 6', 's_mul_i32 s3, s3, 35', 's_add_u32 s3, s3, s%d' % sT2, 's_lshl_b32 s%d, s3, 10' % sFW[k]]
        L += ['s_lshl_b32 s%d, s%d, 12' % (sFM, sW), 's_add_u32 s%d, s%d, 0x20000' % (sFM, sFM),
              'v_mov_b32 v%d, v%d' % (vFW, vA[0]), 'v_add_u32 v%d, 0x20000, v%d' % (vFR, vA[0])]
        L += srd_off(S_H, pWS, WS_H, 128 * 54 * 1024) + srd_off(S_WD, pWS, WS_W + (5 << 20), 54 * 40960)
        return self.keep_scc(L)
    def w_setup(self):
        x, jj = sT0, sT1
        L = ['s_bfe_u32 s%d, s2, 0x20003' % jj,
             's_lshl_b32 s%d, s%d, 2' % (sT2, sH), 's_add_u32 s%d, s%d, s%d' % (sT2, sT2, sW), 's_lshl_b32 s%d, s%d, 2' % (sT2, sT2), 's_add_u32 s%d, s%d, s%d' % (sT2, sT2, jj),
             's_mul_i32 s%d, s%d, 10240' % (sWO[0], sT2)]
        for hr in range(1, 4):
            L += ['s_add_u32 s3, s%d, %d' % (jj, hr), 's_and_b32 s3, s3, 3', 's_sub_u32 s3, s3, s%d' % jj, 's_lshl_b32 s%d, s3, 14' % sDH[hr],
                  's_mul_i32 s3, s%d, 10' % sDH[hr], 's_add_u32 s%d, s%d, s3' % (sWO[hr], sWO[0])]
        L += srd_off(S_WO, pWS, WS_W, 128 * 40960)
        return self.keep_scc(L)
    def p_setup(self):
        L = ['s_andn2_b32 s3, s2, 7', 's_add_u32 s3, s3, s%d' % sW, 's_add_u32 s3, s3, s%d' % sW, 's_mul_i32 s3, s3, 80', 's_and_b32 s%d, s2, 7' % sP0,
             's_add_u32 s3, s3, s%d' % sP0, 's_lshl_b32 s%d, s3, 10' % sP0]
        L += srd_off(S_P, pWS, WS_P, 256 * 81920)
        return self.keep_scc(L)

    def place_vm(self, S, lines, g0, sp, tag=None):
        gp, k, out = g0 - 1, 0, []
        nxt = g0
        for l in lines:
            t = l[0] if isinstance(l, tuple) else l
            if not t.startswith('buffer_'):
                while S.load.get(gp, 0) >= 8: gp += 1
                S.at(gp, l)
                nxt = max(nxt, gp + 1)
            else:
                g = nxt
                c = [y for y in range(g, g + self.opt.get('pairw', 2)) if S.load.get(y, 0) == 4]
                if c: g = c[0]
                while S.load.get(g, 0) > 4: g += 1
                S.at(g, (l, tag) if tag and not isinstance(l, tuple) else l, front=True)
                out.append(g); gp = g; nxt = g + sp
        return out

    def body2(self, mode, kind):
        o = self.opt
        first, second, last, hasf = kind == 'first', kind == 'second', kind == 'last', kind == 'loop'
        base = self.qk(mode, 0) + ([] if first else self.pv()) + self.qk(mode, 1) + self.pv(zero=first)
        b1 = 32 if first else 68
        ins = o.get('fpos', [47 + 6 * k for k in range(15)]) if hasf else []
        S = Stream(); G = {}; fg = []
        for n, l in enumerate(base):
            G[n] = S.n(); S.add(l)
            if n in ins:
                u = len(fg); fg.append(S.n())
                d = ar(FACC + 4 * (u % 5), 4)
                S.add('%s %s, %s, %s, %s' % (MF, d, ar(FB + 4 * (u % 5), 4), ar(FA + 4 * (u // 5), 4), d))
        tag = kind[0] + mode
        for b, u in ((0, 1), (b1, 0)):
            for m in range(8):
                if not (last and b): S.at(G[b + 4 * m + 3], self.kread(u, m & 1, m >> 1))
        BAR = 31 if first else o.get('abar', 39)
        tog = ['v_mov_b32 v%d, v%d' % (vV, vK), 'v_xor_b32 v%d, %s, v%d' % (vK, 's%d' % sX if mode == 'D' else '0x10000', vK)]
        if last: tog = tog[:1]
        e0 = self.exps(0)
        if first:
            S.flow(e0[:3], 28)
            S.at(31, e0[3:27] + tog + self.hookD(tag + '1') + self.hop('f') + ([('@vmwait', 'h'), 's_waitcnt lgkmcnt(0)'] if o.get('ep2', 0) >= 2 and not o.get('noh') else ['s_waitcnt vmcnt(0) lgkmcnt(0)']) + ['s_barrier'] + self.flag(4 if o.get('hn') else 3))
            e0 = e0[27:]
            fs = self.f_setup()
            g = S.flow(fs[:-8], 0)
            assert g < 28, g
        else:
            S.at(BAR, [('@vmwait', 'kv'), 's_waitcnt lgkmcnt(0)', 's_barrier'])
            S.load[BAR] = 8
            S.at(G[b1] - 2, tog)
            if mode == 'D':
                S.at(-1, self.hookD(tag + '0'))
                S.at(G[b1] - 1, self.hookD(tag + '1'))
            elif last:
                S.at(G[b1] - 1, ['s_branch %s' % self.lab('hmid'), self.lab('hmidr2') + ':'])
                S.load[G[b1] - 1] = 8
            else:
                S.at(G[b1] - 1, ['s_cmp_lg_u32 s%d, 0' % sEv, 's_cbranch_scc1 %s' % self.lab('hmid'), self.lab('hmidr') + ':'])
            c = self.cvts(1)
            vr_ = [self.vread(1, db) for db in range(8)]
            gfree = S.flow([x for k in range(8) for x in (vr_[k], c[2 * k], c[2 * k + 1])], 0)
        if hasf:
            S.at(S.n() - 1, ['s_sub_u32 s%d, s%d, 1' % (sN, sN), 's_cbranch_scc0 %s' % self.lab('top' + mode)])
            for u in range(15):
                g = BAR + 1 + u if u < 2 else fg[u - 2]
                S.at(g, 'ds_read_b128 %s, v%d offset:%d' % (ar(FB + 4 * (u % 5), 4), vFR, u * 1024))
            S.at(fg[13], 'v_xor_b32 v%d, 0x4000, v%d' % (vFR, vFR))
        fdma = ['s_mov_b32 m0, s%d' % sFM] + ['buffer_load_dwordx4 v%d, %s, s%d offen offset:%d sc1 lds' % (vFW, s4(S_WD), sFW[k], k * 1024) for k in range(4)] + \
               ['s_xor_b32 s%d, s%d, 0x4000' % (sFM, sFM), 'v_add_u32 v%d, %d, v%d' % (vFW, 3 * 40960, vFW)]
        fa = ['buffer_load_dwordx4 %s, v%d, %s, s%d offen offset:%d sc1' % (ar(FA + 4 * t, 4), vA[0], s4(S_H), sFA, t * 1024) for t in range(3)]
        sp = o['dsp'] if mode == 'S' else o.get('dspD', o['dsp'])
        vr0 = [self.vread(0, db) for db in range(8)]
        kvd = self.kv_dma(mode)
        if o.get('ep2', 0) >= 2:
            four = lambda v: ['buffer_load_dwordx4 v%d, %s, s88 offen offset:%d sc1 lds' % (v, s4(S_A), k * 1024) for k in range(4)]
            if first: kvd = kvd[5:] + ['s_add_u32 m0, s62, 0x18000', 's_add_u32 s88, s88, 0x10000'] + four(vD2)
        if first:
            self.place_vm(S, kvd, 34, sp, 'kv')
            ge = S.flow(e0, 32)
        elif last:
            g = S.flow(self.w_setup() + ['v_add_u32 v%d, 0x2000, v%d' % (v8K, vA[0]), 's_mul_i32 s%d, s%d, 10240' % (sM, sW), 's_lshl_b32 s%d, s%d, 12' % (sK, sW)] + AD[:-4 if 'c' in o.get('tl', '') else None], gfree)
            assert g < BAR, g
            dm = []
            for hr in range(3):
                for n in range(10 if hr < 2 else 3):
                    if n % 4 == 0:
                        dm.append('s_add_u32 m0, s%d, %d' % (sM, 0x10000 + hr * 40960 + n * 1024) if hr < 2 else 's_add_u32 m0, s%d, %d' % (sK, 144 * 1024))
                    dm.append((self.wo_dma(hr, n), 'wo%d' % hr))
            if o.get('f6'):
                S.at(BAR if o['f6'] == 1 else -1, ['s_cmp_eq_u32 s%d, 7' % sI, 's_cselect_b32 s3, 5, 6', 'v_add_u32 v%d, s3, v%d' % (vT0, vBASE), self.flag(0)[1]])
            gs = self.place_vm(S, dm, BAR + 2, sp)
            k = max(k for k, g in enumerate(gs) if g < G[b1] - 1)
            assert k < 9
            S.fill[gs[k]] = [(l[0], 'pre') if isinstance(l, tuple) and l[0].startswith('buffer_') else l for l in S.fill[gs[k]]]
            ge = S.flow(e0, G[28] + 1)
        else:
            gs = self.place_vm(S, fdma + kvd, BAR + 2, sp, 'kv')
            g = gs[-1] + sp
            if second:
                assert gs[-1] < o.get('gb', 124), gs
                S.at(BAR - 1, self.poll_check(3 if o.get('hn') else 2))
                g = o.get('gb', 124)
                S.at(g - 1, self.poll_check(4 if o.get('hn') else 3))
                S.flow(['v_accvgpr_write_b32 a%d, 0' % (FACC + e) for e in range(20)], gfree, gmax=28)
            for t in range(2):
                if hasf: g = max(g, fg[5 * t + 4])
                g = self.place_vm(S, fa[t:t + 1], g, sp)[0] + sp
            if hasf: S.flow([fa[2], 's_add_u32 s%d, s%d, 3072' % (sFA, sFA)], gfree)
            ge = S.flow(e0, G[28] + 1)
        if not last:
            g = S.flow(self.exps(1), G[b1 + 28] + 1)
            assert g < S.n(), g
        c = self.cvts(0)
        g = G[b1 + 30] if not last else G[b1 + 28]
        for l in reversed(c):
            while S.load.get(g, 0) + 4 > 8: g -= 1
            S.at(g, l, front=True)
        assert (g > ge and g >= G[b1]) or first, (g, ge)
        gl = S.flow(vr0, G[b1], gmax=G[b1 + 30])
        if first:
            pa = ['s_lshl_b32 s3, s%d, 6' % sW, 'v_add_lshl_u32 v%d, s3, v1, 7' % vPA]
            S.flow(pa + fs[-8:] + [(o.get('gp2', 90), self.poll_issue())], gl)
        if second:
            pa = ['s_lshl_b32 s3, s%d, 5' % sI, 'v_and_b32 v%d, 31, v1' % vPA, 'v_add_lshl_u32 v%d, s3, v%d, 7' % (vPA, vPA)]
            gg = S.flow(self.epoch_out() + ['s_lshl_b32 s3, s2, 5', 's_add_u32 s3, s3, s%d' % sW, 's_lshl_b32 s3, s3, 2', 's_add_u32 s3, s3, 16',
                                            'v_mov_b32 v%d, 0x7fff0000' % vFL, 'v_writelane_b32 v%d, s3, 0' % vFL] + pa, BAR + 1, gmax=80)
            gg = S.flow(self.poll_issue(), max(gg, o.get('gb', 124) - o.get('gp3', 44)), cap=12)
            assert gg < o.get('gb', 124) - 1
        if last:
            gl = S.flow(['ds_read_b128 %s, v%d offset:%d' % (ar(V2 + db * 4, 4), vV, 16384 + (8 + db) * 1024) for db in range(8)], gl, gmax=G[b1 + 31])
        if o.get('verbose'): print(tag, 'exp0 end', ge - G[b1], 'cvt start', g - G[b1], 'rd end', gl - G[b1], 'over', [(k, v) for k, v in sorted(S.load.items()) if v > 8])
        given = S if last else S.lines()
        return given

    def wo_dma(self, hr, n):
        return 'buffer_load_dwordx4 v%d, %s, s%d offen offset:%d sc1 lds' % ([vA[0], vA[1], v8K][n >> 2], s4(S_WO), sWO[hr], (n & 3) * 1024)
    def wo_lds(self, hr, ds, n):
        if hr < 2: a = 64 + (4 * hr + ds) * 10 + n
        elif hr == 2 and n < 4: a = 144 + ds * 4 + n
        elif hr == 2: a = (ds ^ 1) * 16 + n - 4
        else: a = (ds ^ 1) * 16 + 6 + n
        return [vA[0], vW1, vW2][a >> 6], (a & 63) * 1024

    def check(self, slow, t):
        return ['v_add_f32 v%d, v%d, v%d' % (t, L0, L0 + 4), 'v_cmp_gt_f32 vcc, 0x5f800000, v%d' % t, 's_cmp_eq_u64 vcc, -1',
                's_cbranch_scc0 %s' % self.lab(slow), self.lab(slow + 'r') + ':']
    def finalizeL(self):
        L = self.check('slowL', L0 + 2)
        L += ['v_rcp_f32 v%d, v%d' % (L0, L0), 'v_rcp_f32 v%d, v%d' % (L0 + 4, L0 + 4), 's_mov_b32 s3, s%d' % sCtL]
        for ds in range(4):
            if ds == 2: L.append('s_add_u32 s3, s3, 0x2000')
            for q in range(2):
                b, d = O0 + (ds * 2 + q) * 8, CXL + (ds * 2 + q) * 4
                L += ['v_pk_mul_f32 v[%d:%d], v[%d:%d], v[%d:%d] op_sel_hi:[1,0]' % (b + 2 * e, b + 2 * e + 1, b + 2 * e, b + 2 * e + 1, L0 + 4 * q, L0 + 4 * q + 1) for e in range(4)]
                L += ['v_cvt_pk_bf16_f32 v%d, v%d, v%d' % (d + e, b + 2 * e, b + 2 * e + 1) for e in range(4)]
                L += ['buffer_store_dwordx4 v[%d:%d], v%d, %s, s3 offen offset:%d sc1' % (d, d + 3, vA[ds & 1], s4(S_ST), q * 1024)]
        return L

    def slow2(self, name):
        lb = lambda s: self.lab(name + s)
        hi = name == 'slowH'
        C = 144
        SS, PP, M = (160, 8, 16) if hi else (96, 128, 136)
        Q = (lambda q, ds: ar(QP + (q * 4 + ds) * 4, 4)) if hi else (lambda q, ds: vr(QL + (q * 4 + ds) * 4, 4))
        sO, sJ = sSO, sSpin
        B = [lb('') + ':', 's_waitcnt vmcnt(0) lgkmcnt(0)', 's_lshl_b32 s%d, s%d, 2' % (sRho, sI)]
        if hi: B += ['s_sub_u32 s%d, 60, s%d' % (sRho, sRho), 's_xor_b32 s3, s%d, 1' % sW, 's_add_u32 s%d, s%d, s3' % (sRho, sRho)]
        else: B += ['s_add_u32 s%d, s%d, s%d' % (sRho, sRho, sW)]
        ld = ['buffer_load_dwordx4 %s, v%d, %s, s%d offen offset:%d sc1' % (ar(VF + 4 * f, 4), vA[f >> 2], s4(S_A), sO, (f & 3) * 1024) for f in range(8)]
        def head(n):
            return ['s_mov_b32 s%d, 0' % sJ, lb(n) + ':', 's_lshr_b32 s%d, s%d, 1' % (sO, sJ), 's_lshl_b32 s%d, s%d, 15' % (sO, sO), 's_and_b32 s3, s%d, 1' % sJ,
                    's_lshl_b32 s3, s3, 13', 's_add_u32 s%d, s%d, s3' % (sO, sO)] + ld
        def mask(n):
            return ['s_cmp_eq_u32 s%d, s%d' % (sJ, sRho), 's_cbranch_scc0 %s' % lb(n)] + self.tri(C) + [lb(n) + ':', 's_nop 1']
        qk = []
        for ds in range(4):
            for kb in range(2):
                for q in range(2):
                    d = vr(SS + (q * 2 + kb) * 4, 4)
                    qk.append('%s %s, %s, %s, %s' % (MF, d, ar(VF + (kb * 4 + ds) * 4, 4), Q(q, ds), vr(C + (q * 2 + kb) * 4, 4) if ds == 0 else d))
        def tail(n):
            return ['s_add_u32 s%d, s%d, 1' % (sJ, sJ), 's_cmp_le_u32 s%d, s%d' % (sJ, sRho), 's_nop 7', 's_cbranch_scc1 %s' % lb(n)]
        B += ['s_nop 7', 's_nop 7']
        B += ['v_mov_b32 v%d, 0' % (C + e) for e in range(16)] + ['v_mov_b32 v%d, v%d' % (M + q, vBig) for q in range(2)]
        B += head('1') + mask('1m') + qk
        for q in range(2):
            B += ['v_max3_f32 v%d, v%d, v%d, v%d' % (M + q, M + q, SS + 8 * q + 2 * e, SS + 8 * q + 2 * e + 1) for e in range(4)]
        B += tail('1')
        for q in range(2):
            for sw in ('16', '32'):
                B += ['v_mov_b32 v%d, v%d' % (M + 2, M + q), 'v_permlane%s_swap_b32 v%d, v%d' % (sw, M + q, M + 2), 'v_max_f32 v%d, v%d, v%d' % (M + q, M + q, M + 2)]
            B += ['v_sub_f32 v%d, 0, v%d' % (C + 8 * q + e, M + q) for e in range(8)]
        B += self.zero0()
        if hi:
            B += ['ds_write_b128 v%d, v[%d:%d] offset:%d' % (vMR, O0, O0 + 3, t * 1024) for t in range(16)] + ['s_waitcnt lgkmcnt(0)']
        B += head('2') + mask('2m') + qk + ['s_add_u32 s%d, s%d, 0x4000' % (sO, sO)]
        B += ['v_exp_f32 v%d, v%d' % (SS + e, SS + e) for e in range(16)] + ld
        B += ['v_cvt_pk_bf16_f32 v%d, v%d, v%d' % (PP + e, SS + 2 * e, SS + 2 * e + 1) for e in range(8)]
        B += [l.replace(vr(PB, 4), vr(PP, 4)).replace(vr(PB + 4, 4), vr(PP + 4, 4)) for l in self.pv(qs=(0, 1))]
        B += tail('2') + ['s_nop 7', 's_branch %s' % lb('r')]
        self.ool.append(B)

    def attention(self, st, stats, lazy):
        out = []
        lb = self.lab
        def run(lines, st): return process(lines, st, stats=stats, lazy=lazy)
        def ok(o, *sts):
            for s in sts:
                p = process(o, s, pad=False)[0]
                if p != o:
                    k = next(k for k in range(len(o)) if p[k] != o[k])
                    print('\n'.join(p[max(0, k - 30):k + 5])); print(s.lg, s.vm)
                assert p == o
                assert [t for t, _ in s.vm][-2:] == [None] * 2, s.vm
        def loop(lines, st):
            o1, st1 = process(lines, st, lazy=lazy); o2, st2 = run(lines, st1)
            assert st1.sig() == st2.sig()
            ok(o2, st, st2)
            return o2, st2
        lastD = ['s_mov_b32 s%d, 0x10000' % sTI, 's_mov_b32 s%d, s%d' % (sX, sXe)]
        o, st = run(self.attn_pro() + self.stamp(16) + self.body2('D', 'first') +
                    ['s_cmp_eq_u32 s%d, 0' % sI] + [l.replace('s_mov', 's_cmov') for l in lastD] + self.body2('D', 'second') +
                    ['s_waitcnt lgkmcnt(0)', 's_sub_u32 s%d, s%d, 2' % (sN, sN), 's_cbranch_scc1 %s' % lb('entS')], st); out += o
        st1 = st
        oD, st = loop([lb('topD') + ':'] + self.body2('D', 'loop'), st); out += oD
        post = ['s_cmp_eq_u32 s%d, 0x8000' % sTI] + lastD + ['s_mov_b32 s%d, 0' % sN, 's_cbranch_scc1 %s' % lb('topD')]
        o, st = run(post, st); out += o
        ok(oD, st)
        ent = [lb('entS') + ':'] + self.stamp(17) + ['s_mov_b32 s%d, 1' % sEv, 's_lshl_b32 s3, s%d, 1' % sI, 's_sub_u32 s%d, 13, s3' % sN, 's_cbranch_scc1 %s' % lb('postS')]
        o, st = run(ent, st); out += o
        st1 = process(o, st1)[1]
        stD = st
        oS, st = loop([lb('topS') + ':'] + self.body2('S', 'loop'), st); out += oS
        ok(oS, st1)
        post = [lb('postS') + ':', 's_or_b32 s%d, s%d, 2' % (sEv, sEv), 's_cmp_eq_u32 s%d, 2' % sW, 's_cbranch_scc0 %s' % lb('hs0'), lb('topL') + ':']
        self.ool.append([lb('hs0') + ':',
                         's_cmp_eq_u32 s%d, 1' % sW, 's_cbranch_scc1 %s' % lb('hs0a'),
                         's_cmp_eq_u32 s%d, 3' % sW, 's_cbranch_scc1 %s' % lb('hs0b')] + self.tri(CG[1]) + ['s_nop 0', 's_branch %s' % lb('topL'),
                         lb('hs0a') + ':'] + self.allm(CG[1]) + self.allm(CP) + ['s_nop 0', 's_branch %s' % lb('topL'),
                         lb('hs0b') + ':'] + self.tri(CP) + ['s_nop 0', 's_branch %s' % lb('topL')])
        self.ool.append([lb('hmid') + ':', 's_bitcmp1_b32 s%d, 0' % sEv, 's_cbranch_scc0 %s' % lb('hm1'), 's_nop 7'] + self.finalizeL() + self.zero0() +
                        ['s_bitcmp1_b32 s%d, 1' % sEv, 's_mov_b32 s%d, 0' % sEv, 's_cbranch_scc0 %s' % lb('hmidr'),
                         lb('hm1') + ':', 's_cmp_eq_u32 s%d, 0' % sW, 's_cbranch_scc1 %s' % lb('hm2'),
                         's_cmp_eq_u32 s%d, 3' % sW, 's_cbranch_scc0 %s' % lb('hmidr2')] + self.tri(CG[1]) + self.allm(CP) + ['s_nop 0', 's_branch %s' % lb('hmidr2'),
                         lb('hm2') + ':'] + self.allm(CG[1]) + self.tri(CP) + ['s_nop 0', 's_branch %s' % lb('hmidr2')])
        self.slow2('slowL'); self.slow2('slowH')
        o, st = run(post + self.finish(self.body2('S', 'last')), st); out += o
        if not self.opt.get('abl'): ok(o, stD)
        return out, st

    def areg(self, part, hr, ds, q):
        f = ds * 2 + q
        if hr == 0: return vr(CXL + 4 * f, 4) if part == 0 else vr(O0 + 8 * f, 4)
        if part == 0: return ar([160, 64, 96][hr - 1] + 4 * f, 4)
        return ar([192, 224][hr - 1] + 4 * f, 4) if hr < 3 else vr(O0 + 4 + 8 * f, 4)
    def freg(self, k):
        return ar(64 + 4 * k, 4) if k < 16 else ar(160 + 4 * (k - 16), 4) if k < 24 else vr(O0 + 8 * (k - 24), 4)

    def finish(self, S):
        o = self.opt
        E = S.n()
        sp = o.get('wsp', 5.5)
        for l in self.pv(qs=(2, 3)) + self.pv(qs=(0, 1)):
            for q in range(4): l = l.replace(vr(PB + 4 * q, 4), vr(P2 + 4 * q, 4))
            for db in range(8): l = l.replace(', ' + ar(VF + 4 * db, 4) + ', v', ', ' + ar(V2 + 4 * db, 4) + ', v')
            S.add(l)
        allk = lambda *h: [(hr, ds) for hr in h for ds in range(4)]
        mix = o.get('mix', 'HLLHLLHH')
        seg = [('k', 0, allk(0))] + [('k', int(c == 'H'), [(int(c == 'L'), mix[:k].count(c))]) for k, c in enumerate(mix)]
        seg += [('c', 0, allk(2, 3))] if o.get('lc', 1) == 2 else [('k', 0, allk(2)), ('c', 0, allk(3))]
        hk = o.get('hk', 8)
        seg += [('k', 1, allk(1, 2, 3)[:hk], (0, 1, 2)), ('c', 1, allk(1, 2, 3)[hk:], (0, 1, 2)), ('c', 1, allk(1, 2, 3), (3, 4))]
        uses = []
        needA = {}
        lastA = {}
        done = {}
        seen = set()
        for kind, part, ks, *cs in seg:
            cs = cs[0] if cs else range(5)
            order = [(hr, ds, n) for hr, ds in ks for c in cs for n in (c, 5 + c)] if kind == 'k' else [(hr, ds, n) for c in cs for hr, ds in ks for n in (c, 5 + c)]
            for hr, ds, n in order:
                u = len(uses)
                uses.append((S.n(), hr, ds, n))
                needA.setdefault((part, hr, ds), S.n())
                for q in ((0, 1) if u % 2 == 0 else (1, 0)):
                    d = vr((ACCH if part else ACCL)[n] + 4 * q, 4)
                    S.add('%s %s, %s, %s, %s' % (MF, d, ar(4 * (u % NRING), 4), self.areg(part, hr, ds, q), d if (part, n) in seen else '0'))
                seen.add((part, n))
                done[(part, n)] = lastA[(part, hr, ds)] = S.n() - 1
        assert len(uses) == 320
        F0 = S.n()
        facc = lambda j, n: ar(FACC + 4 * n, 4) if j == 0 else vr(64 + (j - 1) * 20 + 4 * n, 4)
        fdone = {}
        for n in range(5):
            for t in range(3):
                for j in range(4):
                    d = facc(j, n)
                    fdone[(j, n)] = S.n()
                    S.add('%s %s, %s, %s, %s' % (MF, d, self.freg(9 * t + 4 + n), self.freg(9 * t + j), '0' if t == 0 and j else d))
        bar = lambda g, *tags: S.at(g, [('@vmwait', t) for t in tags] + ['s_waitcnt lgkmcnt(0)', 's_barrier'])
        LA = o.get('wla', 16)
        B1 = E - 1
        bar(B1, 'wo0'); S.load[B1] = 8
        first = lambda p: min(g for g, hr, ds, n in uses if p(hr))
        B3, B4a, B4 = [first(lambda h: h == k) - LA - 1 for k in (1, 2, 3)]
        if o.get('lc', 1) == 2: B4 = B4a
        else: S.at(B4a, [('@vmwait', 'wo2'), 's_barrier']); S.load[B4a] = 8
        S.at(B4, [('@vmwait', 'wo3'), 's_barrier']); S.load[B4] = 8
        g6 = E + o.get('g6', 0)
        touch = lambda s: ['buffer_load_dword a%d, v%d, %s, s%d offen sc1' % (135, vTC, s4(S_ST), s)] if o.get('touch', 1) & (1 if s == sCtH else 3) else []
        S.at(g6, [('@vmwait', 'pre')] + self.flag(6))
        wr = []
        gw = E + 6
        for db in range(8):
            for q in range(2):
                t = (db >> 1) * 4 + q * 2 + (db & 1)
                wr.append((max(int(gw), E + 2 + 2 * db + 4), 'ds_write_b128 v%d, %s offset:%d' % (vMW, ar(O1 + 4 * t, 4), t * 1024)))
                gw += o.get('msp', 3.5)
        gmw = S.flow(wr, E + 4)
        gt6 = S.flow(touch(sCtL) + [(E + 9, 'ds_write_b32 v251, a%d offset:3072' % L1), (E + 19, 'ds_write_b32 v251, a%d offset:3328' % (L1 + 4))], E + 6)
        for u, (g, hr, ds, n) in enumerate(uses):
            v, off = self.wo_lds(hr, ds, n)
            S.at(g - LA, 'ds_read_b128 %s, v%d offset:%d' % (ar(4 * (u % NRING), 4), v, off))
        ex = lambda q: ['v_exp_f32 v%d, v%d' % (SB[1] + 8 * q + e, SB[1] + 8 * q + e) for e in range(8)]
        cv = lambda q: ['v_cvt_pk_bf16_f32 v%d, v%d, v%d' % (P2 + e, SB[1] + 2 * e, SB[1] + 2 * e + 1) for e in range(4 * q, 4 * q + 4)]
        g = S.flow(ex(2)[:4] + ex(3) + ex(2)[4:] + cv(3) + cv(2), E - 36 - 3)
        assert g < E - 1, g
        ad = ['v_add_u32 v%d, 0x10000, v%d' % (vW1, vA[0]), 'v_add_u32 v%d, 0x20000, v%d' % (vW2, vA[0])]
        pa = ['s_andn2_b32 s3, s2, 24', 's_lshl_b32 s3, s3, 5', 's_add_u32 s3, s3, s%d' % sW, 's_lshl_b32 s3, s3, 2', 's_add_u32 s3, s3, 16',
              'v_and_b32 v%d, 3, v1' % vPA, 'v_lshl_add_u32 v%d, v%d, 10, s3' % (vPA, vPA)]
        g = S.flow(ex(0) + cv(0) + ex(1) + cv(1), g)
        assert g < E + 18, g - E
        tl = o.get('tl', '')
        T = []
        if 'x' in tl:
            T += srd(S_X, pX, pX + 1, 2048 * 1280) + ['s_cmp_lt_u32 s%d, 2' % sW, 's_cselect_b32 s51, s%d, s%d' % (sRL, sRH), 's_and_b32 s54, s%d, 1' % sW, 's_add_u32 s51, s51, s54',
                  's_lshl_b32 s51, s51, 7', 's_add_u32 s51, s51, s%d' % sCB, 's_mul_i32 s51, s51, 160', 'v_and_b32 v254, 15, v1', 'v_mul_u32_u24 v254, 1280, v254',
                  'v_lshrrev_b32 v255, 4, v1', 'v_mad_u32_u24 v254, v255, 52, v254', 'buffer_load_dword v255, v254, %s, s51 offen' % s4(S_X)]
        if 'h' in tl:
            T += ['s_bfe_u32 s54, s2, 0x20003', 's_cmp_lt_u32 s54, 2', 's_cselect_b32 s51, s%d, s%d' % (sRL, sRH), 's_and_b32 s54, s54, 1', 's_add_u32 s51, s51, s54',
                  's_mul_i32 s51, s51, 18', 's_add_u32 s51, s51, s%d' % sW, 's_add_u32 s51, s51, 14', 's_mul_i32 s51, s51, 3072', 'v_mul_u32_u24 v254, 48, v1',
                  'buffer_load_dword v248, v254, %s, s51 offen sc1' % s4(S_H)]
        if 'd' in tl:
            T += ['s_mul_i32 s54, s%d, 11' % sI, 's_lshr_b32 s54, s54, 5', 's_sub_u32 s54, s%d, s54' % sW, 's_mul_i32 s54, s54, 3', 's_add_u32 s54, s54, s%d' % sI, 's_add_u32 s54, s54, 42',
                  's_lshl_b32 s54, s54, 3', 's_add_u32 s54, s54, s%d' % sCB, 's_mul_i32 s54, s54, 5120', 'v_mul_u32_u24 v254, 80, v1',
                  'buffer_load_dword v249, v254, %s, s54 offen sc1' % s4(S_WD)]
        if 'c' in tl: T += AD[-4:] + ['buffer_load_dword v253, v%d, %s, s%d offen sc1' % (vTC, s4(S_ST), sCtL)]
        S.at(-1, T)
        if o.get('f6') == 2:
            S.at(-1, tmp(pa, 0)); pa = []
        gp = S.flow(ad + tmp(pa, 0), E - 36)
        assert gp < E + 36 - LA - 1, gp - E
        g = gmw
        B2 = max(g + o.get('b2d', 8), E + 37)
        while S.load.get(B2, 0): B2 += 1
        if o.get('b3'):
            bar(B2); S.at(B3, [('@vmwait', 'wo1'), 's_barrier']); S.load[B3] = 8
        else: bar(B2, 'wo1')
        assert gt6 <= B2 + 6 and B2 < B3
        S.at(B2, ['ds_read_b32 v%d, v250 offset:%d' % (L0 + 1 + 4 * q, 3072 + q * 256) for q in range(2)])
        g = B2 + 6
        S.at(g, ['v_add_f32 v%d, v%d, v%d' % (L0 + 4 * q, L0 + 4 * q, L0 + 1 + 4 * q) for q in range(2)] + self.check('slowH', L0 + 2))
        X = lambda f: 240 + 8 * (f & 1)
        rdx = lambda f: ['ds_read_b128 v[%d:%d], v%d offset:%d' % (X(f) + 4 * k, X(f) + 4 * k + 3, vMR, (2 * f + k) * 1024) for k in range(2)]
        vTC2 = vMW
        g = S.flow(['v_mov_b32 v%d, v%d' % (vTC2, vTC)] + rdx(1) + ['v_rcp_f32 v%d, v%d' % (vR[q], L0 + 4 * q) for q in range(2)] + rdx(0), g + 1)
        g += 4
        freed = {}
        cap = o.get('fcap', 8)
        for f in (1, 0, 3, 2, 5, 4, 7, 6):
            b, ds, q = O0 + 8 * f, f >> 1, f & 1
            g = S.flow(['v_add_f32 v%d, v%d, v%d' % (b + e, b + e, X(f) + e) for e in range(8)], g, cap=cap)
            freed[f] = g
            it = (rdx(f + 2) if f < 6 else []) + ['v_mul_f32 v%d, v%d, v%d' % (b + e, b + e, vR[q]) for e in range(8)]
            it += ['v_cvt_pk_bf16_f32 v%d, v%d, v%d' % (b + e, b + 2 * e, b + 2 * e + 1) for e in range(4)]
            g = S.flow(it, g, cap=cap)
            assert g < needA[(1, 0, ds)] - 1, (f, g, needA[(1, 0, ds)])
            if f == 5: g = S.flow(['s_add_u32 s%d, s%d, 0x2000' % (sT2, sCtH)], g, cap=cap)
            g = S.flow([('buffer_store_dwordx4 v[%d:%d], v%d, %s, s%d offen offset:%d sc1' % (b, b + 3, vA[ds & 1], s4(S_ST), sCtH if ds < 2 else sT2, q * 1024), 'cx')], g, cap=cap)
        gfin = g
        def aloads(part):
            it = []
            for hr in range(1, 4):
                for ds in range(4):
                    if ds == 0: it.append('s_add_u32 s%d, s%d, s%d' % (sT0, sCtH if part else sCtL, sDH[hr]))
                    if ds == 2: it.append('s_add_u32 s%d, s%d, 0x2000' % (sT0, sT0))
                    it += ['buffer_load_dwordx4 %s, v%d, %s, s%d offen offset:%d sc1' % (self.areg(part, hr, ds, q), vA[ds & 1], s4(S_ST), sT0, q * 1024) for q in range(2)]
            return it
        def chk(gs, part):
            sl = [needA[(part, 1 + k // 8, (k >> 1) & 3)] - g for k, g in enumerate(gs)]
            if o.get('verbose'): print('A slack', part, sl)
            assert min(sl) > 0
        c6 = E + o.get('c6', 60)
        assert (gp < c6 - o.get('pd', 30) or not pa) and c6 >= E + 36
        S.at(c6 - o.get('pd6', o.get('pd', 30)), self.poll_issue())
        S.at(c6, self.stamp(19) + self.hop('c6') + self.poll_check(6) + self.stamp(20))
        al = aloads(0)
        w2, w3 = [], []
        for a in range(16):
            hr, n = (2, 4 + a) if a < 6 else (3, a - 6)
            dm = w2 if a < 6 else w3
            if n % 4 == 0: dm.append('s_add_u32 m0, s%d, %d' % (sM2, a * 1024))
            dm.append((freed[a >> 1] + 1, (self.wo_dma(hr, n), 'wo%d' % hr)))
        q = al[:10] + [(B2 + 8, 's_mov_b32 m0, s%d' % sK2), (self.wo_dma(2, 3), 'wo2')] + al[10:20] + w2 + w3 + al[20:]
        gs = self.place_vm2(S, q, c6 + 1, sp)
        chk(gs[:8] + gs[9:17] + gs[33:], 0)
        if o.get('verbose'): print('E', E, 'B2', B2 - E, 'fin end', gfin - E, 'c6', c6 - E, 'vm', [x - E for x in gs], 'B4', B4a - E, B4 - E, 'F0', F0 - E)
        assert gs[22] < B4a and gs[32] < B4
        gAL, gW3 = gs[-1], gs[32]
        S.flow(tmp(self.p_setup(), 4), gfin + 1)
        g7 = gfin + o.get('g7', 75)
        S.flow([[('@vmwait', 'cx')] + self.flag(7)] + [l.replace('v%d,' % vTC, 'v%d,' % vTC2) for l in touch(sCtH)], g7)
        c7 = E + o.get('c7', 350)
        assert c7 > gAL
        assert g7 < c7 - o.get('pd', 30)
        S.at(c7 - o.get('pd7', o.get('pd', 30)), self.poll_issue())
        S.at(c7, self.stamp(21) + self.hop('c7') + self.poll_check(7) + self.stamp(22))
        gs = self.place_vm2(S, aloads(1), c7 + 1, sp)
        chk(gs, 1)
        gAH = gs[-1]
        gst = {}
        for part in range(2):
            g = 0
            for n in sorted(range(10), key=lambda n: done[(part, n)]):
                b = (ACCH if part else ACCL)[n]
                t = part + (part and n % 5 > 2)
                g = S.flow(['v_cvt_pk_bf16_f32 v%d, v%d, v%d' % (b + e, b + 2 * e, b + 2 * e + 1) for e in range(4)] +
                           ['s_add_u32 s%d, s%d, %d' % (sT1, sP0, (n // 5) * 81920 + (part * 5 + n % 5) * 8192),
                            ('buffer_store_dwordx4 v[%d:%d], v%d, %s, s%d offen sc1' % (b, b + 3, vA[0], s4(S_P), sT1), 'p%d' % t)], max(g, done[(part, n)] + 4))
                gst[t] = g
        assert gst[0] < min(done[(1, n)] for n in range(10))
        g8 = S.flow([[('@vmwait', 'p0')] + self.flag(8)], gst[0] + o.get('g8', 80))
        g9 = S.flow([[('@vmwait', 'p1')] + self.flag(9)], gst[1] + o.get('g9', 75))
        sJ = sFW
        su = ['s_mul_i32 s%d, s%d, 3' % (sFM, sW), 's_add_u32 s%d, s%d, 42' % (sFM, sFM)]
        for j in range(4):
            su += ['s_add_u32 s3, s%d, %d' % (sW, j), 's_bitcmp1_b32 s3, 1', 's_cselect_b32 s%d, s%d, s%d' % (sJ[j], sRH, sRL), 's_and_b32 s3, s3, 1',
                   's_add_u32 s3, s3, s%d' % sJ[j], 's_mul_i32 s3, s3, 54', 's_add_u32 s3, s3, s%d' % sFM, 's_lshl_b32 s%d, s3, 10' % sJ[j]]
        su += ['s_lshl_b32 s%d, s%d, 3' % (sFM, sFM), 's_add_u32 s%d, s%d, s%d' % (sFM, sFM, sCB), 's_mul_i32 s%d, s%d, 5120' % (sFM, sFM)]
        g = S.flow(tmp(self.keep_scc(su), 1), c7 + 2)
        it = []
        for t in range(3):
            it += ['buffer_load_dwordx4 %s, v%d, %s, s%d offen offset:%d sc1' % (self.freg(9 * t + j), vA[0], s4(S_H), sJ[j], t * 1024) for j in range(4)]
            it += ['buffer_load_dwordx4 %s, v%d, %s, s%d offen offset:%d sc1' % (self.freg(9 * t + 4 + n), vA[n >> 2], s4(S_WD), sFM, (n & 3) * 1024) for n in range(5)]
            if t < 2: it.append('s_add_u32 s%d, s%d, 40960' % (sFM, sFM))
        gl = max(max(v for (p, hr, ds), v in lastA.items() if p == 0 or hr == 0) + 1, gAH + sp + (6 * o.get('xs', 3) if o.get('xl') == 1 else 0), g + 1)
        gs = self.place_vm2(S, it, gl, o.get('fsp', sp))
        if o.get('verbose'): print('g7', g7 - E, 'c7', c7 - E, 'AH end', gAH - E, 'pst', gst[0] - E, gst[1] - E, 'fl', gs[0] - E, gs[-1] - E)
        assert gs[-1] < F0 + 20
        gF = gs[-1]
        sPA, sPB, sOA, sOB = sWO
        vO, vO2 = 6, 24
        su = ['s_mul_i32 s%d, s2, 10' % sPB, 's_add_u32 s%d, s%d, s%d' % (sPA, sPB, sW), 's_lshl_b32 s%d, s%d, 13' % (sPA, sPA),
              's_mul_i32 s3, s%d, 5' % sCB, 's_add_u32 s3, s3, s%d' % sW, 's_lshl_b32 s3, s3, 5', 's_mul_i32 s%d, s%d, 20480' % (sOA, sRL), 's_mul_i32 s%d, s%d, 20480' % (sOB, sRH),
              's_add_u32 s%d, s%d, s3' % (sOA, sOA), 's_add_u32 s%d, s%d, s3' % (sOB, sOB), 's_add_u32 s3, s%d, 32' % sOA,
              's_cmp_eq_u32 s%d, 3' % sW, 's_cselect_b32 s%d, s3, s%d' % (sOB, sOB), 's_cselect_b32 s3, 1, 5', 's_lshl_b32 s3, s3, 13', 's_add_u32 s%d, s%d, s3' % (sPB, sPA),
              'v_and_b32 v%d, 15, v1' % vO, 'v_mul_u32_u24 v%d, 1280, v%d' % (vO, vO), 'v_lshrrev_b32 v%d, 4, v1' % vO2, 'v_lshl_add_u32 v%d, v%d, 3, v%d' % (vO, vO2, vO),
              'v_add_u32 v%d, 20480, v%d' % (vO2, vO)]
        if o.get('bp'):
            su = su[:-5] + ['v_lshrrev_b32 v253, 2, v1', 'v_mul_u32_u24 v%d, 1280, v253' % vO, 'v_and_b32 v%d, 3, v1' % vO2, 'v_lshl_add_u32 v%d, v%d, 3, v%d' % (vO, vO2, vO),
                            'v_lshl_add_u32 v253, v%d, 4, v253' % vO2, 'v_lshlrev_b32 v253, 2, v253', 'v_add_u32 v%d, 20480, v%d' % (vO2, vO),
                            'v_and_b32 v254, 15, v1', 'v_lshrrev_b32 v255, 4, v1', 'v_lshl_add_u32 v254, v254, 2, v255', 'v_lshlrev_b32 v254, 2, v254']
        su += srd(S_X, pX, pX + 1, 2048 * 1280) + srd(S_A, pOUT, pOUT + 1, 2048 * 1280)
        g = S.flow(tmp(self.keep_scc(su), 2), gW3 + 1)
        XR = 240
        xl = ['buffer_load_dwordx2 v[%d:%d], v%d, %s, s%d offen offset:%d' % (XR + 4 * k + 2 * q, XR + 4 * k + 2 * q + 1, [vO, vO2][q], s4(S_X), [sOA, sOB, sOB][k], 96 * (k == 2)) for k in range(3) for q in range(2)]
        gs = self.place_vm2(S, xl, max(g + 1, gAL + 4), 4) if not o.get('xl') else self.place_vm2(S, xl, gAH + 5, o.get('xs', 3)) if o['xl'] == 1 else [0]
        if o.get('verbose'): print('x loads', gs[0] - E, gs[-1] - E)
        if o.get('bp'):
            for e in range(12): S.flow(['ds_bpermute_b32 v%d, v254, v%d' % (XR + e, XR + e)], max(gs[-1] + 150, E + o.get('bpx', 480)) + 2 * e)
        SEL = 140
        su = ['s_andn2_b32 s3, s2, 7', 's_lshl_b32 s3, s3, 7', 's_and_b32 s%d, s2, 6' % sT2, 's_lshl_b32 s%d, s%d, 1' % (sT2, sT2), 's_add_u32 s3, s3, s%d' % sT2, 's_add_u32 s3, s3, 16',
              'v_and_b32 v%d, 7, v1' % vPA, 'v_lshl_add_u32 v%d, v%d, 7, s3' % (vPA, vPA)]
        g = S.flow(tmp(su, 5), c7 + 2)
        pd = o.get('pd', 30)
        c8 = max(gF + 4, g8 + 30 + pd)
        assert g < c8 - pd
        pregs = {0: [124, 128, 132] + [O0 + 8 * f for f in range(3, 8)], 1: [32 + 4 * p for p in range(6)] + [152, 156], 2: [192 + 4 * p for p in range(8)]}
        prn = lambda k, p: (ar if k == 2 else vr)(pregs[k][p], 4)
        pl = lambda k: ['buffer_load_dwordx4 %s, v%d, %s, s%d offen offset:%d sc1' % (prn(k, p), vA[p >> 2], s4(S_P), [sPA, sPB, sPA][k], (p & 3) * 1024) for p in range(8)]
        S.at(c8 - pd, self.poll_issue())
        S.at(c8, self.stamp(23) + self.hop('c8') + self.poll_check(8) + self.stamp(24))
        gs = self.place_vm2(S, (xl if o.get('xl') == 2 else []) + pl(0), c8 + 1, o.get('psp', sp))
        c9 = g9 + o.get('d9', 30) + pd
        assert c9 < S.n() - 2 and c9 - pd > c8, (c9 - F0, c8 - F0)
        S.at(c9 - pd, self.poll_issue())
        S.at(c9, self.stamp(25) + self.hop('c9') + self.poll_check(9) + self.stamp(26))
        n_in = min(8, (S.n() - 2 - c9) // 3)
        self.place_vm2(S, pl(1)[:n_in], c9 + 1, 3)
        S.at(F0 + 1, ['s_barrier'])
        vFJ = [136, 137, 138, 139]
        su = []
        for j in range(4):
            su += ['s_add_u32 s3, s%d, %d' % (sW, j), 's_and_b32 s3, s3, 3', 's_mul_i32 s3, s3, 20', 's_add_u32 s3, s3, s%d' % sW, 's_lshl_b32 s3, s3, 10', 'v_add_u32 v%d, s3, v%d' % (vFJ[j], vA[0])]
        su += ['s_lshl_b32 s3, s%d, 12' % sW, 'v_add_u32 v25, s3, v%d' % vA[0], 's_cmp_eq_u32 s%d, 3' % sW, 's_cselect_b32 s3, 4, 40', 's_lshl_b32 s3, s3, 10', 'v_add_u32 v252, s3, v25']
        X0 = SEL + 2
        su += ['v_lshrrev_b32 v%d, 4, v1' % SEL, 'v_bfe_u32 v%d, v1, 1, 3' % (SEL + 1), 'v_lshlrev_b32 v%d, 1, v%d' % (SEL, SEL), 'v_sub_u32 v%d, v%d, v%d' % (SEL + 1, SEL + 1, SEL),
               'v_and_b32 v%d, 1, v1' % SEL, 'v_lshlrev_b32 v%d, 4, v%d' % (SEL, SEL), 's_movk_i32 s3, 0x3f80', 'v_lshlrev_b32 v%d, v%d, s3' % (SEL, SEL),
               ['v_cmp_eq_u32 vcc, 0, v%d' % (SEL + 1), 'v_cndmask_b32 v%d, 0, v%d, vcc' % (X0, SEL)], ['v_cmp_eq_u32 vcc, 1, v%d' % (SEL + 1), 'v_cndmask_b32 v%d, 0, v%d, vcc' % (X0 + 1, SEL)],
               'v_mov_b64 v[%d:%d], 0' % (SEL, SEL + 1)]
        su = [l for x in su for l in ([x] if isinstance(x, list) else [x])]
        k = next(k for k, l in enumerate(su) if isinstance(l, list))
        g = S.flow(tmp(self.keep_scc(su[:k]) + su[k:], 3), g8 + 1)
        assert g < F0 + 12, g - F0
        fw = sorted(fdone, key=lambda k: fdone[k])
        wl = []
        for k in fw: wl.append((max(fdone[k] + 4, wl[-1][0] + 3 if wl else 0), 'ds_write_b128 v%d, %s offset:%d' % (vFJ[k[0]], facc(*k), k[1] * 4096)))
        nin = sum(1 for e, _ in wl if e < S.n())
        S.flow(wl[:nin], F0 + 2, gmax=S.n() - 1)
        for k, gx in enumerate(o.get('xst', [])): S.at(E + gx, self.stamp([5, 6, 7, 8, 9, 10, 11, 12, 18][k]))
        if o.get('verbose'): print('g8', g8 - E, 'g9', g9 - E, 'c8', c8 - F0, 'c9', c9 - F0, 'nin', n_in, nin, 'over', [(k - E, v) for k, v in sorted(S.load.items()) if v > 8 and k >= E - 40])
        L = S.lines() + pl(1)[n_in:] + [l for _, l in wl[nin:]] + self.stamp(27)
        fl = [('@vmwait', 'p2')] + self.flag(10)
        L += ['s_add_u32 s%d, s%d, %d' % (sPA, sPB, 3 * 8192), 's_mov_b32 s3, 0xbfb8aa3b', 's_waitcnt lgkmcnt(0)', 's_barrier']
        FR = lambda k, q: [64, 80, 96, 160, 176, 8][2 * k + q]
        rd = lambda k: ['ds_read_b128 v[%d:%d], v%d offset:%d' % (FR(k, q) + 4 * ww, FR(k, q) + 4 * ww + 3, 252 if k else 25, 12288 * (k == 2) + q * 20480 + ww * 1024) for q in range(2) for ww in range(4)]
        pk = lambda op, d, x, y: 'v_pk_%s_f32 v[%d:%d], %s, v[%d:%d]' % (op, d, d + 1, x if isinstance(x, str) else 'v[%d:%d]' % (x, x + 1), y, y + 1)
        def silu(k):
            R = []
            for q in range(2):
                b = FR(k, q)
                for x, y in ((0, 4), (8, 12), (0, 8)): R += [pk('add', b + x + e, b + x + e, b + y + e) for e in (0, 2)]
                R += ['v_mul_f32 v%d, s3, v%d' % (b + 4 + e, b + e) for e in range(4)]
                R += ['v_exp_f32 v%d, v%d' % (b + 4 + e, b + 4 + e) for e in range(4)]
                R += ['v_lshlrev_b32 v%d, 16, v%d' % (b + 8 + 2 * e, XR + 4 * k + 2 * q + e) for e in range(2)]
                R += ['v_add_f32 v%d, 1.0, v%d' % (b + 4 + e, b + 4 + e) for e in range(4)]
                R += ['v_rcp_f32 v%d, v%d' % (b + 4 + e, b + 4 + e) for e in range(4)]
                R += ['v_and_b32 v%d, s%d, v%d' % (b + 9 + 2 * e, sMask, XR + 4 * k + 2 * q + e) for e in range(2)]
                R += [pk('mul', b + e, b + e, b + 4 + e) for e in (0, 2)]
            return R
        SUM = lambda k, q: [112, 116, 120, 56, 60, 148][2 * k + q]
        sums = lambda k: ['%s %s, %s, %s, %s' % (MF, vr(SUM(k, q), 4), vr(SEL + 2 - 2 * q, 4), prn(k, p), vr(SUM(k, q), 4) if p else '0') for p in range(8) for q in range(2)]
        def outs(k):
            R = []
            for q in range(2):
                b, d = FR(k, q), SUM(k, q)
                R += ['v_pk_fma_f32 v[%d:%d], v[%d:%d], v[%d:%d], v[%d:%d]' % (d + e, d + e + 1, d + e, d + e + 1, b + e, b + e + 1, b + 8 + e, b + 9 + e) for e in (0, 2)]
            for q in range(2):
                d = SUM(k, q)
                R += ['v_cvt_pk_bf16_f32 v%d, v%d, v%d' % (d + e, d + 2 * e, d + 2 * e + 1) for e in range(2)]
                if o.get('bp'): R += ['ds_bpermute_b32 v%d, v253, v%d' % (d + e, d + e) for e in range(2)]
            for q in range(2):
                d = SUM(k, q)
                R += ['buffer_store_dwordx2 v[%d:%d], v%d, %s, s%d offen offset:%d%s' % (d, d + 1, [vO, vO2][q], s4(S_A), [sOA, sOB, sOB][k], 96 * (k == 2), o.get('outfl', ''))]
            return R
        def mixin(a, m):
            R = []
            for k, l in enumerate(a):
                R.append(l)
                if k % 3 == 2 and m: R.append(m.pop(0))
            return R + m
        L += rd(0) + rd(1) + fl + self.stamp(28) + ['v_mov_b64 v[%d:%d], 0' % (SEL + 4, SEL + 5)] + rd(2)
        w = mixin(silu(0), sums(0)) + outs(0) + mixin(silu(1), sums(1)) + outs(1)
        if o.get('bp'):
            m1 = mixin(silu(1), sums(1))
            w = mixin(silu(0), sums(0)) + outs(0)[:-2] + m1[:24] + outs(0)[-2:] + m1[24:] + outs(1)
        pi = o.get('pi', 60)
        L += w[:pi] + self.poll_issue() + w[pi:]
        L += ['s_cmp_lt_u32 s%d, 2' % sW, 's_cbranch_scc0 %s' % self.lab('fin')] + self.stamp(29) + self.poll_check(10) + self.stamp(30)
        L += pl(2) + silu(2) + sums(2) + outs(2) + [self.lab('fin') + ':']
        pats = {'f': r'load_dwordx4.*(%s|%s)' % (re.escape(s4(S_H)), re.escape(s4(S_WD))), 'A': r'load_dwordx4.*' + re.escape(s4(S_ST)), 'ps': r'store.*' + re.escape(s4(S_P)),
                'pl': r'load.*' + re.escape(s4(S_P)), 'W': r'load.*' + re.escape(s4(S_WO)), 'cs': r'store.*' + re.escape(s4(S_ST)), 'x': r'load.*' + re.escape(s4(S_X))}
        for a in o.get('abl', []): L = [l for l in L if not re.search(pats[a], l[0] if isinstance(l, tuple) else l)]
        return L

    def place_vm2(self, S, lines, g0, sp):
        vg = self.opt.get('vgap', 2)
        def isvm(l):
            t = l[0] if isinstance(l, tuple) else l
            return t.startswith('buffer_')
        def near(g): return any(isvm(l) for y in range(g - vg + 1, g + vg) for l in S.fill.get(y, []))
        g, out, pend, fr = int(g0), [], [], 0
        for l in lines:
            if isinstance(l, tuple) and isinstance(l[0], int):
                g = max(g, l[0]); l = l[1]
            if not isvm(l):
                pend.append(l); continue
            k = 0
            while near(g) and k < 6: g += 1; k += 1
            if pend:
                S.at(g - 1, pend); pend = []
            S.at(g, l)
            out.append(g); fr += sp - int(sp); g += int(sp) + int(fr); fr -= int(fr)
        assert not pend
        return out

    def build(self, stats=None):
        o = self.opt
        lazy = o.get('lazy', 8)
        L = self.prologue()
        pre, S = self.gemms()
        L += self.hop('p') + self.stamp(12)
        L += [('@vmwait', 'dma0'), 's_barrier'] + self.stamp(1) + pre
        L += S.lines()
        L += self.stamp(3)
        L += self.p2_epilogue()
        L += self.stamp(4)
        out, st = process(L, stats=stats, lazy=lazy)
        oa, st = self.attention(st, stats, lazy)
        out += oa
        L = []
        if self.SO: L += ['s_waitcnt vmcnt(0)'] + self.stamp(13) + self.stamp(15, True) + self.stamps_out()
        L += ['s_endpgm ;@stop']
        out += process(L, st, stats=stats, lazy=lazy)[0]
        for blk in self.ool:
            out += process(blk, stats=stats)[0]
        out += [self.lab('end') + ':']
        if o.get('pg'):
            import pg
            out = pg.pads(out, self.lab, sW, True, o.get('al', 0))
        return out
```

```python
from asmlib import *
from fused import *
from attn import *

WS_P = 72 << 20
sFA, sFW, sFM, sWO, sRL, sRH, sCB, sP0, sDH = 34, [35, 36, 37, 38], 39, [40, 41, 42, 43], 44, 45, 46, 47, [None, 48, 49, 50]
S_H, S_WD, S_WO, S_P = S_B0, S_B1, S_B2, S_W
FACC, FA, FB = 140, 160, 172
vFW, vFR = 248, 249
V2, P2 = 160, 144
CXL = 32
ACCL = [64 + 8 * n for n in range(10)]
ACCH = [32, 40, 48, 56, 144, 152, 160, 168, 8, 16]
vW1, vW2, v8K, vMW, vMR, vR = 4, 5, 6, 7, 24, [30, 25]
NRING = 16
sM2, sK2 = sTI, sX
sU = [51, 54, 55, 62, 74, 88]
def tmp(lines, k):
    f = lambda l: [f(y) for y in l] if isinstance(l, list) else re.sub(r'\bs3\b', 's%d' % sU[k], l)
    return [f(l) for l in lines]

vTC = 252
AD = ['s_lshl_b32 s%d, s%d, 14' % (sM2, sW), 'v_add_u32 v%d, s%d, v%d' % (vMW, sM2, vA[0]), 'v_xor_b32 v%d, 0x4000, v%d' % (vMR, vMW), 's_xor_b32 s%d, s%d, 0x4000' % (sM2, sM2),
      's_add_u32 s%d, s%d, %d' % (sK2, sK, 144 * 1024), 'v_lshl_add_u32 v250, v1, 2, s%d' % sK2, 'v_xor_b32 v251, 0x1000, v250',
      'v_lshrrev_b32 v%d, 4, v1' % vTC, 'v_and_b32 v253, 15, v1', 'v_lshlrev_b32 v253, 7, v253', 'v_lshl_add_u32 v%d, v%d, 12, v253' % (vTC, vTC)]

class KB(KA):
    H16 = True
    MAXF = 12

    def f_setup(self):
        x, jj = sT0, sT1
        L = ['s_and_b32 s%d, s2, 7' % x, 's_bfe_u32 s%d, s2, 0x20003' % jj,
             's_and_b32 s3, s2, 1', 's_lshl_b32 s%d, s%d, 1' % (sCB, jj), 's_add_u32 s%d, s%d, s3' % (sCB, sCB),
             's_and_b32 s3, s2, 6', 's_lshl_b32 s%d, s%d, 3' % (sRL, sI), 's_sub_u32 s%d, 120, s%d' % (sRH, sRL),
             's_add_u32 s%d, s%d, s3' % (sRL, sRL), 's_xor_b32 s3, s3, 2', 's_add_u32 s%d, s%d, s3' % (sRH, sRH),
             's_cmp_lt_u32 s%d, 2' % sW, 's_cselect_b32 s%d, s%d, s%d' % (sFA, sRL, sRH), 's_and_b32 s3, s%d, 1' % sW,
             's_add_u32 s%d, s%d, s3' % (sFA, sFA), 's_mul_i32 s%d, s%d, %d' % (sFA, sFA, 54 * 1024),
             's_mul_i32 s%d, s%d, 5' % (sT2, sCB), 's_lshl_b32 s3, s%d, 2' % sW, 's_add_u32 s%d, s%d, s3' % (sT2, sT2), 's_mul_i32 s%d, s%d, 52' % (sFM, sW)]
        for k in range(4):
            L += ['s_add_u32 s3, s%d, %d' % (sFM, 13 * k), 's_lshr_b32 s3, s3, 6', 's_mul_i32 s3, s3, 35', 's_add_u32 s3, s3, s%d' % sT2, 's_lshl_b32 s%d, s3, 10' % sFW[k]]
        L += ['s_lshl_b32 s%d, s%d, 12' % (sFM, sW), 's_add_u32 s%d, s%d, 0x20000' % (sFM, sFM),
              'v_mov_b32 v%d, v%d' % (vFW, vA[0]), 'v_add_u32 v%d, 0x20000, v%d' % (vFR, vA[0])]
        L += srd_off(S_H, pWS, WS_H, 128 * 54 * 1024) + srd_off(S_WD, pWS, WS_W + (5 << 20), 54 * 40960)
        return self.keep_scc(L)
    def w_setup(self):
        x, jj = sT0, sT1
        L = ['s_bfe_u32 s%d, s2, 0x20003' % jj,
             's_lshl_b32 s%d, s%d, 2' % (sT2, sH), 's_add_u32 s%d, s%d, s%d' % (sT2, sT2, sW), 's_lshl_b32 s%d, s%d, 2' % (sT2, sT2), 's_add_u32 s%d, s%d, s%d' % (sT2, sT2, jj),
             's_mul_i32 s%d, s%d, 10240' % (sWO[0], sT2)]
        for hr in range(1, 4):
            L += ['s_add_u32 s3, s%d, %d' % (jj, hr), 's_and_b32 s3, s3, 3', 's_sub_u32 s3, s3, s%d' % jj, 's_lshl_b32 s%d, s3, 14' % sDH[hr],
                  's_mul_i32 s3, s%d, 10' % sDH[hr], 's_add_u32 s%d, s%d, s3' % (sWO[hr], sWO[0])]
        L += srd_off(S_WO, pWS, WS_W, 128 * 40960)
        return self.keep_scc(L)
    def p_setup(self):
        L = ['s_andn2_b32 s3, s2, 7', 's_add_u32 s3, s3, s%d' % sW, 's_add_u32 s3, s3, s%d' % sW, 's_mul_i32 s3, s3, 80', 's_and_b32 s%d, s2, 7' % sP0,
             's_add_u32 s3, s3, s%d' % sP0, 's_lshl_b32 s%d, s3, 10' % sP0]
        L += srd_off(S_P, pWS, WS_P, 256 * 81920)
        return self.keep_scc(L)

    def place_vm(self, S, lines, g0, sp, tag=None):
        gp, k, out = g0 - 1, 0, []
        nxt = g0
        for l in lines:
            t = l[0] if isinstance(l, tuple) else l
            if not t.startswith('buffer_'):
                while S.load.get(gp, 0) >= 8: gp += 1
                S.at(gp, l)
                nxt = max(nxt, gp + 1)
            else:
                g = nxt
                c = [y for y in range(g, g + self.opt.get('pairw', 2)) if S.load.get(y, 0) == 4]
                if c: g = c[0]
                while S.load.get(g, 0) > 4: g += 1
                S.at(g, (l, tag) if tag and not isinstance(l, tuple) else l, front=True)
                out.append(g); gp = g; nxt = g + sp
        return out

    def body2(self, mode, kind):
        o = self.opt
        first, second, last, hasf = kind == 'first', kind == 'second', kind == 'last', kind == 'loop'
        base = self.qk(mode, 0) + ([] if first else self.pv()) + self.qk(mode, 1) + self.pv(zero=first)
        b1 = 32 if first else 68
        ins = o.get('fpos', [47 + 6 * k for k in range(15)]) if hasf else []
        S = Stream(); G = {}; fg = []
        for n, l in enumerate(base):
            G[n] = S.n(); S.add(l)
            if n in ins:
                u = len(fg); fg.append(S.n())
                d = ar(FACC + 4 * (u % 5), 4)
                S.add('%s %s, %s, %s, %s' % (MF, d, ar(FB + 4 * (u % 5), 4), ar(FA + 4 * (u // 5), 4), d))
        tag = kind[0] + mode
        for b, u in ((0, 1), (b1, 0)):
            for m in range(8):
                if not (last and b): S.at(G[b + 4 * m + 3], self.kread(u, m & 1, m >> 1))
        BAR = 31 if first else o.get('abar', 39)
        tog = ['v_mov_b32 v%d, v%d' % (vV, vK), 'v_xor_b32 v%d, %s, v%d' % (vK, 's%d' % sX if mode == 'D' else '0x10000', vK)]
        if last: tog = tog[:1]
        e0 = self.exps(0)
        if first:
            S.flow(e0[:3], 28)
            S.at(31, e0[3:27] + tog + self.hookD(tag + '1') + self.hop('f') + ([('@vmwait', 'h'), 's_waitcnt lgkmcnt(0)'] if o.get('ep2', 0) >= 2 and not o.get('noh') else ['s_waitcnt vmcnt(0) lgkmcnt(0)']) + ['s_barrier'] + self.flag(4 if o.get('hn') else 3))
            e0 = e0[27:]
            fs = self.f_setup()
            g = S.flow(fs[:-8], 0)
            assert g < 28, g
        else:
            S.at(BAR, [('@vmwait', 'kv'), 's_waitcnt lgkmcnt(0)', 's_barrier'])
            S.load[BAR] = 8
            S.at(G[b1] - 2, tog)
            if mode == 'D':
                S.at(-1, self.hookD(tag + '0'))
                S.at(G[b1] - 1, self.hookD(tag + '1'))
            elif last:
                S.at(G[b1] - 1, ['s_branch %s' % self.lab('hmid'), self.lab('hmidr2') + ':'])
                S.load[G[b1] - 1] = 8
            else:
                S.at(G[b1] - 1, ['s_cmp_lg_u32 s%d, 0' % sEv, 's_cbranch_scc1 %s' % self.lab('hmid'), self.lab('hmidr') + ':'])
            c = self.cvts(1)
            vr_ = [self.vread(1, db) for db in range(8)]
            gfree = S.flow([x for k in range(8) for x in (vr_[k], c[2 * k], c[2 * k + 1])], 0)
        if hasf:
            S.at(S.n() - 1, ['s_sub_u32 s%d, s%d, 1' % (sN, sN), 's_cbranch_scc0 %s' % self.lab('top' + mode)])
            for u in range(15):
                g = BAR + 1 + u if u < 2 else fg[u - 2]
                S.at(g, 'ds_read_b128 %s, v%d offset:%d' % (ar(FB + 4 * (u % 5), 4), vFR, u * 1024))
            S.at(fg[13], 'v_xor_b32 v%d, 0x4000, v%d' % (vFR, vFR))
        fdma = ['s_mov_b32 m0, s%d' % sFM] + ['buffer_load_dwordx4 v%d, %s, s%d offen offset:%d sc1 lds' % (vFW, s4(S_WD), sFW[k], k * 1024) for k in range(4)] + \
               ['s_xor_b32 s%d, s%d, 0x4000' % (sFM, sFM), 'v_add_u32 v%d, %d, v%d' % (vFW, 3 * 40960, vFW)]
        fa = ['buffer_load_dwordx4 %s, v%d, %s, s%d offen offset:%d sc1' % (ar(FA + 4 * t, 4), vA[0], s4(S_H), sFA, t * 1024) for t in range(3)]
        sp = o['dsp'] if mode == 'S' else o.get('dspD', o['dsp'])
        vr0 = [self.vread(0, db) for db in range(8)]
        kvd = self.kv_dma(mode)
        if o.get('ep2', 0) >= 2:
            four = lambda v: ['buffer_load_dwordx4 v%d, %s, s88 offen offset:%d sc1 lds' % (v, s4(S_A), k * 1024) for k in range(4)]
            if first: kvd = kvd[5:] + ['s_add_u32 m0, s62, 0x18000', 's_add_u32 s88, s88, 0x10000'] + four(vD2)
        if first:
            self.place_vm(S, kvd, 34, sp, 'kv')
            ge = S.flow(e0, 32)
        elif last:
            g = S.flow(self.w_setup() + ['v_add_u32 v%d, 0x2000, v%d' % (v8K, vA[0]), 's_mul_i32 s%d, s%d, 10240' % (sM, sW), 's_lshl_b32 s%d, s%d, 12' % (sK, sW)] + AD[:-4 if 'c' in o.get('tl', '') else None], gfree)
            assert g < BAR, g
            dm = []
            for hr in range(3):
                for n in range(10 if hr < 2 else 3):
                    if n % 4 == 0:
                        dm.append('s_add_u32 m0, s%d, %d' % (sM, 0x10000 + hr * 40960 + n * 1024) if hr < 2 else 's_add_u32 m0, s%d, %d' % (sK, 144 * 1024))
                    dm.append((self.wo_dma(hr, n), 'wo%d' % hr))
            if o.get('f6'):
                S.at(BAR if o['f6'] == 1 else -1, ['s_cmp_eq_u32 s%d, 7' % sI, 's_cselect_b32 s3, 5, 6', 'v_add_u32 v%d, s3, v%d' % (vT0, vBASE), self.flag(0)[1]])
            gs = self.place_vm(S, dm, BAR + 2, sp)
            k = max(k for k, g in enumerate(gs) if g < G[b1] - 1)
            assert k < 9
            S.fill[gs[k]] = [(l[0], 'pre') if isinstance(l, tuple) and l[0].startswith('buffer_') else l for l in S.fill[gs[k]]]
            ge = S.flow(e0, G[28] + 1)
        else:
            gs = self.place_vm(S, fdma + kvd, BAR + 2, sp, 'kv')
            g = gs[-1] + sp
            if second:
                assert gs[-1] < o.get('gb', 124), gs
                S.at(BAR - 1, self.poll_check(3 if o.get('hn') else 2))
                g = o.get('gb', 124)
                S.at(g - 1, self.poll_check(4 if o.get('hn') else 3))
                S.flow(['v_accvgpr_write_b32 a%d, 0' % (FACC + e) for e in range(20)], gfree, gmax=28)
            for t in range(2):
                if hasf: g = max(g, fg[5 * t + 4])
                g = self.place_vm(S, fa[t:t + 1], g, sp)[0] + sp
            if hasf: S.flow([fa[2], 's_add_u32 s%d, s%d, 3072' % (sFA, sFA)], gfree)
            ge = S.flow(e0, G[28] + 1)
        if not last:
            g = S.flow(self.exps(1), G[b1 + 28] + 1)
            assert g < S.n(), g
        c = self.cvts(0)
        g = G[b1 + 30] if not last else G[b1 + 28]
        for l in reversed(c):
            while S.load.get(g, 0) + 4 > 8: g -= 1
            S.at(g, l, front=True)
        assert (g > ge and g >= G[b1]) or first, (g, ge)
        gl = S.flow(vr0, G[b1], gmax=G[b1 + 30])
        if first:
            pa = ['s_lshl_b32 s3, s%d, 6' % sW, 'v_add_lshl_u32 v%d, s3, v1, 7' % vPA]
            S.flow(pa + fs[-8:] + [(o.get('gp2', 90), self.poll_issue())], gl)
        if second:
            pa = ['s_lshl_b32 s3, s%d, 5' % sI, 'v_and_b32 v%d, 31, v1' % vPA, 'v_add_lshl_u32 v%d, s3, v%d, 7' % (vPA, vPA)]
            gg = S.flow(self.epoch_out() + ['s_lshl_b32 s3, s2, 5', 's_add_u32 s3, s3, s%d' % sW, 's_lshl_b32 s3, s3, 2', 's_add_u32 s3, s3, 16',
                                            'v_mov_b32 v%d, 0x7fff0000' % vFL, 'v_writelane_b32 v%d, s3, 0' % vFL] + pa, BAR + 1, gmax=80)
            gg = S.flow(self.poll_issue(), max(gg, o.get('gb', 124) - o.get('gp3', 44)), cap=12)
            assert gg < o.get('gb', 124) - 1
        if last:
            gl = S.flow(['ds_read_b128 %s, v%d offset:%d' % (ar(V2 + db * 4, 4), vV, 16384 + (8 + db) * 1024) for db in range(8)], gl, gmax=G[b1 + 31])
        if o.get('verbose'): print(tag, 'exp0 end', ge - G[b1], 'cvt start', g - G[b1], 'rd end', gl - G[b1], 'over', [(k, v) for k, v in sorted(S.load.items()) if v > 8])
        given = S if last else S.lines()
        return given

    def wo_dma(self, hr, n):
        return 'buffer_load_dwordx4 v%d, %s, s%d offen offset:%d sc1 lds' % ([vA[0], vA[1], v8K][n >> 2], s4(S_WO), sWO[hr], (n & 3) * 1024)
    def wo_lds(self, hr, ds, n):
        if hr < 2: a = 64 + (4 * hr + ds) * 10 + n
        elif hr == 2 and n < 4: a = 144 + ds * 4 + n
        elif hr == 2: a = (ds ^ 1) * 16 + n - 4
        else: a = (ds ^ 1) * 16 + 6 + n
        return [vA[0], vW1, vW2][a >> 6], (a & 63) * 1024

    def check(self, slow, t):
        return ['v_add_f32 v%d, v%d, v%d' % (t, L0, L0 + 4), 'v_cmp_gt_f32 vcc, 0x5f800000, v%d' % t, 's_cmp_eq_u64 vcc, -1',
                's_cbranch_scc0 %s' % self.lab(slow), self.lab(slow + 'r') + ':']
    def finalizeL(self):
        L = self.check('slowL', L0 + 2)
        L += ['v_rcp_f32 v%d, v%d' % (L0, L0), 'v_rcp_f32 v%d, v%d' % (L0 + 4, L0 + 4), 's_mov_b32 s3, s%d' % sCtL]
        for ds in range(4):
            if ds == 2: L.append('s_add_u32 s3, s3, 0x2000')
            for q in range(2):
                b, d = O0 + (ds * 2 + q) * 8, CXL + (ds * 2 + q) * 4
                L += ['v_pk_mul_f32 v[%d:%d], v[%d:%d], v[%d:%d] op_sel_hi:[1,0]' % (b + 2 * e, b + 2 * e + 1, b + 2 * e, b + 2 * e + 1, L0 + 4 * q, L0 + 4 * q + 1) for e in range(4)]
                L += ['v_cvt_pk_bf16_f32 v%d, v%d, v%d' % (d + e, b + 2 * e, b + 2 * e + 1) for e in range(4)]
                L += ['buffer_store_dwordx4 v[%d:%d], v%d, %s, s3 offen offset:%d sc1' % (d, d + 3, vA[ds & 1], s4(S_ST), q * 1024)]
        return L

    def slow2(self, name):
        lb = lambda s: self.lab(name + s)
        hi = name == 'slowH'
        C = 144
        SS, PP, M = (160, 8, 16) if hi else (96, 128, 136)
        Q = (lambda q, ds: ar(QP + (q * 4 + ds) * 4, 4)) if hi else (lambda q, ds: vr(QL + (q * 4 + ds) * 4, 4))
        sO, sJ = sSO, sSpin
        B = [lb('') + ':', 's_waitcnt vmcnt(0) lgkmcnt(0)', 's_lshl_b32 s%d, s%d, 2' % (sRho, sI)]
        if hi: B += ['s_sub_u32 s%d, 60, s%d' % (sRho, sRho), 's_xor_b32 s3, s%d, 1' % sW, 's_add_u32 s%d, s%d, s3' % (sRho, sRho)]
        else: B += ['s_add_u32 s%d, s%d, s%d' % (sRho, sRho, sW)]
        ld = ['buffer_load_dwordx4 %s, v%d, %s, s%d offen offset:%d sc1' % (ar(VF + 4 * f, 4), vA[f >> 2], s4(S_A), sO, (f & 3) * 1024) for f in range(8)]
        def head(n):
            return ['s_mov_b32 s%d, 0' % sJ, lb(n) + ':', 's_lshr_b32 s%d, s%d, 1' % (sO, sJ), 's_lshl_b32 s%d, s%d, 15' % (sO, sO), 's_and_b32 s3, s%d, 1' % sJ,
                    's_lshl_b32 s3, s3, 13', 's_add_u32 s%d, s%d, s3' % (sO, sO)] + ld
        def mask(n):
            return ['s_cmp_eq_u32 s%d, s%d' % (sJ, sRho), 's_cbranch_scc0 %s' % lb(n)] + self.tri(C) + [lb(n) + ':', 's_nop 1']
        qk = []
        for ds in range(4):
            for kb in range(2):
                for q in range(2):
                    d = vr(SS + (q * 2 + kb) * 4, 4)
                    qk.append('%s %s, %s, %s, %s' % (MF, d, ar(VF + (kb * 4 + ds) * 4, 4), Q(q, ds), vr(C + (q * 2 + kb) * 4, 4) if ds == 0 else d))
        def tail(n):
            return ['s_add_u32 s%d, s%d, 1' % (sJ, sJ), 's_cmp_le_u32 s%d, s%d' % (sJ, sRho), 's_nop 7', 's_cbranch_scc1 %s' % lb(n)]
        B += ['s_nop 7', 's_nop 7']
        B += ['v_mov_b32 v%d, 0' % (C + e) for e in range(16)] + ['v_mov_b32 v%d, v%d' % (M + q, vBig) for q in range(2)]
        B += head('1') + mask('1m') + qk
        for q in range(2):
            B += ['v_max3_f32 v%d, v%d, v%d, v%d' % (M + q, M + q, SS + 8 * q + 2 * e, SS + 8 * q + 2 * e + 1) for e in range(4)]
        B += tail('1')
        for q in range(2):
            for sw in ('16', '32'):
                B += ['v_mov_b32 v%d, v%d' % (M + 2, M + q), 'v_permlane%s_swap_b32 v%d, v%d' % (sw, M + q, M + 2), 'v_max_f32 v%d, v%d, v%d' % (M + q, M + q, M + 2)]
            B += ['v_sub_f32 v%d, 0, v%d' % (C + 8 * q + e, M + q) for e in range(8)]
        B += self.zero0()
        if hi:
            B += ['ds_write_b128 v%d, v[%d:%d] offset:%d' % (vMR, O0, O0 + 3, t * 1024) for t in range(16)] + ['s_waitcnt lgkmcnt(0)']
        B += head('2') + mask('2m') + qk + ['s_add_u32 s%d, s%d, 0x4000' % (sO, sO)]
        B += ['v_exp_f32 v%d, v%d' % (SS + e, SS + e) for e in range(16)] + ld
        B += ['v_cvt_pk_bf16_f32 v%d, v%d, v%d' % (PP + e, SS + 2 * e, SS + 2 * e + 1) for e in range(8)]
        B += [l.replace(vr(PB, 4), vr(PP, 4)).replace(vr(PB + 4, 4), vr(PP + 4, 4)) for l in self.pv(qs=(0, 1))]
        B += tail('2') + ['s_nop 7', 's_branch %s' % lb('r')]
        self.ool.append(B)

    def attention(self, st, stats, lazy):
        out = []
        lb = self.lab
        def run(lines, st): return process(lines, st, stats=stats, lazy=lazy)
        def ok(o, *sts):
            for s in sts:
                p = process(o, s, pad=False)[0]
                if p != o:
                    k = next(k for k in range(len(o)) if p[k] != o[k])
                    print('\n'.join(p[max(0, k - 30):k + 5])); print(s.lg, s.vm)
                assert p == o
                assert [t for t, _ in s.vm][-2:] == [None] * 2, s.vm
        def loop(lines, st):
            o1, st1 = process(lines, st, lazy=lazy); o2, st2 = run(lines, st1)
            assert st1.sig() == st2.sig()
            ok(o2, st, st2)
            return o2, st2
        lastD = ['s_mov_b32 s%d, 0x10000' % sTI, 's_mov_b32 s%d, s%d' % (sX, sXe)]
        o, st = run(self.attn_pro() + self.stamp(16) + self.body2('D', 'first') +
                    ['s_cmp_eq_u32 s%d, 0' % sI] + [l.replace('s_mov', 's_cmov') for l in lastD] + self.body2('D', 'second') +
                    ['s_waitcnt lgkmcnt(0)', 's_sub_u32 s%d, s%d, 2' % (sN, sN), 's_cbranch_scc1 %s' % lb('entS')], st); out += o
        st1 = st
        oD, st = loop([lb('topD') + ':'] + self.body2('D', 'loop'), st); out += oD
        post = ['s_cmp_eq_u32 s%d, 0x8000' % sTI] + lastD + ['s_mov_b32 s%d, 0' % sN, 's_cbranch_scc1 %s' % lb('topD')]
        o, st = run(post, st); out += o
        ok(oD, st)
        ent = [lb('entS') + ':'] + self.stamp(17) + ['s_mov_b32 s%d, 1' % sEv, 's_lshl_b32 s3, s%d, 1' % sI, 's_sub_u32 s%d, 13, s3' % sN, 's_cbranch_scc1 %s' % lb('postS')]
        o, st = run(ent, st); out += o
        st1 = process(o, st1)[1]
        stD = st
        oS, st = loop([lb('topS') + ':'] + self.body2('S', 'loop'), st); out += oS
        ok(oS, st1)
        post = [lb('postS') + ':', 's_or_b32 s%d, s%d, 2' % (sEv, sEv), 's_cmp_eq_u32 s%d, 2' % sW, 's_cbranch_scc0 %s' % lb('hs0'), lb('topL') + ':']
        self.ool.append([lb('hs0') + ':',
                         's_cmp_eq_u32 s%d, 1' % sW, 's_cbranch_scc1 %s' % lb('hs0a'),
                         's_cmp_eq_u32 s%d, 3' % sW, 's_cbranch_scc1 %s' % lb('hs0b')] + self.tri(CG[1]) + ['s_nop 0', 's_branch %s' % lb('topL'),
                         lb('hs0a') + ':'] + self.allm(CG[1]) + self.allm(CP) + ['s_nop 0', 's_branch %s' % lb('topL'),
                         lb('hs0b') + ':'] + self.tri(CP) + ['s_nop 0', 's_branch %s' % lb('topL')])
        self.ool.append([lb('hmid') + ':', 's_bitcmp1_b32 s%d, 0' % sEv, 's_cbranch_scc0 %s' % lb('hm1'), 's_nop 7'] + self.finalizeL() + self.zero0() +
                        ['s_bitcmp1_b32 s%d, 1' % sEv, 's_mov_b32 s%d, 0' % sEv, 's_cbranch_scc0 %s' % lb('hmidr'),
                         lb('hm1') + ':', 's_cmp_eq_u32 s%d, 0' % sW, 's_cbranch_scc1 %s' % lb('hm2'),
                         's_cmp_eq_u32 s%d, 3' % sW, 's_cbranch_scc0 %s' % lb('hmidr2')] + self.tri(CG[1]) + self.allm(CP) + ['s_nop 0', 's_branch %s' % lb('hmidr2'),
                         lb('hm2') + ':'] + self.allm(CG[1]) + self.tri(CP) + ['s_nop 0', 's_branch %s' % lb('hmidr2')])
        self.slow2('slowL'); self.slow2('slowH')
        o, st = run(post + self.finish(self.body2('S', 'last')), st); out += o
        if not self.opt.get('abl'): ok(o, stD)
        return out, st

    def areg(self, part, hr, ds, q):
        f = ds * 2 + q
        if hr == 0: return vr(CXL + 4 * f, 4) if part == 0 else vr(O0 + 8 * f, 4)
        if part == 0: return ar([160, 64, 96][hr - 1] + 4 * f, 4)
        return ar([192, 224][hr - 1] + 4 * f, 4) if hr < 3 else vr(O0 + 4 + 8 * f, 4)
    def freg(self, k):
        return ar(64 + 4 * k, 4) if k < 16 else ar(160 + 4 * (k - 16), 4) if k < 24 else vr(O0 + 8 * (k - 24), 4)

    def finish(self, S):
        o = self.opt
        E = S.n()
        sp = o.get('wsp', 5.5)
        for l in self.pv(qs=(2, 3)) + self.pv(qs=(0, 1)):
            for q in range(4): l = l.replace(vr(PB + 4 * q, 4), vr(P2 + 4 * q, 4))
            for db in range(8): l = l.replace(', ' + ar(VF + 4 * db, 4) + ', v', ', ' + ar(V2 + 4 * db, 4) + ', v')
            S.add(l)
        allk = lambda *h: [(hr, ds) for hr in h for ds in range(4)]
        mix = o.get('mix', 'HLLHLLHH')
        seg = [('k', 0, allk(0))] + [('k', int(c == 'H'), [(int(c == 'L'), mix[:k].count(c))]) for k, c in enumerate(mix)]
        seg += [('c', 0, allk(2, 3))] if o.get('lc', 1) == 2 else [('k', 0, allk(2)), ('c', 0, allk(3))]
        hk = o.get('hk', 8)
        seg += [('k', 1, allk(1, 2, 3)[:hk], (0, 1, 2)), ('c', 1, allk(1, 2, 3)[hk:], (0, 1, 2)), ('c', 1, allk(1, 2, 3), (3, 4))]
        uses = []
        needA = {}
        lastA = {}
        done = {}
        seen = set()
        for kind, part, ks, *cs in seg:
            cs = cs[0] if cs else range(5)
            order = [(hr, ds, n) for hr, ds in ks for c in cs for n in (c, 5 + c)] if kind == 'k' else [(hr, ds, n) for c in cs for hr, ds in ks for n in (c, 5 + c)]
            for hr, ds, n in order:
                u = len(uses)
                uses.append((S.n(), hr, ds, n))
                needA.setdefault((part, hr, ds), S.n())
                for q in ((0, 1) if u % 2 == 0 else (1, 0)):
                    d = vr((ACCH if part else ACCL)[n] + 4 * q, 4)
                    S.add('%s %s, %s, %s, %s' % (MF, d, ar(4 * (u % NRING), 4), self.areg(part, hr, ds, q), d if (part, n) in seen else '0'))
                seen.add((part, n))
                done[(part, n)] = lastA[(part, hr, ds)] = S.n() - 1
        assert len(uses) == 320
        F0 = S.n()
        facc = lambda j, n: ar(FACC + 4 * n, 4) if j == 0 else vr(64 + (j - 1) * 20 + 4 * n, 4)
        fdone = {}
        for n in range(5):
            for t in range(3):
                for j in range(4):
                    d = facc(j, n)
                    fdone[(j, n)] = S.n()
                    S.add('%s %s, %s, %s, %s' % (MF, d, self.freg(9 * t + 4 + n), self.freg(9 * t + j), '0' if t == 0 and j else d))
        bar = lambda g, *tags: S.at(g, [('@vmwait', t) for t in tags] + ['s_waitcnt lgkmcnt(0)', 's_barrier'])
        LA = o.get('wla', 16)
        B1 = E - 1
        bar(B1, 'wo0'); S.load[B1] = 8
        first = lambda p: min(g for g, hr, ds, n in uses if p(hr))
        B3, B4a, B4 = [first(lambda h: h == k) - LA - 1 for k in (1, 2, 3)]
        if o.get('lc', 1) == 2: B4 = B4a
        else: S.at(B4a, [('@vmwait', 'wo2'), 's_barrier']); S.load[B4a] = 8
        S.at(B4, [('@vmwait', 'wo3'), 's_barrier']); S.load[B4] = 8
        g6 = E + o.get('g6', 0)
        touch = lambda s: ['buffer_load_dword a%d, v%d, %s, s%d offen sc1' % (135, vTC, s4(S_ST), s)] if o.get('touch', 1) & (1 if s == sCtH else 3) else []
        S.at(g6, [('@vmwait', 'pre')] + self.flag(6))
        wr = []
        gw = E + 6
        for db in range(8):
            for q in range(2):
                t = (db >> 1) * 4 + q * 2 + (db & 1)
                wr.append((max(int(gw), E + 2 + 2 * db + 4), 'ds_write_b128 v%d, %s offset:%d' % (vMW, ar(O1 + 4 * t, 4), t * 1024)))
                gw += o.get('msp', 3.5)
        gmw = S.flow(wr, E + 4)
        gt6 = S.flow(touch(sCtL) + [(E + 9, 'ds_write_b32 v251, a%d offset:3072' % L1), (E + 19, 'ds_write_b32 v251, a%d offset:3328' % (L1 + 4))], E + 6)
        for u, (g, hr, ds, n) in enumerate(uses):
            v, off = self.wo_lds(hr, ds, n)
            S.at(g - LA, 'ds_read_b128 %s, v%d offset:%d' % (ar(4 * (u % NRING), 4), v, off))
        ex = lambda q: ['v_exp_f32 v%d, v%d' % (SB[1] + 8 * q + e, SB[1] + 8 * q + e) for e in range(8)]
        cv = lambda q: ['v_cvt_pk_bf16_f32 v%d, v%d, v%d' % (P2 + e, SB[1] + 2 * e, SB[1] + 2 * e + 1) for e in range(4 * q, 4 * q + 4)]
        g = S.flow(ex(2)[:4] + ex(3) + ex(2)[4:] + cv(3) + cv(2), E - 36 - 3)
        assert g < E - 1, g
        ad = ['v_add_u32 v%d, 0x10000, v%d' % (vW1, vA[0]), 'v_add_u32 v%d, 0x20000, v%d' % (vW2, vA[0])]
        pa = ['s_andn2_b32 s3, s2, 24', 's_lshl_b32 s3, s3, 5', 's_add_u32 s3, s3, s%d' % sW, 's_lshl_b32 s3, s3, 2', 's_add_u32 s3, s3, 16',
              'v_and_b32 v%d, 3, v1' % vPA, 'v_lshl_add_u32 v%d, v%d, 10, s3' % (vPA, vPA)]
        g = S.flow(ex(0) + cv(0) + ex(1) + cv(1), g)
        assert g < E + 18, g - E
        tl = o.get('tl', '')
        T = []
        if 'x' in tl:
            T += srd(S_X, pX, pX + 1, 2048 * 1280) + ['s_cmp_lt_u32 s%d, 2' % sW, 's_cselect_b32 s51, s%d, s%d' % (sRL, sRH), 's_and_b32 s54, s%d, 1' % sW, 's_add_u32 s51, s51, s54',
                  's_lshl_b32 s51, s51, 7', 's_add_u32 s51, s51, s%d' % sCB, 's_mul_i32 s51, s51, 160', 'v_and_b32 v254, 15, v1', 'v_mul_u32_u24 v254, 1280, v254',
                  'v_lshrrev_b32 v255, 4, v1', 'v_mad_u32_u24 v254, v255, 52, v254', 'buffer_load_dword v255, v254, %s, s51 offen' % s4(S_X)]
        if 'h' in tl:
            T += ['s_bfe_u32 s54, s2, 0x20003', 's_cmp_lt_u32 s54, 2', 's_cselect_b32 s51, s%d, s%d' % (sRL, sRH), 's_and_b32 s54, s54, 1', 's_add_u32 s51, s51, s54',
                  's_mul_i32 s51, s51, 18', 's_add_u32 s51, s51, s%d' % sW, 's_add_u32 s51, s51, 14', 's_mul_i32 s51, s51, 3072', 'v_mul_u32_u24 v254, 48, v1',
                  'buffer_load_dword v248, v254, %s, s51 offen sc1' % s4(S_H)]
        if 'd' in tl:
            T += ['s_mul_i32 s54, s%d, 11' % sI, 's_lshr_b32 s54, s54, 5', 's_sub_u32 s54, s%d, s54' % sW, 's_mul_i32 s54, s54, 3', 's_add_u32 s54, s54, s%d' % sI, 's_add_u32 s54, s54, 42',
                  's_lshl_b32 s54, s54, 3', 's_add_u32 s54, s54, s%d' % sCB, 's_mul_i32 s54, s54, 5120', 'v_mul_u32_u24 v254, 80, v1',
                  'buffer_load_dword v249, v254, %s, s54 offen sc1' % s4(S_WD)]
        if 'c' in tl: T += AD[-4:] + ['buffer_load_dword v253, v%d, %s, s%d offen sc1' % (vTC, s4(S_ST), sCtL)]
        S.at(-1, T)
        if o.get('f6') == 2:
            S.at(-1, tmp(pa, 0)); pa = []
        gp = S.flow(ad + tmp(pa, 0), E - 36)
        assert gp < E + 36 - LA - 1, gp - E
        g = gmw
        B2 = max(g + o.get('b2d', 8), E + 37)
        while S.load.get(B2, 0): B2 += 1
        if o.get('b3'):
            bar(B2); S.at(B3, [('@vmwait', 'wo1'), 's_barrier']); S.load[B3] = 8
        else: bar(B2, 'wo1')
        assert gt6 <= B2 + 6 and B2 < B3
        S.at(B2, ['ds_read_b32 v%d, v250 offset:%d' % (L0 + 1 + 4 * q, 3072 + q * 256) for q in range(2)])
        g = B2 + 6
        S.at(g, ['v_add_f32 v%d, v%d, v%d' % (L0 + 4 * q, L0 + 4 * q, L0 + 1 + 4 * q) for q in range(2)] + self.check('slowH', L0 + 2))
        X = lambda f: 240 + 8 * (f & 1)
        rdx = lambda f: ['ds_read_b128 v[%d:%d], v%d offset:%d' % (X(f) + 4 * k, X(f) + 4 * k + 3, vMR, (2 * f + k) * 1024) for k in range(2)]
        vTC2 = vMW
        g = S.flow(['v_mov_b32 v%d, v%d' % (vTC2, vTC)] + rdx(1) + ['v_rcp_f32 v%d, v%d' % (vR[q], L0 + 4 * q) for q in range(2)] + rdx(0), g + 1)
        g += 4
        freed = {}
        cap = o.get('fcap', 8)
        for f in (1, 0, 3, 2, 5, 4, 7, 6):
            b, ds, q = O0 + 8 * f, f >> 1, f & 1
            g = S.flow(['v_add_f32 v%d, v%d, v%d' % (b + e, b + e, X(f) + e) for e in range(8)], g, cap=cap)
            freed[f] = g
            it = (rdx(f + 2) if f < 6 else []) + ['v_mul_f32 v%d, v%d, v%d' % (b + e, b + e, vR[q]) for e in range(8)]
            it += ['v_cvt_pk_bf16_f32 v%d, v%d, v%d' % (b + e, b + 2 * e, b + 2 * e + 1) for e in range(4)]
            g = S.flow(it, g, cap=cap)
            assert g < needA[(1, 0, ds)] - 1, (f, g, needA[(1, 0, ds)])
            if f == 5: g = S.flow(['s_add_u32 s%d, s%d, 0x2000' % (sT2, sCtH)], g, cap=cap)
            g = S.flow([('buffer_store_dwordx4 v[%d:%d], v%d, %s, s%d offen offset:%d sc1' % (b, b + 3, vA[ds & 1], s4(S_ST), sCtH if ds < 2 else sT2, q * 1024), 'cx')], g, cap=cap)
        gfin = g
        def aloads(part):
            it = []
            for hr in range(1, 4):
                for ds in range(4):
                    if ds == 0: it.append('s_add_u32 s%d, s%d, s%d' % (sT0, sCtH if part else sCtL, sDH[hr]))
                    if ds == 2: it.append('s_add_u32 s%d, s%d, 0x2000' % (sT0, sT0))
                    it += ['buffer_load_dwordx4 %s, v%d, %s, s%d offen offset:%d sc1' % (self.areg(part, hr, ds, q), vA[ds & 1], s4(S_ST), sT0, q * 1024) for q in range(2)]
            return it
        def chk(gs, part):
            sl = [needA[(part, 1 + k // 8, (k >> 1) & 3)] - g for k, g in enumerate(gs)]
            if o.get('verbose'): print('A slack', part, sl)
            assert min(sl) > 0
        c6 = E + o.get('c6', 60)
        assert (gp < c6 - o.get('pd', 30) or not pa) and c6 >= E + 36
        S.at(c6 - o.get('pd6', o.get('pd', 30)), self.poll_issue())
        S.at(c6, self.stamp(19) + self.hop('c6') + self.poll_check(6) + self.stamp(20))
        al = aloads(0)
        w2, w3 = [], []
        for a in range(16):
            hr, n = (2, 4 + a) if a < 6 else (3, a - 6)
            dm = w2 if a < 6 else w3
            if n % 4 == 0: dm.append('s_add_u32 m0, s%d, %d' % (sM2, a * 1024))
            dm.append((freed[a >> 1] + 1, (self.wo_dma(hr, n), 'wo%d' % hr)))
        q = al[:10] + [(B2 + 8, 's_mov_b32 m0, s%d' % sK2), (self.wo_dma(2, 3), 'wo2')] + al[10:20] + w2 + w3 + al[20:]
        gs = self.place_vm2(S, q, c6 + 1, sp)
        chk(gs[:8] + gs[9:17] + gs[33:], 0)
        if o.get('verbose'): print('E', E, 'B2', B2 - E, 'fin end', gfin - E, 'c6', c6 - E, 'vm', [x - E for x in gs], 'B4', B4a - E, B4 - E, 'F0', F0 - E)
        assert gs[22] < B4a and gs[32] < B4
        gAL, gW3 = gs[-1], gs[32]
        S.flow(tmp(self.p_setup(), 4), gfin + 1)
        g7 = gfin + o.get('g7', 75)
        S.flow([[('@vmwait', 'cx')] + self.flag(7)] + [l.replace('v%d,' % vTC, 'v%d,' % vTC2) for l in touch(sCtH)], g7)
        c7 = E + o.get('c7', 350)
        assert c7 > gAL
        assert g7 < c7 - o.get('pd', 30)
        S.at(c7 - o.get('pd7', o.get('pd', 30)), self.poll_issue())
        S.at(c7, self.stamp(21) + self.hop('c7') + self.poll_check(7) + self.stamp(22))
        gs = self.place_vm2(S, aloads(1), c7 + 1, sp)
        chk(gs, 1)
        gAH = gs[-1]
        gst = {}
        for part in range(2):
            g = 0
            for n in sorted(range(10), key=lambda n: done[(part, n)]):
                b = (ACCH if part else ACCL)[n]
                t = part + (part and n % 5 > 2)
                g = S.flow(['v_cvt_pk_bf16_f32 v%d, v%d, v%d' % (b + e, b + 2 * e, b + 2 * e + 1) for e in range(4)] +
                           ['s_add_u32 s%d, s%d, %d' % (sT1, sP0, (n // 5) * 81920 + (part * 5 + n % 5) * 8192),
                            ('buffer_store_dwordx4 v[%d:%d], v%d, %s, s%d offen sc1' % (b, b + 3, vA[0], s4(S_P), sT1), 'p%d' % t)], max(g, done[(part, n)] + 4))
                gst[t] = g
        assert gst[0] < min(done[(1, n)] for n in range(10))
        g8 = S.flow([[('@vmwait', 'p0')] + self.flag(8)], gst[0] + o.get('g8', 80))
        g9 = S.flow([[('@vmwait', 'p1')] + self.flag(9)], gst[1] + o.get('g9', 75))
        sJ = sFW
        su = ['s_mul_i32 s%d, s%d, 3' % (sFM, sW), 's_add_u32 s%d, s%d, 42' % (sFM, sFM)]
        for j in range(4):
            su += ['s_add_u32 s3, s%d, %d' % (sW, j), 's_bitcmp1_b32 s3, 1', 's_cselect_b32 s%d, s%d, s%d' % (sJ[j], sRH, sRL), 's_and_b32 s3, s3, 1',
                   's_add_u32 s3, s3, s%d' % sJ[j], 's_mul_i32 s3, s3, 54', 's_add_u32 s3, s3, s%d' % sFM, 's_lshl_b32 s%d, s3, 10' % sJ[j]]
        su += ['s_lshl_b32 s%d, s%d, 3' % (sFM, sFM), 's_add_u32 s%d, s%d, s%d' % (sFM, sFM, sCB), 's_mul_i32 s%d, s%d, 5120' % (sFM, sFM)]
        g = S.flow(tmp(self.keep_scc(su), 1), c7 + 2)
        it = []
        for t in range(3):
            it += ['buffer_load_dwordx4 %s, v%d, %s, s%d offen offset:%d sc1' % (self.freg(9 * t + j), vA[0], s4(S_H), sJ[j], t * 1024) for j in range(4)]
            it += ['buffer_load_dwordx4 %s, v%d, %s, s%d offen offset:%d sc1' % (self.freg(9 * t + 4 + n), vA[n >> 2], s4(S_WD), sFM, (n & 3) * 1024) for n in range(5)]
            if t < 2: it.append('s_add_u32 s%d, s%d, 40960' % (sFM, sFM))
        gl = max(max(v for (p, hr, ds), v in lastA.items() if p == 0 or hr == 0) + 1, gAH + sp + (6 * o.get('xs', 3) if o.get('xl') == 1 else 0), g + 1)
        gs = self.place_vm2(S, it, gl, o.get('fsp', sp))
        if o.get('verbose'): print('g7', g7 - E, 'c7', c7 - E, 'AH end', gAH - E, 'pst', gst[0] - E, gst[1] - E, 'fl', gs[0] - E, gs[-1] - E)
        assert gs[-1] < F0 + 20
        gF = gs[-1]
        sPA, sPB, sOA, sOB = sWO
        vO, vO2 = 6, 24
        su = ['s_mul_i32 s%d, s2, 10' % sPB, 's_add_u32 s%d, s%d, s%d' % (sPA, sPB, sW), 's_lshl_b32 s%d, s%d, 13' % (sPA, sPA),
              's_mul_i32 s3, s%d, 5' % sCB, 's_add_u32 s3, s3, s%d' % sW, 's_lshl_b32 s3, s3, 5', 's_mul_i32 s%d, s%d, 20480' % (sOA, sRL), 's_mul_i32 s%d, s%d, 20480' % (sOB, sRH),
              's_add_u32 s%d, s%d, s3' % (sOA, sOA), 's_add_u32 s%d, s%d, s3' % (sOB, sOB), 's_add_u32 s3, s%d, 32' % sOA,
              's_cmp_eq_u32 s%d, 3' % sW, 's_cselect_b32 s%d, s3, s%d' % (sOB, sOB), 's_cselect_b32 s3, 1, 5', 's_lshl_b32 s3, s3, 13', 's_add_u32 s%d, s%d, s3' % (sPB, sPA),
              'v_and_b32 v%d, 15, v1' % vO, 'v_mul_u32_u24 v%d, 1280, v%d' % (vO, vO), 'v_lshrrev_b32 v%d, 4, v1' % vO2, 'v_lshl_add_u32 v%d, v%d, 3, v%d' % (vO, vO2, vO),
              'v_add_u32 v%d, 20480, v%d' % (vO2, vO)]
        if o.get('bp'):
            su = su[:-5] + ['v_lshrrev_b32 v253, 2, v1', 'v_mul_u32_u24 v%d, 1280, v253' % vO, 'v_and_b32 v%d, 3, v1' % vO2, 'v_lshl_add_u32 v%d, v%d, 3, v%d' % (vO, vO2, vO),
                            'v_lshl_add_u32 v253, v%d, 4, v253' % vO2, 'v_lshlrev_b32 v253, 2, v253', 'v_add_u32 v%d, 20480, v%d' % (vO2, vO),
                            'v_and_b32 v254, 15, v1', 'v_lshrrev_b32 v255, 4, v1', 'v_lshl_add_u32 v254, v254, 2, v255', 'v_lshlrev_b32 v254, 2, v254']
        su += srd(S_X, pX, pX + 1, 2048 * 1280) + srd(S_A, pOUT, pOUT + 1, 2048 * 1280)
        g = S.flow(tmp(self.keep_scc(su), 2), gW3 + 1)
        XR = 240
        xl = ['buffer_load_dwordx2 v[%d:%d], v%d, %s, s%d offen offset:%d' % (XR + 4 * k + 2 * q, XR + 4 * k + 2 * q + 1, [vO, vO2][q], s4(S_X), [sOA, sOB, sOB][k], 96 * (k == 2)) for k in range(3) for q in range(2)]
        gs = self.place_vm2(S, xl, max(g + 1, gAL + 4), 4) if not o.get('xl') else self.place_vm2(S, xl, gAH + 5, o.get('xs', 3)) if o['xl'] == 1 else [0]
        if o.get('verbose'): print('x loads', gs[0] - E, gs[-1] - E)
        if o.get('bp'):
            for e in range(12): S.flow(['ds_bpermute_b32 v%d, v254, v%d' % (XR + e, XR + e)], max(gs[-1] + 150, E + o.get('bpx', 480)) + 2 * e)
        SEL = 140
        su = ['s_andn2_b32 s3, s2, 7', 's_lshl_b32 s3, s3, 7', 's_and_b32 s%d, s2, 6' % sT2, 's_lshl_b32 s%d, s%d, 1' % (sT2, sT2), 's_add_u32 s3, s3, s%d' % sT2, 's_add_u32 s3, s3, 16',
              'v_and_b32 v%d, 7, v1' % vPA, 'v_lshl_add_u32 v%d, v%d, 7, s3' % (vPA, vPA)]
        g = S.flow(tmp(su, 5), c7 + 2)
        pd = o.get('pd', 30)
        c8 = max(gF + 4, g8 + 30 + pd, g9 + o.get('c8', -999))
        assert g < c8 - pd
        pregs = {0: [124, 128, 132] + [O0 + 8 * f for f in range(3, 8)], 1: [32 + 4 * p for p in range(6)] + [152, 156], 2: [192 + 4 * p for p in range(8)]}
        prn = lambda k, p: (ar if k == 2 else vr)(pregs[k][p], 4)
        pl = lambda k: ['buffer_load_dwordx4 %s, v%d, %s, s%d offen offset:%d sc1' % (prn(k, p), vA[p >> 2], s4(S_P), [sPA, sPB, sPA][k], (p & 3) * 1024) for p in range(8)]
        S.at(c8 - pd, self.poll_issue())
        S.at(c8, self.stamp(23) + self.hop('c8') + self.poll_check(8) + self.stamp(24))
        gs = self.place_vm2(S, (xl if o.get('xl') == 2 else []) + pl(0), c8 + 1, o.get('psp', sp))
        c9 = g9 + o.get('d9', 30) + pd
        assert c9 < S.n() - 2 and c9 - pd > c8, (c9 - F0, c8 - F0)
        S.at(c9 - pd, self.poll_issue())
        assert gst[2] < c9 - 4
        X9 = self.stamp(25) + ([('@vmwait', 'p2')] + self.flag(10) if o.get('f10') == 1 else []) + self.hop('c9') + self.poll_check(9) + self.stamp(26)
        if not o.get('c9x'): S.at(c9, X9)
        if o.get('f10', 0) > 1: assert S.flow([[('@vmwait', 'p2')] + self.flag(10)], gst[2] + o['f10']) < c9
        n_in = min(8, (S.n() - 2 - c9) // 3) if not o.get('c9x') else 0
        if n_in: self.place_vm2(S, pl(1)[:n_in], c9 + 1, 3)
        S.at(F0 + 1, ['s_barrier'])
        vFJ = [136, 137, 138, 139]
        su = []
        for j in range(4):
            su += ['s_add_u32 s3, s%d, %d' % (sW, j), 's_and_b32 s3, s3, 3', 's_mul_i32 s3, s3, 20', 's_add_u32 s3, s3, s%d' % sW, 's_lshl_b32 s3, s3, 10', 'v_add_u32 v%d, s3, v%d' % (vFJ[j], vA[0])]
        su += ['s_lshl_b32 s3, s%d, 12' % sW, 'v_add_u32 v25, s3, v%d' % vA[0], 's_cmp_eq_u32 s%d, 3' % sW, 's_cselect_b32 s3, 4, 40', 's_lshl_b32 s3, s3, 10', 'v_add_u32 v252, s3, v25']
        X0 = SEL + 2
        su += ['v_lshrrev_b32 v%d, 4, v1' % SEL, 'v_bfe_u32 v%d, v1, 1, 3' % (SEL + 1), 'v_lshlrev_b32 v%d, 1, v%d' % (SEL, SEL), 'v_sub_u32 v%d, v%d, v%d' % (SEL + 1, SEL + 1, SEL),
               'v_and_b32 v%d, 1, v1' % SEL, 'v_lshlrev_b32 v%d, 4, v%d' % (SEL, SEL), 's_movk_i32 s3, 0x3f80', 'v_lshlrev_b32 v%d, v%d, s3' % (SEL, SEL),
               ['v_cmp_eq_u32 vcc, 0, v%d' % (SEL + 1), 'v_cndmask_b32 v%d, 0, v%d, vcc' % (X0, SEL)], ['v_cmp_eq_u32 vcc, 1, v%d' % (SEL + 1), 'v_cndmask_b32 v%d, 0, v%d, vcc' % (X0 + 1, SEL)],
               'v_mov_b64 v[%d:%d], 0' % (SEL, SEL + 1)]
        su = [l for x in su for l in ([x] if isinstance(x, list) else [x])]
        k = next(k for k, l in enumerate(su) if isinstance(l, list))
        g = S.flow(tmp(self.keep_scc(su[:k]) + su[k:], 3), g8 + 1)
        assert g < F0 + 12, g - F0
        fw = sorted(fdone, key=lambda k: fdone[k])
        wl = []
        for k in fw: wl.append((max(fdone[k] + 4, wl[-1][0] + 3 if wl else 0), 'ds_write_b128 v%d, %s offset:%d' % (vFJ[k[0]], facc(*k), k[1] * 4096)))
        nin = sum(1 for e, _ in wl if e < S.n())
        S.flow(wl[:nin], F0 + 2, gmax=S.n() - 1)
        for k, gx in enumerate(o.get('xst', [])): S.at(E + gx, self.stamp([5, 6, 7, 8, 9, 10, 11, 12, 18][k]))
        if o.get('verbose'): print('g8', g8 - E, 'p2', gst[2] - F0, 'g9', g9 - E, 'c8', c8 - F0, 'c9', c9 - F0, 'nin', n_in, nin, 'over', [(k - E, v) for k, v in sorted(S.load.items()) if v > 8 and k >= E - 40])
        L = S.lines() + (pl(1)[n_in:] if not o.get('c9x') else []) + [l for _, l in wl[nin:]] + self.stamp(27)
        fl = [('@vmwait', 'p2')] + ([] if o.get('f10') else self.flag(10))
        if o.get('c9x'): fl = X9 + pl(1)
        L += ['s_add_u32 s%d, s%d, %d' % (sPA, sPB, 3 * 8192), 's_mov_b32 s3, 0xbfb8aa3b', 's_waitcnt lgkmcnt(0)', 's_barrier']
        FR = lambda k, q: [64, 80, 96, 160, 176, 8][2 * k + q]
        rd = lambda k: ['ds_read_b128 v[%d:%d], v%d offset:%d' % (FR(k, q) + 4 * ww, FR(k, q) + 4 * ww + 3, 252 if k else 25, 12288 * (k == 2) + q * 20480 + ww * 1024) for q in range(2) for ww in range(4)]
        pk = lambda op, d, x, y: 'v_pk_%s_f32 v[%d:%d], %s, v[%d:%d]' % (op, d, d + 1, x if isinstance(x, str) else 'v[%d:%d]' % (x, x + 1), y, y + 1)
        def silu(k):
            R = []
            for q in range(2):
                b = FR(k, q)
                for x, y in ((0, 4), (8, 12), (0, 8)): R += [pk('add', b + x + e, b + x + e, b + y + e) for e in (0, 2)]
                R += ['v_mul_f32 v%d, s3, v%d' % (b + 4 + e, b + e) for e in range(4)]
                R += ['v_exp_f32 v%d, v%d' % (b + 4 + e, b + 4 + e) for e in range(4)]
                R += ['v_lshlrev_b32 v%d, 16, v%d' % (b + 8 + 2 * e, XR + 4 * k + 2 * q + e) for e in range(2)]
                R += ['v_add_f32 v%d, 1.0, v%d' % (b + 4 + e, b + 4 + e) for e in range(4)]
                R += ['v_rcp_f32 v%d, v%d' % (b + 4 + e, b + 4 + e) for e in range(4)]
                R += ['v_and_b32 v%d, s%d, v%d' % (b + 9 + 2 * e, sMask, XR + 4 * k + 2 * q + e) for e in range(2)]
                R += [pk('mul', b + e, b + e, b + 4 + e) for e in (0, 2)]
            return R
        SUM = lambda k, q: [112, 116, 120, 56, 60, 148][2 * k + q]
        sums = lambda k: ['%s %s, %s, %s, %s' % (MF, vr(SUM(k, q), 4), vr(SEL + 2 - 2 * q, 4), prn(k, p), vr(SUM(k, q), 4) if p else '0') for p in range(8) for q in range(2)]
        def outs(k):
            R = []
            for q in range(2):
                b, d = FR(k, q), SUM(k, q)
                R += ['v_pk_fma_f32 v[%d:%d], v[%d:%d], v[%d:%d], v[%d:%d]' % (d + e, d + e + 1, d + e, d + e + 1, b + e, b + e + 1, b + 8 + e, b + 9 + e) for e in (0, 2)]
            for q in range(2):
                d = SUM(k, q)
                R += ['v_cvt_pk_bf16_f32 v%d, v%d, v%d' % (d + e, d + 2 * e, d + 2 * e + 1) for e in range(2)]
                if o.get('bp'): R += ['ds_bpermute_b32 v%d, v253, v%d' % (d + e, d + e) for e in range(2)]
            for q in range(2):
                d = SUM(k, q)
                R += ['buffer_store_dwordx2 v[%d:%d], v%d, %s, s%d offen offset:%d%s' % (d, d + 1, [vO, vO2][q], s4(S_A), [sOA, sOB, sOB][k], 96 * (k == 2), o.get('outfl', ''))]
            return R
        def mixin(a, m):
            R = []
            for k, l in enumerate(a):
                R.append(l)
                if k % 3 == 2 and m: R.append(m.pop(0))
            return R + m
        L += rd(0) + rd(1) + fl + self.stamp(28) + ['v_mov_b64 v[%d:%d], 0' % (SEL + 4, SEL + 5)] + rd(2)
        w = mixin(silu(0), sums(0)) + outs(0) + mixin(silu(1), sums(1)) + outs(1)
        if o.get('bp'):
            m1 = mixin(silu(1), sums(1))
            w = mixin(silu(0), sums(0)) + outs(0)[:-2] + m1[:24] + outs(0)[-2:] + m1[24:] + outs(1)
        pi = o.get('pi', 60)
        e2 = o.get('e2')
        if e2:
            L += w[:pi] + self.poll_issue() + w[pi:e2] + self.stamp(29) + self.poll_check(10) + self.stamp(30)
            L += ['s_cmp_lt_u32 s%d, 2' % sW, 's_cselect_b32 s%d, s%d, s%d' % (sPA, sPA, sPB), 's_cselect_b64 exec, -1, 1'] + pl(2) + ['s_mov_b64 exec, -1'] + w[e2:]
            L += ['s_cmp_lt_u32 s%d, 2' % sW, 's_cbranch_scc0 %s' % self.lab('fin')]
        else:
            L += w[:pi] + self.poll_issue() + w[pi:]
            L += ['s_cmp_lt_u32 s%d, 2' % sW, 's_cbranch_scc0 %s' % self.lab('fin')] + self.stamp(29) + self.poll_check(10) + self.stamp(30) + pl(2)
        L += silu(2) + sums(2) + outs(2) + [self.lab('fin') + ':']
        pats = {'f': r'load_dwordx4.*(%s|%s)' % (re.escape(s4(S_H)), re.escape(s4(S_WD))), 'A': r'load_dwordx4.*' + re.escape(s4(S_ST)), 'ps': r'store.*' + re.escape(s4(S_P)),
                'pl': r'load.*' + re.escape(s4(S_P)), 'W': r'load.*' + re.escape(s4(S_WO)), 'cs': r'store.*' + re.escape(s4(S_ST)), 'x': r'load.*' + re.escape(s4(S_X))}
        for a in o.get('abl', []): L = [l for l in L if not re.search(pats[a], l[0] if isinstance(l, tuple) else l)]
        return L

    def place_vm2(self, S, lines, g0, sp):
        vg = self.opt.get('vgap', 2)
        def isvm(l):
            t = l[0] if isinstance(l, tuple) else l
            return t.startswith('buffer_')
        def near(g): return any(isvm(l) for y in range(g - vg + 1, g + vg) for l in S.fill.get(y, []))
        g, out, pend, fr = int(g0), [], [], 0
        for l in lines:
            if isinstance(l, tuple) and isinstance(l[0], int):
                g = max(g, l[0]); l = l[1]
            if not isvm(l):
                pend.append(l); continue
            k = 0
            while near(g) and k < 6: g += 1; k += 1
            if pend:
                S.at(g - 1, pend); pend = []
            S.at(g, l)
            out.append(g); fr += sp - int(sp); g += int(sp) + int(fr); fr -= int(fr)
        assert not pend
        return out

    def build(self, stats=None):
        o = self.opt
        lazy = o.get('lazy', 8)
        L = self.prologue()
        pre, S = self.gemms()
        L += self.hop('p') + self.stamp(12)
        L += [('@vmwait', 'dma0'), 's_barrier'] + self.stamp(1) + pre
        L += S.lines()
        L += self.stamp(3)
        L += self.p2_epilogue()
        L += self.stamp(4)
        out, st = process(L, stats=stats, lazy=lazy)
        oa, st = self.attention(st, stats, lazy)
        out += oa
        L = []
        if self.SO: L += ['s_waitcnt vmcnt(0)'] + self.stamp(13) + self.stamp(15, True) + self.stamps_out()
        L += ['s_endpgm ;@stop']
        out += process(L, st, stats=stats, lazy=lazy)[0]
        for blk in self.ool:
            out += process(blk, stats=stats)[0]
        out += [self.lab('end') + ':']
        if o.get('pg'):
            import pg
            out = pg.pads(out, self.lab, sW, True, o.get('al', 0))
        return out
```
